```python
import torch

def _softmax(x, axis=-1):
    return torch.softmax(x, dim=axis)
def _gelu(x):
    return torch.nn.functional.gelu(x, approximate="tanh")
def _silu(x):
    return torch.nn.functional.silu(x)
def _sigmoid(x):
    return torch.sigmoid(x)
def _layernorm(x, axis=-1, eps=1e-5):
    m = x.mean(dim=axis, keepdim=True)
    v = x.var(dim=axis, keepdim=True, unbiased=False)
    return (x - m) / torch.sqrt(v + eps)
def _scatter_add(tgt, idx, src, axis=0):
    return tgt.clone().index_add_(axis, idx, src)
def _segment_sum(src, seg, n):
    out = torch.zeros((n,) + src.shape[1:], dtype=src.dtype)
    return out.index_add_(0, seg, src)
def _pad(x, pw):
    flat = tuple(v for pair in reversed(pw) for v in pair)
    return torch.nn.functional.pad(x, flat)

kernel_name = 'recurrent_scan__sliding_block_cached__glu_gated_glu__decode'

def setup_inputs():

    _w = (lambda a: (lambda t: t.to(torch.bfloat16) if t.is_floating_point() else t)(torch.as_tensor(a)))
    def _A_setup():
        B, Sq, D = 1, 1, 1024
        Hq, Hkv, Sk, Dh = 32, 4, 65536, 128
        assert Hq % Hkv == 0, (Hq, Hkv)
        return {
            "x": _w((lambda *s: torch.randn(*s, dtype=torch.bfloat16) * 0.05)(B, Sq, D)),
            "k_cache": _w((lambda *s: torch.randn(*s, dtype=torch.bfloat16) * 1.6)(B, Hkv, Sk, Dh)),
            "v_cache": _w((lambda *s: torch.randn(*s, dtype=torch.bfloat16) * 0.2)(B, Hkv, Sk, Dh)),
            "wq": _w((lambda *s: torch.randn(*s, dtype=torch.bfloat16) * 1.6)(D, Hq * Dh) * (D ** -0.5)),
            "wo": _w((lambda *s: torch.randn(*s, dtype=torch.bfloat16) * 0.2)(Hq * Dh, D) * ((Hq * Dh) ** -0.5)),
        }
    _A_in = _A_setup()

    def _B_setup():
        B, S, D, F = 1, 1, 1024, 3584
        return {
            "x": _w((lambda *s: torch.randn(*s, dtype=torch.bfloat16) * 0.05)(B, S, D)),
            "w_gate": _w((lambda *s: torch.randn(*s, dtype=torch.bfloat16) * 0.2)(D, F)),
            "w_up": _w((lambda *s: torch.randn(*s, dtype=torch.bfloat16) * 0.1)(D, F)),
            "w_down": _w((lambda *s: torch.randn(*s, dtype=torch.bfloat16) * 0.1)(F, D)),
        }
    _B_in = _B_setup()

    return {
        "A_x": _A_in["x"],
        "A_k_cache": _A_in["k_cache"],
        "A_v_cache": _A_in["v_cache"],
        "A_wq": _A_in["wq"],
        "A_wo": _A_in["wo"],
        "B_x": _B_in["x"],
        "B_w_gate": _B_in["w_gate"],
        "B_w_up": _B_in["w_up"],
        "B_w_down": _B_in["w_down"],
    }

def reference(A_x, A_k_cache, A_v_cache, A_wq, A_wo, B_x, B_w_gate, B_w_up, B_w_down):
    def _A_ref(x, k_cache, v_cache, wq, wo):
        B, Sq, D = x.shape
        Hq, Dh = 32, 128
        Hkv, Sk = k_cache.shape[1], k_cache.shape[2]
        W = min(4096, max(256, Sk // 4))
        rep = Hq // Hkv
        q = (lambda x, *d: x.permute(*d))((x @ wq).reshape(B, Sq, Hq, Dh), 0, 2, 1, 3)
        k = (lambda x, n, axis: torch.repeat_interleave(x, n, dim=axis))(k_cache[:, :, Sk - W:, :], rep, axis=1)
        v = (lambda x, n, axis: torch.repeat_interleave(x, n, dim=axis))(v_cache[:, :, Sk - W:, :], rep, axis=1)
        scores = torch.einsum("bhqd,bhkd->bhqk", q, k) * (Dh ** -0.5)
        p = _softmax(scores, axis=-1)
        o = torch.einsum("bhqk,bhkd->bhqd", p, v)
        return (lambda x, *d: x.permute(*d))(o, 0, 2, 1, 3).reshape(B, Sq, Hq * Dh) @ wo

    def _B_ref(x, w_gate, w_up, w_down):
        g = torch.einsum("bsd,df->bsf", x, w_gate)
        u = torch.einsum("bsd,df->bsf", x, w_up)
        h = _sigmoid(g) * u
        return torch.einsum("bsf,fd->bsd", h, w_down)

    x = A_x
    xn = _layernorm(x, axis=-1)
    s = _A_ref(xn, A_k_cache, A_v_cache, A_wq, A_wo)
    g = _silu(_B_ref(xn, B_w_gate, B_w_up, B_w_down))
    return x + s * g
```

```python
import sys
NAME = "recurrent_scan__sliding_block_cached__glu_gated_glu__decode"

HEADER = open("cdna_kernels/" + NAME + ".s.ref").read().split("; @launch")[0]

WS_E  = 0x0
WS_QP = 0x1000
WS_GU = 0x9000
WS_OP = 0x10000
WS_SP = 0x90000
WS_USED = 0x108000
WS_DIAG = 0x1000000
L_CNT = 0
L_ML  = 64
L_OO  = 1024
L_RED = 2048
L_Q   = 4096
L_XN  = 8192
L_OW  = 12288
L_V   = 32768
LDS_BYTES = 65536
OWROW = 528

SPIN = 200000

class G:
    def __init__(s, diag, WA, WB1, WB2, WYA, WYB):
        s.L = []; s.diag = diag; s.lab = 0
        s.WA, s.WB1, s.WB2, s.WYA, s.WYB = WA, WB1, WB2, WYA, WYB
    def e(s, t): s.L.append("  " + t)
    def label(s, n): s.L.append(n + ":")
    def newlab(s, p="L"):
        s.lab += 1; return f"{p}_{s.lab}"
    def nop(s, n):
        while n > 0:
            k = min(n, 16); s.e(f"s_nop {k-1}"); n -= k
    def stamp(s, i):
        if s.diag: s.e(f"s_memrealtime s[{64+2*i}:{65+2*i}]")
    def srd(s, d, lo, size):
        s.e(f"s_mov_b32 s{d}, s{lo}"); s.e(f"s_mov_b32 s{d+1}, s{lo+1}")
        s.e(f"s_mov_b32 s{d+2}, {size:#x}"); s.e(f"s_mov_b32 s{d+3}, 0x20000")

S_WAVE = 4; S_A = 5
S_T = [10, 11, 12, 13]
S_SELA = 14; S_SELB = 15
WS = "s[52:55]"
V_LANE = 0
V_M = 4
V_FF = 8
V_TMP = 12
V_ACC = 20
V_XX = 24
V_W = 56

def tagcheck(g, regs_list, acc):
    for k, r in enumerate(regs_list):
        g.e(f"v_perm_b32 v9, v{r+1}, v{r}, s{S_SELA}")
        g.e(f"v_perm_b32 v10, v{r+3}, v{r+2}, s{S_SELB}")
        if k == 0:
            g.e(f"v_or_b32 v{acc}, v9, v10")
            g.e(f"v_xor_b32 v{acc}, s{S_T[0]}, v{acc}")
        else:
            g.e(f"v_or_b32 v9, v9, v10")
            g.e(f"v_xor_b32 v9, s{S_T[0]}, v9")
            g.e(f"v_or_b32 v{acc}, v{acc}, v9")

def tagput(g, r):
    for i in range(4):
        g.e(f"v_bfi_b32 v{r+i}, v{V_FF}, s{S_T[i]}, v{r+i}")

def wave_sum(g, v, sdst):
    for ror in (8, 4, 2, 1):
        g.nop(2); g.e(f"v_add_f32_dpp v{v}, v{v}, v{v} row_ror:{ror} row_mask:0xf bank_mask:0xf")
    g.nop(2); g.e(f"v_add_f32_dpp v{v}, v{v}, v{v} row_bcast:15 row_mask:0xa bank_mask:0xf")
    g.nop(2); g.e(f"v_add_f32_dpp v{v}, v{v}, v{v} row_bcast:31 row_mask:0xc bank_mask:0xf")
    g.nop(1); g.e(f"v_readlane_b32 s{sdst}, v{v}, 63")

def xreduce(g, op, regs, tmps, steps=(16, 32)):
    for st in steps:
        for r, t in zip(regs, tmps): g.e(f"v_mov_b32 v{t}, v{r}")
        if len(regs) < 3: g.nop(3 - len(regs))
        for r, t in zip(regs, tmps): g.e(f"v_permlane{st}_swap_b32 v{t}, v{r}")
        g.nop(1)
        for r, t in zip(regs, tmps): g.e(f"{op} v{r}, v{t}, v{r}")

def layernorm(g, xr, nwait):
    U = V_XX
    g.e(f"s_waitcnt vmcnt({nwait})")
    for i in range(8):
        g.e(f"v_lshlrev_b32 v{U+2*i}, 16, v{xr+i}")
        g.e(f"v_and_b32 v{U+2*i+1}, 0xffff0000, v{xr+i}")
    g.e(f"v_add_f32 v9, v{U}, v{U+1}"); g.e(f"v_add_f32 v10, v{U+2}, v{U+3}")
    for i in range(4, 16, 2):
        g.e(f"v_add_f32 v9, v9, v{U+i}"); g.e(f"v_add_f32 v10, v10, v{U+i+1}")
    g.e("v_add_f32 v9, v9, v10")
    wave_sum(g, 9, 6)
    g.nop(2)
    g.e("v_mov_b32 v11, 0x3a800000")
    g.e("v_mul_f32 v3, s6, v11")
    g.e("v_mov_b32 v9, 0"); g.e("v_mov_b32 v10, 0")
    for i in range(0, 16, 2):
        g.e(f"v_sub_f32 v{U+16}, v{U+i}, v3"); g.e(f"v_sub_f32 v{U+17}, v{U+i+1}, v3")
        g.e(f"v_fmac_f32 v9, v{U+16}, v{U+16}"); g.e(f"v_fmac_f32 v10, v{U+17}, v{U+17}")
    g.e("v_add_f32 v9, v9, v10")
    wave_sum(g, 9, 6)
    g.nop(2)
    g.e("v_mul_f32 v9, s6, v11")
    g.e("v_cvt_pk_bf16_f32 v9, v9, v3")
    g.e("v_and_b32 v3, 0xffff0000, v9")
    g.e("v_lshlrev_b32 v9, 16, v9")
    g.e("v_add_f32 v9, 0x3727c5ac, v9")
    g.e("v_cvt_pk_bf16_f32 v9, v9, v9"); g.e("v_lshlrev_b32 v9, 16, v9")
    g.e("v_sqrt_f32 v9, v9"); g.nop(1)
    g.e("v_cvt_pk_bf16_f32 v9, v9, v9"); g.e("v_lshlrev_b32 v9, 16, v9")
    g.e("v_rcp_f32 v9, v9")
    for i in range(16):
        g.e(f"v_sub_f32 v{U+i}, v{U+i}, v3")
    for i in range(0, 16, 2):
        g.e(f"v_cvt_pk_bf16_f32 v10, v{U+i}, v{U+i+1}")
        g.e(f"v_lshlrev_b32 v{U+i}, 16, v10"); g.e(f"v_and_b32 v{U+i+1}, 0xffff0000, v10")
        g.e(f"v_mul_f32 v{U+i}, v{U+i}, v9"); g.e(f"v_mul_f32 v{U+i+1}, v{U+i+1}, v9")
        g.e(f"v_cvt_pk_bf16_f32 v{U+i}, v{U+i}, v{U+i}"); g.e(f"v_cvt_pk_bf16_f32 v{U+i+1}, v{U+i+1}, v{U+i+1}")
    g.e(f"v_lshlrev_b32 v10, 6, v{V_LANE}")
    for i in range(4):
        g.e(f"ds_write_b128 v10, v[{U+4*i}:{U+4*i+3}] offset:{L_XN + 16*i}")

def gemv_step(g, i, xx, w):
    t = V_TMP + 4 * (i & 1)
    for r in range(4): g.e(f"v_and_b32 v{t+r}, v{xx}, v{V_M+r}")
def gemv_mfma(g, i, w, first):
    t = V_TMP + 4 * (i & 1)
    c = "0" if first else f"v[{V_ACC}:{V_ACC+3}]"
    g.e(f"v_mfma_f32_16x16x32_bf16 v[{V_ACC}:{V_ACC+3}], v[{t}:{t+3}], v[{w}:{w+3}], {c}")

def lds_arrive(g, off, rtn=None):
    g.e("s_mov_b64 exec, 1")
    g.e("v_mov_b32 v9, 0"); g.e("v_mov_b32 v10, 1")
    if rtn is None:
        g.e(f"ds_add_u32 v9, v10 offset:{off}")
    else:
        g.e(f"ds_add_rtn_u32 v10, v9, v10 offset:{off}")
        g.e("s_waitcnt lgkmcnt(0)")
        g.e(f"v_readfirstlane_b32 s{rtn}, v10")
    g.e("s_mov_b64 exec, -1")

def lds_spin(g, off, target, sleep=0):
    lp = g.newlab("Lsp")
    g.e(f"s_mov_b32 s7, {SPIN}")
    g.e("v_mov_b32 v9, 0")
    g.label(lp)
    if sleep: g.e(f"s_sleep {sleep}")
    g.e(f"ds_read_b32 v10, v9 offset:{off}")
    g.e("s_sub_u32 s7, s7, 1"); g.e("s_cbranch_scc1 L_fail")
    g.e("s_waitcnt lgkmcnt(0)")
    g.e("v_readfirstlane_b32 s6, v10")
    g.e(f"s_cmp_lt_u32 s6, {target}"); g.e(f"s_cbranch_scc1 {lp}")

def col_reduce(g):
    skip = g.newlab("Lnl")
    g.e(f"v_and_b32 v1, 7, v{V_LANE}"); g.e("v_lshlrev_b32 v1, 5, v1")
    g.e(f"v_and_b32 v2, 16, v{V_LANE}"); g.e("v_add_u32 v1, v1, v2")
    g.e(f"v_and_b32 v2, 32, v{V_LANE}"); g.e("v_lshl_add_u32 v1, v2, 3, v1")
    g.e(f"s_lshl_b32 s6, s{S_WAVE}, 9"); g.e("v_add_u32 v1, s6, v1")
    g.e("s_mov_b32 exec_lo, 0x00ff00ff"); g.e("s_mov_b32 exec_hi, 0xff00ff00")
    g.e(f"ds_write_b128 v1, v[{V_ACC}:{V_ACC+3}] offset:{L_RED}")
    lds_arrive(g, L_CNT + 0, rtn=6)
    g.e("s_cmp_lg_u32 s6, 3"); g.e(f"s_cbranch_scc1 {skip}")
    g.e(f"v_and_b32 v1, 15, v{V_LANE}"); g.e("v_lshlrev_b32 v1, 4, v1")
    R = V_XX
    for p in range(8):
        g.e(f"ds_read_b128 v[{R+4*p}:{R+4*p+3}], v1 offset:{L_RED + 256*p}")
    for p in range(0, 8, 2):
        g.e(f"s_waitcnt lgkmcnt({6-p})")
        for r in range(4): g.e(f"v_add_f32 v{R+4*p+r}, v{R+4*p+r}, v{R+4*p+4+r}")
    for r in range(4): g.e(f"v_add_f32 v{R+r}, v{R+r}, v{R+8+r}")
    for r in range(4): g.e(f"v_add_f32 v{R+16+r}, v{R+16+r}, v{R+24+r}")
    for r in range(4): g.e(f"v_add_f32 v{V_ACC+r}, v{R+r}, v{R+16+r}")
    return skip

def wait_tag(g):
    g.e(f"v_readfirstlane_b32 s{S_T[0]}, v19")
    g.nop(1)
    g.e(f"s_add_u32 s{S_T[0]}, s{S_T[0]}, 0x9e3779b9")
    for i in range(1, 4): g.e(f"s_lshr_b32 s{S_T[i]}, s{S_T[0]}, {8*i}")

def gen(diag=False, WA=8, WB1=8, WB2=8, WYA=6, WYB=8):
    g = G(diag, WA, WB1, WB2, WYA, WYB); e = g.e
    g.L.append(HEADER.rstrip("\n"))
    g.L.append(f"; @launch grid=(256,1,1) block=(512,1,1) lds={LDS_BYTES}")
    g.L.append('.amdgcn_target "amdgcn-amd-amdhsa--gfx950"')
    g.L += [".text", f".globl {NAME}_kernel", ".p2align 8", f".type {NAME}_kernel,@function", f"{NAME}_kernel:"]
    g.stamp(0)
    e("s_cmp_ge_u32 s2, 256"); e("s_cbranch_scc1 L_end")
    e("s_load_dwordx16 s[16:31], s[0:1], 0"); e("s_load_dwordx8 s[32:39], s[0:1], 64")
    e("v_lshrrev_b32 v1, 6, v0"); e("v_and_b32 v0, 63, v0")
    e(f"v_readfirstlane_b32 s{S_WAVE}, v1")
    e("v_and_b32 v1, 1, v0"); e("v_lshlrev_b32 v1, 4, v1"); e("v_mov_b32 v2, 0xffff"); e("v_lshlrev_b32 v2, v1, v2")
    e("v_bfe_u32 v1, v0, 1, 2")
    for r in range(4):
        e(f"v_cmp_eq_u32 vcc, {r}, v1"); g.nop(2); e(f"v_cndmask_b32 v{V_M+r}, 0, v2, vcc")
    e(f"v_mov_b32 v{V_FF}, 0xff")
    e(f"s_mov_b32 s{S_SELA}, 0x0c0c0400"); e(f"s_mov_b32 s{S_SELB}, 0x04000c0c")
    e("s_waitcnt lgkmcnt(0)")
    g.srd(52, 38, WS_DIAG + 0x100000 if diag else WS_USED)
    e(f"buffer_load_dword v19, off, {WS}, 0 offset:{WS_E} sc1")
    g.stamp(1)
    e("s_cmp_ge_u32 s2, 240"); e("s_cbranch_scc1 L_C")
    e(f"s_cmp_ge_u32 s{S_WAVE}, 4"); e("s_cbranch_scc1 L_Y")
    e("s_setprio 3")
    g.srd(48, 16, 2048)
    e("v_lshlrev_b32 v1, 5, v0")
    e("buffer_load_dwordx4 v[120:123], v1, s[48:51], 0 offen")
    e("buffer_load_dwordx4 v[124:127], v1, s[48:51], 0 offen offset:16")
    e("s_cmp_ge_u32 s2, 128"); e("s_cbranch_scc1 L_BX")
    e("s_and_b32 s5, s2, 7"); e("s_lshl_b32 s5, s5, 4"); e("s_lshr_b32 s6, s2, 3"); e("s_add_u32 s5, s5, s6")
    g.srd(40, 22, 8388608)
    e("v_lshrrev_b32 v2, 3, v0"); e("v_lshlrev_b32 v1, 17, v2"); e("v_and_b32 v3, 7, v0"); e("v_lshl_add_u32 v1, v3, 4, v1")
    e("s_and_b32 s6, s5, 1"); e("s_lshl_b32 s6, s6, 2"); e(f"s_add_u32 s6, s6, s{S_WAVE}")
    e("s_lshl_b32 s8, s6, 20"); e("s_lshr_b32 s7, s5, 1"); e("s_lshl_b32 s7, s7, 7"); e("s_add_u32 s8, s8, s7")
    e("s_lshl_b32 s9, s6, 9")
    e("v_lshl_add_u32 v11, v2, 6, s9")
    issued = [0]
    def issue_A(k):
        if k < 16:
            e(f"buffer_load_dwordx4 v[{V_W+4*k}:{V_W+4*k+3}], v1, s[40:43], s8 offen nt")
            if k < 15: e("s_add_u32 s8, s8, 0x2000")
        elif k < 24:
            j = k - 16; u, s = j >> 2, j & 3
            e(f"buffer_load_dwordx4 v[{V_W+4*j}:{V_W+4*j+3}], v2, s[44:47], s56 offen offset:{64*s} nt")
            if j == 3: e("s_add_u32 s56, s56, 4096")
        else:
            j = k - 24
            e(f"s_mov_b32 m0, s58"); e("s_add_u32 s58, s58, 1024")
            e(f"buffer_load_dwordx4 v{126 + (j & 1)}, s[60:63], s57 offen nt lds")
            if j < 7: e("s_add_u32 s57, s57, 1024")
    for k in range(WA): issue_A(k)
    g.srd(44, 18, 67108864); g.srd(60, 20, 67108864)
    e("s_lshr_b32 s56, s5, 5"); e("s_lshl_b32 s56, s56, 24"); e("s_and_b32 s7, s5, 31"); e("s_lshl_b32 s7, s7, 15"); e("s_add_u32 s56, s56, s7")
    e(f"s_lshl_b32 s7, s{S_WAVE}, 13"); e("s_add_u32 s56, s56, s7"); e(f"s_add_u32 s56, s56, {61440*256}")
    e("s_mov_b32 s57, s56")
    e(f"s_add_u32 s58, s7, {L_V}")
    e("v_mov_b32 v2, v11")
    layernorm(g, 120, WA)
    e("s_waitcnt lgkmcnt(0)")
    wait_tag(g)
    for i in range(4):
        e(f"ds_read_b128 v[{V_XX+4*i}:{V_XX+4*i+3}], v2 offset:{L_XN + 16*i}")
    e("v_and_b32 v3, 15, v0"); e("v_lshrrev_b32 v9, 4, v0")
    e("v_lshlrev_b32 v10, 8, v3")
    e("s_waitcnt lgkmcnt(0)")
    e("v_lshl_add_u32 v2, v9, 4, v10")
    e("v_lshlrev_b32 v10, 1, v9"); e("v_xor_b32 v10, v10, v3")
    e("v_lshlrev_b32 v10, 4, v10"); e("v_lshl_add_u32 v126, v9, 8, v10")
    e("v_xor_b32 v127, 0x80, v126")
    g.stamp(2)
    gemv_step(g, 0, V_XX, V_W)
    for i in range(16):
        e(f"s_waitcnt vmcnt({WA-1})")
        issue_A(i + WA)
        if i == 10: e("s_barrier")
        gemv_mfma(g, i, V_W + 4 * i, i == 0)
        if i < 15: gemv_step(g, i + 1, V_XX + i + 1, None)
    g.stamp(3)
    e("v_mov_b32 v125, v2")
    skip = col_reduce(g)
    tagput(g, V_ACC)
    e("s_lshr_b32 s6, s5, 5"); e("s_lshl_b32 s6, s6, 13"); e("s_and_b32 s7, s5, 1"); e("s_lshl_b32 s7, s7, 12"); e("s_add_u32 s6, s6, s7")
    e("s_bfe_u32 s7, s5, 0x40001"); e("s_lshl_b32 s7, s7, 8"); e("s_add_u32 s6, s6, s7"); e(f"s_add_u32 s6, s6, {WS_QP}")
    e("s_mov_b64 exec, 0xffff")
    e(f"buffer_store_dwordx4 v[{V_ACC}:{V_ACC+3}], v1, {WS}, s6 offen sc1")
    e("s_mov_b64 exec, -1")
    g.label(skip)
    g.stamp(4)
    e("v_mov_b32 v2, v125")
    for k in range(16 + WA, 32):
        e(f"s_waitcnt vmcnt({WA-1})")
        issue_A(k)
    e("s_barrier")
    e("s_lshr_b32 s8, s5, 5"); e("s_lshl_b32 s8, s8, 13"); e(f"s_lshl_b32 s7, s{S_WAVE}, 10"); e("s_add_u32 s8, s8, s7"); e(f"s_add_u32 s8, s8, {WS_QP}")
    e("s_add_u32 s9, s8, 4096")
    e("v_lshlrev_b32 v1, 4, v0")
    lp = g.newlab("Lq")
    e(f"s_mov_b32 s7, {SPIN}")
    g.label(lp)
    e(f"buffer_load_dwordx4 v[24:27], v1, {WS}, s8 offen sc1")
    e(f"buffer_load_dwordx4 v[28:31], v1, {WS}, s9 offen sc1")
    e("s_sub_u32 s7, s7, 1"); e("s_cbranch_scc1 L_fail")
    e("s_waitcnt vmcnt(0)")
    tagcheck(g, [24, 28], 11)
    e("v_cmp_ne_u32 vcc, 0, v11"); e(f"s_cbranch_vccnz {lp}")
    if diag: e("s_mov_b32 s90, s7")
    g.stamp(5)
    for r in range(4): e(f"v_add_f32 v{24+r}, v{24+r}, v{28+r}")
    e("v_cvt_pk_bf16_f32 v24, v24, v25"); e("v_cvt_pk_bf16_f32 v25, v26, v27")
    e("v_lshrrev_b32 v1, 5, v0"); e(f"s_lshl_b32 s6, s{S_WAVE}, 1"); e("v_add_u32 v1, s6, v1"); e("v_mul_u32_u24 v1, 272, v1")
    e("v_and_b32 v2, 31, v0"); e("v_lshl_add_u32 v1, v2, 3, v1")
    e(f"ds_write_b64 v1, v[24:25] offset:{L_Q}")
    lds_arrive(g, L_CNT + 4)
    e("v_lshrrev_b32 v1, 2, v0")
    e("v_and_b32 v2, 7, v1"); e("v_lshlrev_b32 v2, 5, v2")
    e("v_and_b32 v3, 3, v0"); e("v_lshlrev_b32 v3, 3, v3")
    e("v_lshl_add_u32 v1, v1, 8, v3")
    e(f"s_lshl_b32 s6, s{S_WAVE}, 13"); e(f"s_add_u32 s6, s6, {L_V}"); e("v_add_u32 v1, s6, v1")
    VV = V_W + 32
    for t in range(8):
        e(f"v_xor_b32 v3, {32*t}, v2"); e("v_add_u32 v3, v3, v1")
        e(f"ds_read_b64_tr_b16 v[{VV+4*t}:{VV+4*t+1}], v3")
        e(f"ds_read_b64_tr_b16 v[{VV+4*t+2}:{VV+4*t+3}], v3 offset:4096")
    lds_spin(g, L_CNT + 4, 4)
    e("v_and_b32 v1, 7, v0"); e("v_mul_u32_u24 v1, 272, v1"); e("v_and_b32 v2, 48, v0"); e("v_add_u32 v1, v1, v2")
    for s in range(4):
        e(f"ds_read_b128 v[{24+4*s}:{27+4*s}], v1 offset:{L_Q + 64*s}")
    for s in range(4):
        e(f"s_waitcnt lgkmcnt({3-s})")
        for u in range(2):
            c = "0" if s == 0 else f"v[{40+4*u}:{43+4*u}]"
            e(f"v_mfma_f32_16x16x32_bf16 v[{40+4*u}:{43+4*u}], v[{V_W+16*u+4*s}:{V_W+16*u+4*s+3}], v[{24+4*s}:{27+4*s}], {c}")
    e("s_mov_b32 s6, 0x3db504f3")
    e("s_mov_b32 s7, 0x3fb8aa3b")
    e("v_mov_b32 v12, 0x3f803f80"); e("v_mov_b32 v13, v12"); e("v_mov_b32 v14, v12"); e("v_mov_b32 v15, v12")
    g.nop(3)
    for i in range(0, 8, 2):
        e(f"v_cvt_pk_bf16_f32 v9, v{40+i}, v{41+i}")
        e(f"v_lshlrev_b32 v{40+i}, 16, v9"); e(f"v_and_b32 v{41+i}, 0xffff0000, v9")
        e(f"v_mul_f32 v{40+i}, s6, v{40+i}"); e(f"v_mul_f32 v{41+i}, s6, v{41+i}")
        e(f"v_cvt_pk_bf16_f32 v9, v{40+i}, v{41+i}")
        e(f"v_lshlrev_b32 v{40+i}, 16, v9"); e(f"v_and_b32 v{41+i}, 0xffff0000, v9")
    e("v_max3_f32 v9, v40, v41, v42"); e("v_max3_f32 v10, v43, v44, v45"); e("v_max3_f32 v9, v9, v46, v47"); e("v_max_f32 v16, v9, v10")
    xreduce(g, "v_max_f32", [16], [9])
    e("v_mul_f32 v16, s7, v16")
    for i in range(8): e(f"v_fma_f32 v{40+i}, v{40+i}, s7, -v16")
    for i in range(8): e(f"v_exp_f32 v{40+i}, v{40+i}")
    g.nop(1)
    for i in range(4): e(f"v_cvt_pk_bf16_f32 v{48+i}, v{40+2*i}, v{41+2*i}")
    g.nop(2)
    e(f"v_mfma_f32_16x16x32_bf16 v[20:23], v[12:15], v[48:51], 0")
    O = V_W
    for t in range(8):
        e(f"v_mfma_f32_16x16x32_bf16 v[{O+4*t}:{O+4*t+3}], v[{VV+4*t}:{VV+4*t+3}], v[48:51], 0")
    e("v_and_b32 v1, 15, v0"); e(f"s_lshl_b32 s6, s{S_WAVE}, 3"); e("v_add_u32 v2, s6, v1"); e(f"v_mul_u32_u24 v2, {OWROW}, v2")
    e("v_and_b32 v3, 48, v0"); e("v_add_u32 v2, v2, v3")
    e(f"s_lshl_b32 s6, s{S_WAVE}, 7"); e("v_lshl_add_u32 v1, v1, 3, s6")
    e("v_mov_b32 v17, v20")
    e("s_mov_b32 exec_lo, 0x00ff00ff"); e("s_mov_b32 exec_hi, 0x00ff00ff")
    e(f"ds_write_b64 v1, v[16:17] offset:{L_ML}")
    for t in range(8):
        e(f"ds_write_b128 v2, v[{O+4*t}:{O+4*t+3}] offset:{L_OW + 64*t}")
    lds_arrive(g, L_CNT + 8)
    g.stamp(6)
    e("v_lshrrev_b32 v1, 5, v0"); e(f"s_lshl_b32 s6, s{S_WAVE}, 1"); e("v_add_u32 v1, s6, v1")
    e(f"v_mul_u32_u24 v2, {OWROW}, v1"); e("v_and_b32 v3, 31, v0"); e("v_lshl_add_u32 v2, v3, 4, v2")
    e("v_lshlrev_b32 v11, 3, v1")
    lds_spin(g, L_CNT + 8, 4)
    for w in range(4): e(f"ds_read_b64 v[{24+2*w}:{25+2*w}], v11 offset:{L_ML + 128*w}")
    for w in range(4): e(f"ds_read_b128 v[{32+4*w}:{35+4*w}], v2 offset:{L_OW + 8*OWROW*w}")
    e("s_waitcnt lgkmcnt(4)")
    e("v_max3_f32 v16, v24, v26, v28"); e("v_max_f32 v16, v16, v30")
    for w in range(4): e(f"v_sub_f32 v{24+2*w}, v{24+2*w}, v16")
    for w in range(4): e(f"v_exp_f32 v{24+2*w}, v{24+2*w}")
    g.nop(1)
    e("v_mul_f32 v17, v24, v25"); e("v_fmac_f32 v17, v26, v27"); e("v_fmac_f32 v17, v28, v29"); e("v_fmac_f32 v17, v30, v31")
    e("v_rcp_f32 v18, v17"); e("v_log_f32 v17, v17")
    e("s_waitcnt lgkmcnt(0)")
    for r in range(4): e(f"v_mul_f32 v{32+r}, v24, v{32+r}")
    for w in range(1, 4):
        for r in range(4): e(f"v_fmac_f32 v{32+r}, v{24+2*w}, v{32+4*w+r}")
    for r in range(4): e(f"v_mul_f32 v{32+r}, v18, v{32+r}")
    e("v_cvt_pk_bf16_f32 v20, v32, v33"); e("v_cvt_pk_bf16_f32 v21, v34, v35")
    e("v_add_f32 v22, v16, v17"); e(f"v_mov_b32 v23, s{S_T[0]}")
    e("v_lshrrev_b32 v1, 4, v0"); e("v_lshlrev_b32 v1, 13, v1"); e("v_and_b32 v2, 15, v0"); e("v_lshl_add_u32 v1, v2, 4, v1")
    e("s_lshr_b32 s6, s5, 5"); e("s_lshl_b32 s6, s6, 17"); e(f"s_lshl_b32 s7, s{S_WAVE}, 15"); e("s_add_u32 s6, s6, s7")
    e("s_and_b32 s7, s5, 31"); e("s_lshl_b32 s7, s7, 8"); e("s_add_u32 s6, s6, s7"); e(f"s_add_u32 s6, s6, {WS_OP}")
    e(f"buffer_store_dwordx4 v[20:23], v1, {WS}, s6 offen sc1")
    g.stamp(7)
    e("s_lshr_b32 s8, s5, 1"); e("s_lshl_b32 s8, s8, 13"); e(f"s_lshl_b32 s7, s{S_WAVE}, 6"); e("s_add_u32 s8, s8, s7"); e(f"s_add_u32 s8, s8, {WS_OP}")
    e("s_add_u32 s9, s8, 4096")
    e("v_lshrrev_b32 v1, 2, v0"); e("v_lshlrev_b32 v1, 8, v1"); e("v_and_b32 v2, 3, v0"); e("v_lshl_add_u32 v1, v2, 4, v1")
    lp = g.newlab("Lo")
    e(f"s_mov_b32 s7, {SPIN}")
    g.label(lp)
    e(f"buffer_load_dwordx4 v[24:27], v1, {WS}, s8 offen sc1")
    e(f"buffer_load_dwordx4 v[28:31], v1, {WS}, s9 offen sc1")
    e("s_sub_u32 s7, s7, 1"); e("s_cbranch_scc1 L_fail")
    e("s_waitcnt vmcnt(0)")
    e(f"v_xor_b32 v9, s{S_T[0]}, v27"); e(f"v_xor_b32 v10, s{S_T[0]}, v31"); e("v_or_b32 v9, v9, v10")
    e("v_cmp_ne_u32 vcc, 0, v9"); e(f"s_cbranch_vccnz {lp}")
    if diag: e("s_mov_b32 s91, s7")
    g.stamp(8)
    e("v_max_f32 v16, v26, v30")
    for ror in (4, 8):
        g.nop(2); e(f"v_max_f32_dpp v16, v16, v16 row_ror:{ror} row_mask:0xf bank_mask:0xf")
    xreduce(g, "v_max_f32", [16], [9])
    e("v_sub_f32 v26, v26, v16"); e("v_sub_f32 v30, v30, v16")
    e("v_exp_f32 v26, v26"); e("v_exp_f32 v30, v30")
    e("v_lshlrev_b32 v32, 16, v24"); e("v_and_b32 v33, 0xffff0000, v24"); e("v_lshlrev_b32 v34, 16, v25"); e("v_and_b32 v35, 0xffff0000, v25")
    e("v_lshlrev_b32 v40, 16, v28"); e("v_and_b32 v41, 0xffff0000, v28"); e("v_lshlrev_b32 v42, 16, v29"); e("v_and_b32 v43, 0xffff0000, v29")
    for r in range(4): e(f"v_mul_f32 v{32+r}, v26, v{32+r}")
    for r in range(4): e(f"v_fmac_f32 v{32+r}, v30, v{40+r}")
    e("v_add_f32 v36, v26, v30")
    for ror in (4, 8):
        if ror == 4: g.nop(1)
        for r in (32, 33, 34, 35, 36): e(f"v_add_f32_dpp v{r}, v{r}, v{r} row_ror:{ror} row_mask:0xf bank_mask:0xf")
    xreduce(g, "v_add_f32", [32, 33, 34, 35, 36], [40, 41, 42, 43, 44])
    e("v_rcp_f32 v36, v36"); g.nop(1)
    for r in range(4): e(f"v_mul_f32 v{32+r}, v36, v{32+r}")
    for r in range(4): e(f"v_cvt_pk_bf16_f32 v{32+r}, v{32+r}, v{32+r}")
    e(f"s_lshl_b32 s6, s{S_WAVE}, 6"); e("v_lshl_add_u32 v1, v0, 4, s6")
    e("s_mov_b64 exec, 15")
    e(f"ds_write_b128 v1, v[32:35] offset:{L_OO}")
    lds_arrive(g, L_CNT + 12)
    g.stamp(9)
    e("s_branch L_fin")

    g.label("L_BX")
    e("s_sub_u32 s6, s2, 128"); e("s_and_b32 s5, s6, 7"); e("s_mul_i32 s5, s5, 14"); e("s_lshr_b32 s6, s6, 3"); e("s_add_u32 s5, s5, s6")
    e("s_and_b32 s6, s5, 1"); e("s_cmp_eq_u32 s6, 0")
    e("s_cselect_b32 s40, s28, s30"); e("s_cselect_b32 s41, s29, s31"); e("s_mov_b32 s42, 7340032"); e("s_mov_b32 s43, 0x20000")
    e("v_lshrrev_b32 v2, 3, v0"); e(f"s_mov_b32 s6, {32*7168}"); e("v_mul_lo_u32 v1, v2, s6"); e("v_and_b32 v3, 7, v0"); e("v_lshl_add_u32 v1, v3, 4, v1")
    e(f"s_mul_i32 s8, s{S_WAVE}, {256*7168}"); e("s_lshr_b32 s7, s5, 1"); e("s_lshl_b32 s7, s7, 7"); e("s_add_u32 s8, s8, s7")
    def issue_B(k):
        r = V_W + 4 * (k & 15)
        e(f"buffer_load_dwordx4 v[{r}:{r+3}], v1, s[40:43], s8 offen nt")
        if k < 31: e("s_add_u32 s8, s8, 7168")
    for k in range(WB1): issue_B(k)
    e(f"s_lshl_b32 s9, s{S_WAVE}, 10"); e("v_lshl_add_u32 v2, v2, 7, s9")
    layernorm(g, 120, WB1)
    e("s_waitcnt lgkmcnt(0)")
    wait_tag(g)
    for i in range(8):
        e(f"ds_read_b128 v[{V_XX+4*i}:{V_XX+4*i+3}], v2 offset:{L_XN + 16*i}")
    e("s_waitcnt lgkmcnt(0)")
    g.stamp(2)
    gemv_step(g, 0, V_XX, V_W)
    nis = WB1
    for i in range(32):
        e(f"s_waitcnt vmcnt({nis - i - 1})")
        W = WB1 if i < 12 else WB2
        if not (nis < 32 and nis < i + 1 + W): g.nop(1)
        while nis < 32 and nis < i + 1 + W:
            issue_B(nis); nis += 1
            if nis == 32: e("s_barrier")
        if i == 10: e("s_barrier")
        gemv_mfma(g, i, V_W + 4 * (i & 15), i == 0)
        if i < 31: gemv_step(g, i + 1, V_XX + i + 1, None)
    g.stamp(3)
    skip = col_reduce(g)
    e("v_cvt_pk_bf16_f32 v9, v20, v21"); e("v_cvt_pk_bf16_f32 v10, v22, v23")
    e("v_lshlrev_b32 v24, 16, v9"); e("v_and_b32 v25, 0xffff0000, v9"); e("v_lshlrev_b32 v26, 16, v10"); e("v_and_b32 v27, 0xffff0000, v10")
    for i in range(4): e(f"v_bfi_b32 v{20+i}, v{V_FF}, s{S_T[i]}, v{24+i}")
    e("s_lshl_b32 s6, s5, 8"); e(f"s_add_u32 s6, s6, {WS_GU}")
    e("s_mov_b64 exec, 0xffff")
    e(f"buffer_store_dwordx4 v[20:23], v1, {WS}, s6 offen sc1")
    e("s_mov_b64 exec, -1")
    g.stamp(4)
    e("s_xor_b32 s8, s6, 256")
    lp = g.newlab("Lh")
    e(f"s_mov_b32 s7, {SPIN}")
    g.label(lp)
    e(f"buffer_load_dwordx4 v[28:31], v1, {WS}, s8 offen sc1")
    e("s_sub_u32 s7, s7, 1"); e("s_cbranch_scc1 L_fail")
    e("s_waitcnt vmcnt(0)")
    tagcheck(g, [28], 11)
    e("v_cmp_ne_u32 vcc, 0, v11"); e(f"s_cbranch_vccnz {lp}")
    if diag: e("s_mov_b32 s90, s7")
    g.stamp(5)
    for i in range(4): e(f"v_and_b32 v{28+i}, 0xffff0000, v{28+i}")
    e("s_and_b32 s6, s5, 1"); e("s_cmp_eq_u32 s6, 0"); e("s_cselect_b64 vcc, -1, 0")
    for i in range(4):
        e(f"v_cndmask_b32 v{32+i}, v{28+i}, v{24+i}, vcc")
        e(f"v_cndmask_b32 v{36+i}, v{24+i}, v{28+i}, vcc")
    e("s_mov_b32 s7, 0xbfb8aa3b")
    for i in range(4): e(f"v_mul_f32 v{32+i}, s7, v{32+i}")
    for i in range(4): e(f"v_exp_f32 v{32+i}, v{32+i}")
    for i in range(4): e(f"v_add_f32 v{32+i}, 1.0, v{32+i}")
    for i in range(4): e(f"v_rcp_f32 v{32+i}, v{32+i}")
    g.nop(1)
    e("v_cvt_pk_bf16_f32 v9, v32, v33"); e("v_cvt_pk_bf16_f32 v10, v34, v35")
    e("v_lshlrev_b32 v32, 16, v9"); e("v_and_b32 v33, 0xffff0000, v9"); e("v_lshlrev_b32 v34, 16, v10"); e("v_and_b32 v35, 0xffff0000, v10")
    for i in range(4): e(f"v_mul_f32 v{32+i}, v{32+i}, v{36+i}")
    for i in range(4): e(f"v_cvt_pk_bf16_f32 v{32+i}, v{32+i}, v{32+i}")
    e("s_mov_b64 exec, 0xffff")
    e(f"ds_write_b128 v1, v[32:35] offset:{L_OO}")
    e("s_mov_b64 exec, 1")
    e("v_mov_b32 v9, 0"); e("v_mov_b32 v10, 4"); e(f"ds_write_b32 v9, v10 offset:{L_CNT + 12}")
    e("s_mov_b64 exec, -1")
    g.stamp(9)
    g.label(skip)
    e("s_branch L_fin")

    g.label("L_Y")
    e("v_mov_b32 v9, 0"); e("v_mov_b32 v12, 0"); e("v_mov_b32 v13, 0"); e("v_mov_b32 v14, 0"); e("v_mov_b32 v15, 0")
    e(f"ds_write_b128 v9, v[12:15] offset:{L_CNT}")
    e("s_cmp_ge_u32 s2, 128"); e("s_cbranch_scc1 L_YB")
    e("s_and_b32 s5, s2, 7"); e("s_lshl_b32 s5, s5, 4"); e("s_lshr_b32 s6, s2, 3"); e("s_add_u32 s5, s5, s6")
    g.srd(40, 24, 8388608)
    e("s_lshr_b32 s9, s5, 1")
    e("s_branch L_YC")
    g.label("L_YB")
    e("s_sub_u32 s6, s2, 128"); e("s_and_b32 s5, s6, 7"); e("s_mul_i32 s5, s5, 14"); e("s_lshr_b32 s6, s6, 3"); e("s_add_u32 s5, s5, s6")
    g.srd(40, 32, 7340032)
    e("s_lshr_b32 s9, s5, 1"); e("s_add_u32 s9, s9, 64")
    g.label("L_YC")
    e("v_lshrrev_b32 v2, 4, v0"); e("v_lshlrev_b32 v1, 15, v2"); e("v_and_b32 v3, 15, v0"); e("v_lshl_add_u32 v1, v3, 4, v1")
    e("s_lshr_b32 s8, s5, 1"); e("s_lshl_b32 s8, s8, 17"); e("s_and_b32 s6, s5, 1"); e("s_lshl_b32 s6, s6, 2")
    e(f"s_add_u32 s6, s6, s{S_WAVE}"); e("s_sub_u32 s6, s6, 4")
    e("s_lshl_b32 s7, s6, 8"); e("s_add_u32 s8, s8, s7")
    e(f"s_mul_i32 s59, s6, {2*120*256}"); e("s_lshl_b32 s9, s9, 8"); e("s_add_u32 s59, s59, s9"); e(f"s_add_u32 s59, s59, {WS_SP}")
    e("v_bfe_u32 v9, v0, 3, 1"); e(f"v_mul_u32_u24 v9, {120*256}, v9"); e("v_and_b32 v10, 7, v0"); e("v_lshl_add_u32 v9, v10, 5, v9")
    e("v_lshl_add_u32 v121, v2, 4, v9")
    e("v_lshlrev_b32 v120, 6, v2")
    e("s_waitcnt lgkmcnt(0) vmcnt(0)")
    wait_tag(g)
    e("s_barrier"); e("s_barrier")
    g.stamp(2)
    def yloads(W):
        for k in range(16):
            if k >= W: e(f"s_waitcnt vmcnt({W-1})")
            e(f"buffer_load_dwordx4 v[{V_W+4*k}:{V_W+4*k+3}], v1, s[40:43], s8 offen nt")
            if k < 15: e("s_add_u32 s8, s8, 2048")
    if WYA != WYB:
        e("s_cmp_ge_u32 s2, 128"); e("s_cbranch_scc1 L_YL2")
        yloads(WYA); e("s_branch L_YL3")
        g.label("L_YL2"); yloads(WYB); g.label("L_YL3")
    else:
        yloads(WYA)
    g.stamp(3)
    lds_spin(g, L_CNT + 12, 4)
    g.stamp(4)
    for i in range(4):
        e(f"ds_read_b128 v[{V_XX+4*i}:{V_XX+4*i+3}], v120 offset:{L_OO + 16*i}")
    e("s_waitcnt lgkmcnt(0)")
    gemv_step(g, 0, V_XX, None)
    for i in range(16):
        e(f"s_waitcnt vmcnt({15-i})")
        if i == 0: g.nop(1)
        gemv_mfma(g, i, V_W + 4 * i, i == 0)
        if i < 15: gemv_step(g, i + 1, V_XX + i + 1, None); g.nop(1)
    g.stamp(5)
    g.nop(8)
    tagput(g, V_ACC)
    e("s_mov_b32 exec_hi, 0")
    e(f"buffer_store_dwordx4 v[{V_ACC}:{V_ACC+3}], v121, {WS}, s59 offen sc1")
    e("s_mov_b64 exec, -1")
    g.stamp(9)
    e("s_branch L_fin")

    g.label("L_C")
    e("s_sub_u32 s5, s2, 240")
    e(f"s_lshl_b32 s6, s{S_WAVE}, 4"); e(f"s_mul_i32 s7, s{S_WAVE}, 14"); e("s_add_u32 s7, s7, 8")
    e(f"s_cmp_lt_u32 s{S_WAVE}, 4"); e("s_cselect_b32 s6, s6, s7")
    e("s_cselect_b32 s57, -1, 0")
    e("s_lshl_b32 s6, s6, 8"); e(f"s_mul_i32 s8, s5, {120*256}"); e("s_add_u32 s8, s8, s6"); e(f"s_add_u32 s8, s8, {WS_SP}")
    e("v_lshlrev_b32 v1, 4, v0")
    g.srd(48, 16, 2048); g.srd(44, 34, 2048)
    e("s_lshl_b32 s9, s5, 7"); e("v_lshlrev_b32 v2, 1, v0")
    e("buffer_load_ushort v3, v2, s[48:51], s9 offen")
    e("s_waitcnt vmcnt(0)")
    wait_tag(g)
    e("s_barrier")
    e(f"s_cmp_lg_u32 s{S_WAVE}, 1"); e("s_cbranch_scc1 L_C1")
    e("s_mov_b32 s6, 1"); e("s_atomic_add s6, s[36:37], 0")
    e("s_cmp_lg_u32 s5, 0"); e("s_cbranch_scc1 L_C1")
    lp = g.newlab("Le")
    e(f"s_mov_b32 s7, {SPIN}")
    g.label(lp)
    e("s_load_dword s6, s[36:37], 0 glc")
    e("s_sub_u32 s7, s7, 1"); e("s_cbranch_scc1 L_fail")
    e("s_waitcnt lgkmcnt(0)")
    e("s_cmp_lt_u32 s6, 16"); e(f"s_cbranch_scc1 {lp}")
    g.label("L_C1")
    for r in range(4): e(f"v_mov_b32 v{36+r}, 0")
    lp = g.newlab("Lf")
    e(f"s_mov_b32 s7, {SPIN}")
    g.label(lp)
    for i in range(3):
        e(f"buffer_load_dwordx4 v[{24+4*i}:{27+4*i}], v1, {WS}, s8 offen offset:{1024*i} sc1")
    e("s_mov_b32 exec_hi, s57")
    e(f"buffer_load_dwordx4 v[36:39], v1, {WS}, s8 offen offset:3072 sc1")
    e("s_sub_u32 s7, s7, 1"); e("s_cbranch_scc1 L_fail")
    e("s_waitcnt vmcnt(0)")
    tagcheck(g, [36], 11)
    e("v_cmp_ne_u32 s[60:61], 0, v11")
    e("s_mov_b32 exec_hi, -1")
    tagcheck(g, [24, 28, 32], 11)
    e("v_cmp_ne_u32 vcc, 0, v11"); e("s_or_b64 vcc, vcc, s[60:61]"); e(f"s_cbranch_vccnz {lp}")
    if diag: e("s_mov_b32 s90, s7")
    g.stamp(5)
    for r in range(4): e(f"v_add_f32 v{24+r}, v{24+r}, v{28+r}")
    for r in range(4): e(f"v_add_f32 v{32+r}, v{32+r}, v{36+r}")
    for r in range(4): e(f"v_add_f32 v{24+r}, v{24+r}, v{32+r}")
    xreduce(g, "v_add_f32", [24, 25, 26, 27], [28, 29, 30, 31])
    e(f"s_lshl_b32 s6, s{S_WAVE}, 8"); e("v_add_u32 v1, s6, v1")
    e("s_mov_b64 exec, 0xffff")
    e(f"ds_write_b128 v1, v[24:27] offset:{L_RED}")
    e("s_mov_b64 exec, -1")
    e("s_waitcnt lgkmcnt(0)")
    e("s_barrier")
    e(f"s_cmp_eq_u32 s{S_WAVE}, 0"); e("s_cbranch_scc1 L_C2")
    e(f"s_cmp_lg_u32 s{S_WAVE}, 1"); e("s_cbranch_scc1 L_fin")
    e("s_cmp_lg_u32 s5, 0"); e("s_cbranch_scc1 L_fin")
    e("s_mov_b64 exec, 1")
    e("v_mov_b32 v9, 0"); e(f"v_mov_b32 v10, s{S_T[0]}")
    e(f"buffer_store_dword v10, v9, {WS}, 0 offen offset:{WS_E} sc1")
    e("s_mov_b64 exec, -1")
    e("s_branch L_fin")
    g.label("L_C2")
    e("v_lshlrev_b32 v1, 2, v0")
    for p in range(8): e(f"ds_read_b32 v{24+p}, v1 offset:{L_RED + 256*p}")
    e("s_waitcnt lgkmcnt(0)")
    e("v_add_f32 v24, v24, v25"); e("v_add_f32 v26, v26, v27"); e("v_add_f32 v28, v28, v29"); e("v_add_f32 v30, v30, v31")
    e("v_add_f32 v24, v24, v26"); e("v_add_f32 v28, v28, v30")
    e("v_cvt_pk_bf16_f32 v9, v24, v28")
    e("v_lshlrev_b32 v24, 16, v9"); e("v_and_b32 v28, 0xffff0000, v9")
    e("v_mul_f32 v10, 0xbfb8aa3b, v28"); e("v_exp_f32 v10, v10"); g.nop(1); e("v_add_f32 v10, 1.0, v10"); e("v_rcp_f32 v10, v10"); g.nop(1)
    e("v_mul_f32 v10, v28, v10")
    e("v_cvt_pk_bf16_f32 v10, v10, v10"); e("v_lshlrev_b32 v10, 16, v10")
    e("v_mul_f32 v10, v24, v10")
    e("v_cvt_pk_bf16_f32 v10, v10, v10"); e("v_lshlrev_b32 v10, 16, v10")
    e("v_lshlrev_b32 v3, 16, v3"); e("v_add_f32 v10, v3, v10")
    e("v_cvt_pk_bf16_f32 v10, v10, v10")
    e("buffer_store_short v10, v2, s[44:47], s9 offen")
    g.stamp(9)
    g.label("L_fin")
    if diag:
        e("s_waitcnt vmcnt(0)")
        g.stamp(10)
        e("s_getreg_b32 s92, hwreg(HW_REG_XCC_ID)")
        e("s_waitcnt lgkmcnt(0)")
        e("s_lshl_b32 s6, s2, 3"); e(f"s_add_u32 s6, s6, s{S_WAVE}"); e("s_lshl_b32 s6, s6, 6"); e(f"s_add_u32 s6, s6, {WS_DIAG}")
        e("s_mov_b64 exec, 1"); e("v_mov_b32 v1, 0")
        for i in range(11):
            e(f"v_mov_b32 v2, s{64+2*i}"); e(f"buffer_store_dword v2, v1, {WS}, s6 offen offset:{4*i}")
        for i, sr in enumerate((90, 91, 92)):
            e(f"v_mov_b32 v2, s{sr}"); e(f"buffer_store_dword v2, v1, {WS}, s6 offen offset:{44+4*i}")
    g.label("L_end")
    e("s_endpgm")
    g.label("L_fail")
    e("s_endpgm")
    g.L += ['.section .rodata,"a"', ".p2align 6", f".amdhsa_kernel {NAME}_kernel",
            "  .amdhsa_next_free_vgpr 128", "  .amdhsa_next_free_sgpr 96", "  .amdhsa_accum_offset 128",
            "  .amdhsa_group_segment_fixed_size 0", "  .amdhsa_kernarg_size 96", "  .amdhsa_user_sgpr_count 2",
            "  .amdhsa_user_sgpr_kernarg_segment_ptr 1", "  .amdhsa_system_sgpr_workgroup_id_x 1",
            ".end_amdhsa_kernel"]
    return "\n".join(x for x in g.L if x is not None) + "\n"

if __name__ == "__main__":
    import argparse
    ap = argparse.ArgumentParser()
    ap.add_argument("out"); ap.add_argument("--diag", action="store_true")
    ap.add_argument("--w", default="8,8,8,6,8")
    a = ap.parse_args()
    open(a.out, "w").write(gen(a.diag, *map(int, a.w.split(","))))
```

```python
import sys
NAME = "recurrent_scan__sliding_block_cached__glu_gated_glu__decode"

HEADER = open("cdna_kernels/" + NAME + ".s.ref").read().split("; @launch")[0]

WS_E  = 0x0
WS_QP = 0x1000
WS_GU = 0x9000
WS_OP = 0x10000
WS_SP = 0x90000
WS_USED = 0x108000
WS_DIAG = 0x1000000
L_CNT = 0
L_ML  = 64
L_OO  = 1024
L_RED = 2048
L_Q   = 4096
L_XN  = 8192
L_OW  = 12288
L_V   = 32768
LDS_BYTES = 65536
OWROW = 528

SPIN = 200000

class G:
    def __init__(s, diag, WA, WB1, WB2, WYA, WYB):
        s.L = []; s.diag = diag; s.lab = 0
        s.WA, s.WB1, s.WB2, s.WYA, s.WYB = WA, WB1, WB2, WYA, WYB
    def e(s, t): s.L.append("  " + t)
    def label(s, n): s.L.append(n + ":")
    def newlab(s, p="L"):
        s.lab += 1; return f"{p}_{s.lab}"
    def nop(s, n):
        while n > 0:
            k = min(n, 16); s.e(f"s_nop {k-1}"); n -= k
    def stamp(s, i):
        if s.diag: s.e(f"s_memrealtime s[{64+2*i}:{65+2*i}]")
    def srd(s, d, lo, size):
        s.e(f"s_mov_b32 s{d}, s{lo}"); s.e(f"s_mov_b32 s{d+1}, s{lo+1}")
        s.e(f"s_mov_b32 s{d+2}, {size:#x}"); s.e(f"s_mov_b32 s{d+3}, 0x20000")

S_WAVE = 4; S_A = 5
S_T = [10, 11, 12, 13]
S_SELA = 14; S_SELB = 15
WS = "s[52:55]"
V_LANE = 0
V_M = 4
V_FF = 8
V_TMP = 12
V_ACC = 20
V_XX = 24
V_W = 56

def tagcheck(g, regs_list, acc):
    for k, r in enumerate(regs_list):
        g.e(f"v_perm_b32 v9, v{r+1}, v{r}, s{S_SELA}")
        g.e(f"v_perm_b32 v10, v{r+3}, v{r+2}, s{S_SELB}")
        if k == 0:
            g.e(f"v_or_b32 v{acc}, v9, v10")
            g.e(f"v_xor_b32 v{acc}, s{S_T[0]}, v{acc}")
        else:
            g.e(f"v_or_b32 v9, v9, v10")
            g.e(f"v_xor_b32 v9, s{S_T[0]}, v9")
            g.e(f"v_or_b32 v{acc}, v{acc}, v9")

def tagput(g, r):
    for i in range(4):
        g.e(f"v_bfi_b32 v{r+i}, v{V_FF}, s{S_T[i]}, v{r+i}")

def wave_sum(g, v, sdst):
    for ror in (8, 4, 2, 1):
        g.nop(2); g.e(f"v_add_f32_dpp v{v}, v{v}, v{v} row_ror:{ror} row_mask:0xf bank_mask:0xf")
    g.nop(2); g.e(f"v_add_f32_dpp v{v}, v{v}, v{v} row_bcast:15 row_mask:0xa bank_mask:0xf")
    g.nop(2); g.e(f"v_add_f32_dpp v{v}, v{v}, v{v} row_bcast:31 row_mask:0xc bank_mask:0xf")
    g.nop(1); g.e(f"v_readlane_b32 s{sdst}, v{v}, 63")

def xreduce(g, op, regs, tmps, steps=(16, 32)):
    for st in steps:
        for r, t in zip(regs, tmps): g.e(f"v_mov_b32 v{t}, v{r}")
        if len(regs) < 3: g.nop(3 - len(regs))
        for r, t in zip(regs, tmps): g.e(f"v_permlane{st}_swap_b32 v{t}, v{r}")
        g.nop(1)
        for r, t in zip(regs, tmps): g.e(f"{op} v{r}, v{t}, v{r}")

def layernorm(g, xr, nwait):
    U = V_XX
    g.e(f"s_waitcnt vmcnt({nwait})")
    for i in range(8):
        g.e(f"v_lshlrev_b32 v{U+2*i}, 16, v{xr+i}")
        g.e(f"v_and_b32 v{U+2*i+1}, 0xffff0000, v{xr+i}")
    g.e(f"v_add_f32 v9, v{U}, v{U+1}"); g.e(f"v_add_f32 v10, v{U+2}, v{U+3}")
    for i in range(4, 16, 2):
        g.e(f"v_add_f32 v9, v9, v{U+i}"); g.e(f"v_add_f32 v10, v10, v{U+i+1}")
    g.e("v_add_f32 v9, v9, v10")
    wave_sum(g, 9, 6)
    g.nop(2)
    g.e("v_mov_b32 v11, 0x3a800000")
    g.e("v_mul_f32 v3, s6, v11")
    g.e("v_mov_b32 v9, 0"); g.e("v_mov_b32 v10, 0")
    for i in range(0, 16, 2):
        g.e(f"v_sub_f32 v{U+16}, v{U+i}, v3"); g.e(f"v_sub_f32 v{U+17}, v{U+i+1}, v3")
        g.e(f"v_fmac_f32 v9, v{U+16}, v{U+16}"); g.e(f"v_fmac_f32 v10, v{U+17}, v{U+17}")
    g.e("v_add_f32 v9, v9, v10")
    wave_sum(g, 9, 6)
    g.nop(2)
    g.e("v_mul_f32 v9, s6, v11")
    g.e("v_cvt_pk_bf16_f32 v9, v9, v3")
    g.e("v_and_b32 v3, 0xffff0000, v9")
    g.e("v_lshlrev_b32 v9, 16, v9")
    g.e("v_add_f32 v9, 0x3727c5ac, v9")
    g.e("v_cvt_pk_bf16_f32 v9, v9, v9"); g.e("v_lshlrev_b32 v9, 16, v9")
    g.e("v_sqrt_f32 v9, v9"); g.nop(1)
    g.e("v_cvt_pk_bf16_f32 v9, v9, v9"); g.e("v_lshlrev_b32 v9, 16, v9")
    g.e("v_rcp_f32 v9, v9")
    for i in range(16):
        g.e(f"v_sub_f32 v{U+i}, v{U+i}, v3")
    for i in range(0, 16, 2):
        g.e(f"v_cvt_pk_bf16_f32 v10, v{U+i}, v{U+i+1}")
        g.e(f"v_lshlrev_b32 v{U+i}, 16, v10"); g.e(f"v_and_b32 v{U+i+1}, 0xffff0000, v10")
        g.e(f"v_mul_f32 v{U+i}, v{U+i}, v9"); g.e(f"v_mul_f32 v{U+i+1}, v{U+i+1}, v9")
        g.e(f"v_cvt_pk_bf16_f32 v{U+i}, v{U+i}, v{U+i}"); g.e(f"v_cvt_pk_bf16_f32 v{U+i+1}, v{U+i+1}, v{U+i+1}")
    g.e(f"v_lshlrev_b32 v10, 6, v{V_LANE}")
    for i in range(4):
        g.e(f"ds_write_b128 v10, v[{U+4*i}:{U+4*i+3}] offset:{L_XN + 16*i}")

def gemv_step(g, i, xx, w):
    t = V_TMP + 4 * (i & 1)
    for r in range(4): g.e(f"v_and_b32 v{t+r}, v{xx}, v{V_M+r}")
def gemv_mfma(g, i, w, first):
    t = V_TMP + 4 * (i & 1)
    c = "0" if first else f"v[{V_ACC}:{V_ACC+3}]"
    g.e(f"v_mfma_f32_16x16x32_bf16 v[{V_ACC}:{V_ACC+3}], v[{t}:{t+3}], v[{w}:{w+3}], {c}")

def lds_arrive(g, off, rtn=None):
    g.e("s_mov_b64 exec, 1")
    g.e("v_mov_b32 v9, 0"); g.e("v_mov_b32 v10, 1")
    if rtn is None:
        g.e(f"ds_add_u32 v9, v10 offset:{off}")
    else:
        g.e(f"ds_add_rtn_u32 v10, v9, v10 offset:{off}")
        g.e("s_waitcnt lgkmcnt(0)")
        g.e(f"v_readfirstlane_b32 s{rtn}, v10")
    g.e("s_mov_b64 exec, -1")

def lds_spin(g, off, target, sleep=0):
    lp = g.newlab("Lsp")
    g.e(f"s_mov_b32 s7, {SPIN}")
    g.e("v_mov_b32 v9, 0")
    g.label(lp)
    if sleep: g.e(f"s_sleep {sleep}")
    g.e(f"ds_read_b32 v10, v9 offset:{off}")
    g.e("s_sub_u32 s7, s7, 1"); g.e("s_cbranch_scc1 L_fail")
    g.e("s_waitcnt lgkmcnt(0)")
    g.e("v_readfirstlane_b32 s6, v10")
    g.e(f"s_cmp_lt_u32 s6, {target}"); g.e(f"s_cbranch_scc1 {lp}")

def col_reduce(g):
    skip = g.newlab("Lnl")
    g.e(f"v_and_b32 v1, 7, v{V_LANE}"); g.e("v_lshlrev_b32 v1, 5, v1")
    g.e(f"v_and_b32 v2, 16, v{V_LANE}"); g.e("v_add_u32 v1, v1, v2")
    g.e(f"v_and_b32 v2, 32, v{V_LANE}"); g.e("v_lshl_add_u32 v1, v2, 3, v1")
    g.e(f"s_lshl_b32 s6, s{S_WAVE}, 9"); g.e("v_add_u32 v1, s6, v1")
    g.e("s_mov_b32 exec_lo, 0x00ff00ff"); g.e("s_mov_b32 exec_hi, 0xff00ff00")
    g.e(f"ds_write_b128 v1, v[{V_ACC}:{V_ACC+3}] offset:{L_RED}")
    lds_arrive(g, L_CNT + 0, rtn=6)
    g.e("s_cmp_lg_u32 s6, 3"); g.e(f"s_cbranch_scc1 {skip}")
    g.e(f"v_and_b32 v1, 15, v{V_LANE}"); g.e("v_lshlrev_b32 v1, 4, v1")
    R = V_XX
    for p in range(8):
        g.e(f"ds_read_b128 v[{R+4*p}:{R+4*p+3}], v1 offset:{L_RED + 256*p}")
    for p in range(0, 8, 2):
        g.e(f"s_waitcnt lgkmcnt({6-p})")
        for r in range(4): g.e(f"v_add_f32 v{R+4*p+r}, v{R+4*p+r}, v{R+4*p+4+r}")
    for r in range(4): g.e(f"v_add_f32 v{R+r}, v{R+r}, v{R+8+r}")
    for r in range(4): g.e(f"v_add_f32 v{R+16+r}, v{R+16+r}, v{R+24+r}")
    for r in range(4): g.e(f"v_add_f32 v{V_ACC+r}, v{R+r}, v{R+16+r}")
    return skip

def wait_tag(g):
    g.e(f"v_readfirstlane_b32 s{S_T[0]}, v19")
    g.nop(1)
    g.e(f"s_add_u32 s{S_T[0]}, s{S_T[0]}, 0x9e3779b9")
    for i in range(1, 4): g.e(f"s_lshr_b32 s{S_T[i]}, s{S_T[0]}, {8*i}")

def gen(diag=False, WA=8, WB1=8, WB2=8, WYA=6, WYB=8, pad=None, NT=' nt', pf=0):
    g = G(diag, WA, WB1, WB2, WYA, WYB); e = g.e
    g.L.append(HEADER.rstrip("\n"))
    g.L.append(f"; @launch grid=(256,1,1) block=(512,1,1) lds={LDS_BYTES}")
    g.L.append('.amdgcn_target "amdgcn-amd-amdhsa--gfx950"')
    g.L += [".text", f".globl {NAME}_kernel", ".p2align 8", f".type {NAME}_kernel,@function", f"{NAME}_kernel:"]
    g.stamp(0)
    if pad: e("s_memrealtime s[94:95]")
    e("s_cmp_ge_u32 s2, 256"); e("s_cbranch_scc1 L_end")
    e("s_load_dwordx16 s[16:31], s[0:1], 0"); e("s_load_dwordx8 s[32:39], s[0:1], 64")
    e("v_lshrrev_b32 v1, 6, v0"); e("v_and_b32 v0, 63, v0")
    e(f"v_readfirstlane_b32 s{S_WAVE}, v1")
    e("v_and_b32 v1, 1, v0"); e("v_lshlrev_b32 v1, 4, v1"); e("v_mov_b32 v2, 0xffff"); e("v_lshlrev_b32 v2, v1, v2")
    e("v_bfe_u32 v1, v0, 1, 2")
    for r in range(4):
        e(f"v_cmp_eq_u32 vcc, {r}, v1"); g.nop(2); e(f"v_cndmask_b32 v{V_M+r}, 0, v2, vcc")
    e(f"v_mov_b32 v{V_FF}, 0xff")
    e(f"s_mov_b32 s{S_SELA}, 0x0c0c0400"); e(f"s_mov_b32 s{S_SELB}, 0x04000c0c")
    e("s_waitcnt lgkmcnt(0)")
    g.srd(52, 38, WS_DIAG + 0x100000 if diag else WS_USED)
    e(f"buffer_load_dword v19, off, {WS}, 0 offset:{WS_E} sc1")
    g.stamp(1)
    if pad == "min":
        e(f"s_cmp_lg_u32 s{S_WAVE}, 7"); e("s_cbranch_scc1 L_p0")
        e("s_not_b32 s6, s94"); e("s_atomic_umax s6, s[36:37], 128")
        g.label("L_p0")
    if pf:
        e(f"s_cmp_lg_u32 s{S_WAVE}, 5"); e("s_cbranch_scc1 L_p1")
        e("s_getpc_b64 s[6:7]"); e("s_and_b32 s6, s6, 0xffffff00")
        e("v_lshlrev_b32 v1, 6, v0")
        for i in range(3): e(f"global_load_dword v{20+i}, v1, s[6:7]"); e("v_add_u32 v1, 0x1000, v1")
        g.label("L_p1")
    e("s_cmp_ge_u32 s2, 240"); e("s_cbranch_scc1 L_C")
    e(f"s_cmp_ge_u32 s{S_WAVE}, 4"); e("s_cbranch_scc1 L_Y")
    e("s_setprio 3")
    g.srd(48, 16, 2048)
    e("v_lshlrev_b32 v1, 5, v0")
    e("buffer_load_dwordx4 v[120:123], v1, s[48:51], 0 offen")
    e("buffer_load_dwordx4 v[124:127], v1, s[48:51], 0 offen offset:16")
    e("s_cmp_ge_u32 s2, 128"); e("s_cbranch_scc1 L_BX")
    e("s_and_b32 s5, s2, 7"); e("s_lshl_b32 s5, s5, 4"); e("s_lshr_b32 s6, s2, 3"); e("s_add_u32 s5, s5, s6")
    g.srd(40, 22, 8388608)
    e("v_lshrrev_b32 v2, 3, v0"); e("v_lshlrev_b32 v1, 17, v2"); e("v_and_b32 v3, 7, v0"); e("v_lshl_add_u32 v1, v3, 4, v1")
    e("s_and_b32 s6, s5, 1"); e("s_lshl_b32 s6, s6, 2"); e(f"s_add_u32 s6, s6, s{S_WAVE}")
    e("s_lshl_b32 s8, s6, 20"); e("s_lshr_b32 s7, s5, 1"); e("s_lshl_b32 s7, s7, 7"); e("s_add_u32 s8, s8, s7")
    e("s_lshl_b32 s9, s6, 9")
    e("v_lshl_add_u32 v11, v2, 6, s9")
    issued = [0]
    def issue_A(k):
        if k < 16:
            e(f"buffer_load_dwordx4 v[{V_W+4*k}:{V_W+4*k+3}], v1, s[40:43], s8 offen{NT}")
            if k < 15: e("s_add_u32 s8, s8, 0x2000")
        elif k < 24:
            j = k - 16; u, s = j >> 2, j & 3
            e(f"buffer_load_dwordx4 v[{V_W+4*j}:{V_W+4*j+3}], v2, s[44:47], s56 offen offset:{64*s}{NT}")
            if j == 3: e("s_add_u32 s56, s56, 4096")
        else:
            j = k - 24
            e(f"s_mov_b32 m0, s58"); e("s_add_u32 s58, s58, 1024")
            e(f"buffer_load_dwordx4 v{126 + (j & 1)}, s[60:63], s57 offen{NT} lds")
            if j < 7: e("s_add_u32 s57, s57, 1024")
    for k in range(WA): issue_A(k)
    g.srd(44, 18, 67108864); g.srd(60, 20, 67108864)
    e("s_lshr_b32 s56, s5, 5"); e("s_lshl_b32 s56, s56, 24"); e("s_and_b32 s7, s5, 31"); e("s_lshl_b32 s7, s7, 15"); e("s_add_u32 s56, s56, s7")
    e(f"s_lshl_b32 s7, s{S_WAVE}, 13"); e("s_add_u32 s56, s56, s7"); e(f"s_add_u32 s56, s56, {61440*256}")
    e("s_mov_b32 s57, s56")
    e(f"s_add_u32 s58, s7, {L_V}")
    e("v_mov_b32 v2, v11")
    layernorm(g, 120, WA)
    e("s_waitcnt lgkmcnt(0)")
    wait_tag(g)
    for i in range(4):
        e(f"ds_read_b128 v[{V_XX+4*i}:{V_XX+4*i+3}], v2 offset:{L_XN + 16*i}")
    e("v_and_b32 v3, 15, v0"); e("v_lshrrev_b32 v9, 4, v0")
    e("v_lshlrev_b32 v10, 8, v3")
    e("s_waitcnt lgkmcnt(0)")
    e("v_lshl_add_u32 v2, v9, 4, v10")
    e("v_lshlrev_b32 v10, 1, v9"); e("v_xor_b32 v10, v10, v3")
    e("v_lshlrev_b32 v10, 4, v10"); e("v_lshl_add_u32 v126, v9, 8, v10")
    e("v_xor_b32 v127, 0x80, v126")
    g.stamp(2)
    gemv_step(g, 0, V_XX, V_W)
    for i in range(16):
        e(f"s_waitcnt vmcnt({WA-1})")
        issue_A(i + WA)
        if i == 10: e("s_barrier")
        gemv_mfma(g, i, V_W + 4 * i, i == 0)
        if i < 15: gemv_step(g, i + 1, V_XX + i + 1, None)
    g.stamp(3)
    e("v_mov_b32 v125, v2")
    skip = col_reduce(g)
    tagput(g, V_ACC)
    e("s_lshr_b32 s6, s5, 5"); e("s_lshl_b32 s6, s6, 13"); e("s_and_b32 s7, s5, 1"); e("s_lshl_b32 s7, s7, 12"); e("s_add_u32 s6, s6, s7")
    e("s_bfe_u32 s7, s5, 0x40001"); e("s_lshl_b32 s7, s7, 8"); e("s_add_u32 s6, s6, s7"); e(f"s_add_u32 s6, s6, {WS_QP}")
    e("s_mov_b64 exec, 0xffff")
    e(f"buffer_store_dwordx4 v[{V_ACC}:{V_ACC+3}], v1, {WS}, s6 offen sc1")
    e("s_mov_b64 exec, -1")
    g.label(skip)
    g.stamp(4)
    e("v_mov_b32 v2, v125")
    for k in range(16 + WA, 32):
        e(f"s_waitcnt vmcnt({WA-1})")
        issue_A(k)
    e("s_barrier")
    e("s_lshr_b32 s8, s5, 5"); e("s_lshl_b32 s8, s8, 13"); e(f"s_lshl_b32 s7, s{S_WAVE}, 10"); e("s_add_u32 s8, s8, s7"); e(f"s_add_u32 s8, s8, {WS_QP}")
    e("s_add_u32 s9, s8, 4096")
    e("v_lshlrev_b32 v1, 4, v0")
    lp = g.newlab("Lq")
    e(f"s_mov_b32 s7, {SPIN}")
    g.label(lp)
    e(f"buffer_load_dwordx4 v[24:27], v1, {WS}, s8 offen sc1")
    e(f"buffer_load_dwordx4 v[28:31], v1, {WS}, s9 offen sc1")
    e("s_sub_u32 s7, s7, 1"); e("s_cbranch_scc1 L_fail")
    e("s_waitcnt vmcnt(0)")
    tagcheck(g, [24, 28], 11)
    e("v_cmp_ne_u32 vcc, 0, v11"); e(f"s_cbranch_vccnz {lp}")
    if diag: e("s_mov_b32 s90, s7")
    g.stamp(5)
    for r in range(4): e(f"v_add_f32 v{24+r}, v{24+r}, v{28+r}")
    e("v_cvt_pk_bf16_f32 v24, v24, v25"); e("v_cvt_pk_bf16_f32 v25, v26, v27")
    e("v_lshrrev_b32 v1, 5, v0"); e(f"s_lshl_b32 s6, s{S_WAVE}, 1"); e("v_add_u32 v1, s6, v1"); e("v_mul_u32_u24 v1, 272, v1")
    e("v_and_b32 v2, 31, v0"); e("v_lshl_add_u32 v1, v2, 3, v1")
    e(f"ds_write_b64 v1, v[24:25] offset:{L_Q}")
    lds_arrive(g, L_CNT + 4)
    e("v_lshrrev_b32 v1, 2, v0")
    e("v_and_b32 v2, 7, v1"); e("v_lshlrev_b32 v2, 5, v2")
    e("v_and_b32 v3, 3, v0"); e("v_lshlrev_b32 v3, 3, v3")
    e("v_lshl_add_u32 v1, v1, 8, v3")
    e(f"s_lshl_b32 s6, s{S_WAVE}, 13"); e(f"s_add_u32 s6, s6, {L_V}"); e("v_add_u32 v1, s6, v1")
    VV = V_W + 32
    for t in range(8):
        e(f"v_xor_b32 v3, {32*t}, v2"); e("v_add_u32 v3, v3, v1")
        e(f"ds_read_b64_tr_b16 v[{VV+4*t}:{VV+4*t+1}], v3")
        e(f"ds_read_b64_tr_b16 v[{VV+4*t+2}:{VV+4*t+3}], v3 offset:4096")
    lds_spin(g, L_CNT + 4, 4)
    e("v_and_b32 v1, 7, v0"); e("v_mul_u32_u24 v1, 272, v1"); e("v_and_b32 v2, 48, v0"); e("v_add_u32 v1, v1, v2")
    for s in range(4):
        e(f"ds_read_b128 v[{24+4*s}:{27+4*s}], v1 offset:{L_Q + 64*s}")
    for s in range(4):
        e(f"s_waitcnt lgkmcnt({3-s})")
        for u in range(2):
            c = "0" if s == 0 else f"v[{40+4*u}:{43+4*u}]"
            e(f"v_mfma_f32_16x16x32_bf16 v[{40+4*u}:{43+4*u}], v[{V_W+16*u+4*s}:{V_W+16*u+4*s+3}], v[{24+4*s}:{27+4*s}], {c}")
    e("s_mov_b32 s6, 0x3db504f3")
    e("s_mov_b32 s7, 0x3fb8aa3b")
    e("v_mov_b32 v12, 0x3f803f80"); e("v_mov_b32 v13, v12"); e("v_mov_b32 v14, v12"); e("v_mov_b32 v15, v12")
    g.nop(3)
    for i in range(0, 8, 2):
        e(f"v_cvt_pk_bf16_f32 v9, v{40+i}, v{41+i}")
        e(f"v_lshlrev_b32 v{40+i}, 16, v9"); e(f"v_and_b32 v{41+i}, 0xffff0000, v9")
        e(f"v_mul_f32 v{40+i}, s6, v{40+i}"); e(f"v_mul_f32 v{41+i}, s6, v{41+i}")
        e(f"v_cvt_pk_bf16_f32 v9, v{40+i}, v{41+i}")
        e(f"v_lshlrev_b32 v{40+i}, 16, v9"); e(f"v_and_b32 v{41+i}, 0xffff0000, v9")
    e("v_max3_f32 v9, v40, v41, v42"); e("v_max3_f32 v10, v43, v44, v45"); e("v_max3_f32 v9, v9, v46, v47"); e("v_max_f32 v16, v9, v10")
    xreduce(g, "v_max_f32", [16], [9])
    e("v_mul_f32 v16, s7, v16")
    for i in range(8): e(f"v_fma_f32 v{40+i}, v{40+i}, s7, -v16")
    for i in range(8): e(f"v_exp_f32 v{40+i}, v{40+i}")
    g.nop(1)
    for i in range(4): e(f"v_cvt_pk_bf16_f32 v{48+i}, v{40+2*i}, v{41+2*i}")
    g.nop(2)
    e(f"v_mfma_f32_16x16x32_bf16 v[20:23], v[12:15], v[48:51], 0")
    O = V_W
    for t in range(8):
        e(f"v_mfma_f32_16x16x32_bf16 v[{O+4*t}:{O+4*t+3}], v[{VV+4*t}:{VV+4*t+3}], v[48:51], 0")
    e("v_and_b32 v1, 15, v0"); e(f"s_lshl_b32 s6, s{S_WAVE}, 3"); e("v_add_u32 v2, s6, v1"); e(f"v_mul_u32_u24 v2, {OWROW}, v2")
    e("v_and_b32 v3, 48, v0"); e("v_add_u32 v2, v2, v3")
    e(f"s_lshl_b32 s6, s{S_WAVE}, 7"); e("v_lshl_add_u32 v1, v1, 3, s6")
    e("v_mov_b32 v17, v20")
    e("s_mov_b32 exec_lo, 0x00ff00ff"); e("s_mov_b32 exec_hi, 0x00ff00ff")
    e(f"ds_write_b64 v1, v[16:17] offset:{L_ML}")
    for t in range(8):
        e(f"ds_write_b128 v2, v[{O+4*t}:{O+4*t+3}] offset:{L_OW + 64*t}")
    lds_arrive(g, L_CNT + 8)
    g.stamp(6)
    e("v_lshrrev_b32 v1, 5, v0"); e(f"s_lshl_b32 s6, s{S_WAVE}, 1"); e("v_add_u32 v1, s6, v1")
    e(f"v_mul_u32_u24 v2, {OWROW}, v1"); e("v_and_b32 v3, 31, v0"); e("v_lshl_add_u32 v2, v3, 4, v2")
    e("v_lshlrev_b32 v11, 3, v1")
    lds_spin(g, L_CNT + 8, 4)
    for w in range(4): e(f"ds_read_b64 v[{24+2*w}:{25+2*w}], v11 offset:{L_ML + 128*w}")
    for w in range(4): e(f"ds_read_b128 v[{32+4*w}:{35+4*w}], v2 offset:{L_OW + 8*OWROW*w}")
    e("s_waitcnt lgkmcnt(4)")
    e("v_max3_f32 v16, v24, v26, v28"); e("v_max_f32 v16, v16, v30")
    for w in range(4): e(f"v_sub_f32 v{24+2*w}, v{24+2*w}, v16")
    for w in range(4): e(f"v_exp_f32 v{24+2*w}, v{24+2*w}")
    g.nop(1)
    e("v_mul_f32 v17, v24, v25"); e("v_fmac_f32 v17, v26, v27"); e("v_fmac_f32 v17, v28, v29"); e("v_fmac_f32 v17, v30, v31")
    e("v_rcp_f32 v18, v17"); e("v_log_f32 v17, v17")
    e("s_waitcnt lgkmcnt(0)")
    for r in range(4): e(f"v_mul_f32 v{32+r}, v24, v{32+r}")
    for w in range(1, 4):
        for r in range(4): e(f"v_fmac_f32 v{32+r}, v{24+2*w}, v{32+4*w+r}")
    for r in range(4): e(f"v_mul_f32 v{32+r}, v18, v{32+r}")
    e("v_cvt_pk_bf16_f32 v20, v32, v33"); e("v_cvt_pk_bf16_f32 v21, v34, v35")
    e("v_add_f32 v22, v16, v17"); e(f"v_mov_b32 v23, s{S_T[0]}")
    e("v_lshrrev_b32 v1, 4, v0"); e("v_lshlrev_b32 v1, 13, v1"); e("v_and_b32 v2, 15, v0"); e("v_lshl_add_u32 v1, v2, 4, v1")
    e("s_lshr_b32 s6, s5, 5"); e("s_lshl_b32 s6, s6, 17"); e(f"s_lshl_b32 s7, s{S_WAVE}, 15"); e("s_add_u32 s6, s6, s7")
    e("s_and_b32 s7, s5, 31"); e("s_lshl_b32 s7, s7, 8"); e("s_add_u32 s6, s6, s7"); e(f"s_add_u32 s6, s6, {WS_OP}")
    e(f"buffer_store_dwordx4 v[20:23], v1, {WS}, s6 offen sc1")
    g.stamp(7)
    e("s_lshr_b32 s8, s5, 1"); e("s_lshl_b32 s8, s8, 13"); e(f"s_lshl_b32 s7, s{S_WAVE}, 6"); e("s_add_u32 s8, s8, s7"); e(f"s_add_u32 s8, s8, {WS_OP}")
    e("s_add_u32 s9, s8, 4096")
    e("v_lshrrev_b32 v1, 2, v0"); e("v_lshlrev_b32 v1, 8, v1"); e("v_and_b32 v2, 3, v0"); e("v_lshl_add_u32 v1, v2, 4, v1")
    lp = g.newlab("Lo")
    e(f"s_mov_b32 s7, {SPIN}")
    g.label(lp)
    e(f"buffer_load_dwordx4 v[24:27], v1, {WS}, s8 offen sc1")
    e(f"buffer_load_dwordx4 v[28:31], v1, {WS}, s9 offen sc1")
    e("s_sub_u32 s7, s7, 1"); e("s_cbranch_scc1 L_fail")
    e("s_waitcnt vmcnt(0)")
    e(f"v_xor_b32 v9, s{S_T[0]}, v27"); e(f"v_xor_b32 v10, s{S_T[0]}, v31"); e("v_or_b32 v9, v9, v10")
    e("v_cmp_ne_u32 vcc, 0, v9"); e(f"s_cbranch_vccnz {lp}")
    if diag: e("s_mov_b32 s91, s7")
    g.stamp(8)
    e("v_max_f32 v16, v26, v30")
    for ror in (4, 8):
        g.nop(2); e(f"v_max_f32_dpp v16, v16, v16 row_ror:{ror} row_mask:0xf bank_mask:0xf")
    xreduce(g, "v_max_f32", [16], [9])
    e("v_sub_f32 v26, v26, v16"); e("v_sub_f32 v30, v30, v16")
    e("v_exp_f32 v26, v26"); e("v_exp_f32 v30, v30")
    e("v_lshlrev_b32 v32, 16, v24"); e("v_and_b32 v33, 0xffff0000, v24"); e("v_lshlrev_b32 v34, 16, v25"); e("v_and_b32 v35, 0xffff0000, v25")
    e("v_lshlrev_b32 v40, 16, v28"); e("v_and_b32 v41, 0xffff0000, v28"); e("v_lshlrev_b32 v42, 16, v29"); e("v_and_b32 v43, 0xffff0000, v29")
    for r in range(4): e(f"v_mul_f32 v{32+r}, v26, v{32+r}")
    for r in range(4): e(f"v_fmac_f32 v{32+r}, v30, v{40+r}")
    e("v_add_f32 v36, v26, v30")
    for ror in (4, 8):
        if ror == 4: g.nop(1)
        for r in (32, 33, 34, 35, 36): e(f"v_add_f32_dpp v{r}, v{r}, v{r} row_ror:{ror} row_mask:0xf bank_mask:0xf")
    xreduce(g, "v_add_f32", [32, 33, 34, 35, 36], [40, 41, 42, 43, 44])
    e("v_rcp_f32 v36, v36"); g.nop(1)
    for r in range(4): e(f"v_mul_f32 v{32+r}, v36, v{32+r}")
    for r in range(4): e(f"v_cvt_pk_bf16_f32 v{32+r}, v{32+r}, v{32+r}")
    e(f"s_lshl_b32 s6, s{S_WAVE}, 6"); e("v_lshl_add_u32 v1, v0, 4, s6")
    e("s_mov_b64 exec, 15")
    e(f"ds_write_b128 v1, v[32:35] offset:{L_OO}")
    lds_arrive(g, L_CNT + 12)
    g.stamp(9)
    e("s_branch L_fin")

    g.label("L_BX")
    e("s_sub_u32 s6, s2, 128"); e("s_and_b32 s5, s6, 7"); e("s_mul_i32 s5, s5, 14"); e("s_lshr_b32 s6, s6, 3"); e("s_add_u32 s5, s5, s6")
    e("s_and_b32 s6, s5, 1"); e("s_cmp_eq_u32 s6, 0")
    e("s_cselect_b32 s40, s28, s30"); e("s_cselect_b32 s41, s29, s31"); e("s_mov_b32 s42, 7340032"); e("s_mov_b32 s43, 0x20000")
    e("v_lshrrev_b32 v2, 3, v0"); e(f"s_mov_b32 s6, {32*7168}"); e("v_mul_lo_u32 v1, v2, s6"); e("v_and_b32 v3, 7, v0"); e("v_lshl_add_u32 v1, v3, 4, v1")
    e(f"s_mul_i32 s8, s{S_WAVE}, {256*7168}"); e("s_lshr_b32 s7, s5, 1"); e("s_lshl_b32 s7, s7, 7"); e("s_add_u32 s8, s8, s7")
    def issue_B(k):
        r = V_W + 4 * (k & 15)
        e(f"buffer_load_dwordx4 v[{r}:{r+3}], v1, s[40:43], s8 offen{NT}")
        if k < 31: e("s_add_u32 s8, s8, 7168")
    for k in range(WB1): issue_B(k)
    e(f"s_lshl_b32 s9, s{S_WAVE}, 10"); e("v_lshl_add_u32 v2, v2, 7, s9")
    layernorm(g, 120, WB1)
    e("s_waitcnt lgkmcnt(0)")
    wait_tag(g)
    for i in range(8):
        e(f"ds_read_b128 v[{V_XX+4*i}:{V_XX+4*i+3}], v2 offset:{L_XN + 16*i}")
    e("s_waitcnt lgkmcnt(0)")
    g.stamp(2)
    gemv_step(g, 0, V_XX, V_W)
    nis = WB1
    for i in range(32):
        e(f"s_waitcnt vmcnt({nis - i - 1})")
        W = WB1 if i < 12 else WB2
        if not (nis < 32 and nis < i + 1 + W): g.nop(1)
        while nis < 32 and nis < i + 1 + W:
            issue_B(nis); nis += 1
            if nis == 32: e("s_barrier")
        if i == 10: e("s_barrier")
        gemv_mfma(g, i, V_W + 4 * (i & 15), i == 0)
        if i < 31: gemv_step(g, i + 1, V_XX + i + 1, None)
    g.stamp(3)
    skip = col_reduce(g)
    e("v_cvt_pk_bf16_f32 v9, v20, v21"); e("v_cvt_pk_bf16_f32 v10, v22, v23")
    e("v_lshlrev_b32 v24, 16, v9"); e("v_and_b32 v25, 0xffff0000, v9"); e("v_lshlrev_b32 v26, 16, v10"); e("v_and_b32 v27, 0xffff0000, v10")
    for i in range(4): e(f"v_bfi_b32 v{20+i}, v{V_FF}, s{S_T[i]}, v{24+i}")
    e("s_lshl_b32 s6, s5, 8"); e(f"s_add_u32 s6, s6, {WS_GU}")
    e("s_mov_b64 exec, 0xffff")
    e(f"buffer_store_dwordx4 v[20:23], v1, {WS}, s6 offen sc1")
    e("s_mov_b64 exec, -1")
    g.stamp(4)
    e("s_xor_b32 s8, s6, 256")
    lp = g.newlab("Lh")
    e(f"s_mov_b32 s7, {SPIN}")
    g.label(lp)
    e(f"buffer_load_dwordx4 v[28:31], v1, {WS}, s8 offen sc1")
    e("s_sub_u32 s7, s7, 1"); e("s_cbranch_scc1 L_fail")
    e("s_waitcnt vmcnt(0)")
    tagcheck(g, [28], 11)
    e("v_cmp_ne_u32 vcc, 0, v11"); e(f"s_cbranch_vccnz {lp}")
    if diag: e("s_mov_b32 s90, s7")
    g.stamp(5)
    for i in range(4): e(f"v_and_b32 v{28+i}, 0xffff0000, v{28+i}")
    e("s_and_b32 s6, s5, 1"); e("s_cmp_eq_u32 s6, 0"); e("s_cselect_b64 vcc, -1, 0")
    for i in range(4):
        e(f"v_cndmask_b32 v{32+i}, v{28+i}, v{24+i}, vcc")
        e(f"v_cndmask_b32 v{36+i}, v{24+i}, v{28+i}, vcc")
    e("s_mov_b32 s7, 0xbfb8aa3b")
    for i in range(4): e(f"v_mul_f32 v{32+i}, s7, v{32+i}")
    for i in range(4): e(f"v_exp_f32 v{32+i}, v{32+i}")
    for i in range(4): e(f"v_add_f32 v{32+i}, 1.0, v{32+i}")
    for i in range(4): e(f"v_rcp_f32 v{32+i}, v{32+i}")
    g.nop(1)
    e("v_cvt_pk_bf16_f32 v9, v32, v33"); e("v_cvt_pk_bf16_f32 v10, v34, v35")
    e("v_lshlrev_b32 v32, 16, v9"); e("v_and_b32 v33, 0xffff0000, v9"); e("v_lshlrev_b32 v34, 16, v10"); e("v_and_b32 v35, 0xffff0000, v10")
    for i in range(4): e(f"v_mul_f32 v{32+i}, v{32+i}, v{36+i}")
    for i in range(4): e(f"v_cvt_pk_bf16_f32 v{32+i}, v{32+i}, v{32+i}")
    e("s_mov_b64 exec, 0xffff")
    e(f"ds_write_b128 v1, v[32:35] offset:{L_OO}")
    e("s_mov_b64 exec, 1")
    e("v_mov_b32 v9, 0"); e("v_mov_b32 v10, 4"); e(f"ds_write_b32 v9, v10 offset:{L_CNT + 12}")
    e("s_mov_b64 exec, -1")
    g.stamp(9)
    g.label(skip)
    e("s_branch L_fin")

    g.label("L_Y")
    e("v_mov_b32 v9, 0"); e("v_mov_b32 v12, 0"); e("v_mov_b32 v13, 0"); e("v_mov_b32 v14, 0"); e("v_mov_b32 v15, 0")
    e(f"ds_write_b128 v9, v[12:15] offset:{L_CNT}")
    e("s_cmp_ge_u32 s2, 128"); e("s_cbranch_scc1 L_YB")
    e("s_and_b32 s5, s2, 7"); e("s_lshl_b32 s5, s5, 4"); e("s_lshr_b32 s6, s2, 3"); e("s_add_u32 s5, s5, s6")
    g.srd(40, 24, 8388608)
    e("s_lshr_b32 s9, s5, 1")
    e("s_branch L_YC")
    g.label("L_YB")
    e("s_sub_u32 s6, s2, 128"); e("s_and_b32 s5, s6, 7"); e("s_mul_i32 s5, s5, 14"); e("s_lshr_b32 s6, s6, 3"); e("s_add_u32 s5, s5, s6")
    g.srd(40, 32, 7340032)
    e("s_lshr_b32 s9, s5, 1"); e("s_add_u32 s9, s9, 64")
    g.label("L_YC")
    e("v_lshrrev_b32 v2, 4, v0"); e("v_lshlrev_b32 v1, 15, v2"); e("v_and_b32 v3, 15, v0"); e("v_lshl_add_u32 v1, v3, 4, v1")
    e("s_lshr_b32 s8, s5, 1"); e("s_lshl_b32 s8, s8, 17"); e("s_and_b32 s6, s5, 1"); e("s_lshl_b32 s6, s6, 2")
    e(f"s_add_u32 s6, s6, s{S_WAVE}"); e("s_sub_u32 s6, s6, 4")
    e("s_lshl_b32 s7, s6, 8"); e("s_add_u32 s8, s8, s7")
    e(f"s_mul_i32 s59, s6, {2*120*256}"); e("s_lshl_b32 s9, s9, 8"); e("s_add_u32 s59, s59, s9"); e(f"s_add_u32 s59, s59, {WS_SP}")
    e("v_bfe_u32 v9, v0, 3, 1"); e(f"v_mul_u32_u24 v9, {120*256}, v9"); e("v_and_b32 v10, 7, v0"); e("v_lshl_add_u32 v9, v10, 5, v9")
    e("v_lshl_add_u32 v121, v2, 4, v9")
    e("v_lshlrev_b32 v120, 6, v2")
    e("s_waitcnt lgkmcnt(0) vmcnt(0)")
    wait_tag(g)
    e("s_barrier"); e("s_barrier")
    g.stamp(2)
    def yloads(W):
        for k in range(16):
            if k >= W: e(f"s_waitcnt vmcnt({W-1})")
            e(f"buffer_load_dwordx4 v[{V_W+4*k}:{V_W+4*k+3}], v1, s[40:43], s8 offen{NT}")
            if k < 15: e("s_add_u32 s8, s8, 2048")
    if WYA != WYB:
        e("s_cmp_ge_u32 s2, 128"); e("s_cbranch_scc1 L_YL2")
        yloads(WYA); e("s_branch L_YL3")
        g.label("L_YL2"); yloads(WYB); g.label("L_YL3")
    else:
        yloads(WYA)
    g.stamp(3)
    lds_spin(g, L_CNT + 12, 4)
    g.stamp(4)
    for i in range(4):
        e(f"ds_read_b128 v[{V_XX+4*i}:{V_XX+4*i+3}], v120 offset:{L_OO + 16*i}")
    e("s_waitcnt lgkmcnt(0)")
    gemv_step(g, 0, V_XX, None)
    for i in range(16):
        e(f"s_waitcnt vmcnt({15-i})")
        if i == 0: g.nop(1)
        gemv_mfma(g, i, V_W + 4 * i, i == 0)
        if i < 15: gemv_step(g, i + 1, V_XX + i + 1, None); g.nop(1)
    g.stamp(5)
    g.nop(8)
    tagput(g, V_ACC)
    e("s_mov_b32 exec_hi, 0")
    e(f"buffer_store_dwordx4 v[{V_ACC}:{V_ACC+3}], v121, {WS}, s59 offen sc1")
    e("s_mov_b64 exec, -1")
    g.stamp(9)
    e("s_branch L_fin")

    g.label("L_C")
    e("s_sub_u32 s5, s2, 240")
    e(f"s_lshl_b32 s6, s{S_WAVE}, 4"); e(f"s_mul_i32 s7, s{S_WAVE}, 14"); e("s_add_u32 s7, s7, 8")
    e(f"s_cmp_lt_u32 s{S_WAVE}, 4"); e("s_cselect_b32 s6, s6, s7")
    e("s_cselect_b32 s57, -1, 0")
    e("s_lshl_b32 s6, s6, 8"); e(f"s_mul_i32 s8, s5, {120*256}"); e("s_add_u32 s8, s8, s6"); e(f"s_add_u32 s8, s8, {WS_SP}")
    e("v_lshlrev_b32 v1, 4, v0")
    g.srd(48, 16, 2048); g.srd(44, 34, 2048)
    e("s_lshl_b32 s9, s5, 7"); e("v_lshlrev_b32 v2, 1, v0")
    e("buffer_load_ushort v3, v2, s[48:51], s9 offen")
    e("s_waitcnt vmcnt(0)")
    wait_tag(g)
    e("s_barrier")
    e(f"s_cmp_lg_u32 s{S_WAVE}, 1"); e("s_cbranch_scc1 L_C1")
    e("s_mov_b32 s6, 1"); e("s_atomic_add s6, s[36:37], 0")
    e("s_cmp_lg_u32 s5, 0"); e("s_cbranch_scc1 L_C1")
    lp = g.newlab("Le")
    e(f"s_mov_b32 s7, {SPIN}")
    g.label(lp)
    e("s_load_dword s6, s[36:37], 0 glc")
    e("s_sub_u32 s7, s7, 1"); e("s_cbranch_scc1 L_fail")
    e("s_waitcnt lgkmcnt(0)")
    e("s_cmp_lt_u32 s6, 16"); e(f"s_cbranch_scc1 {lp}")
    g.label("L_C1")
    for r in range(4): e(f"v_mov_b32 v{36+r}, 0")
    lp = g.newlab("Lf")
    e(f"s_mov_b32 s7, {SPIN}")
    g.label(lp)
    for i in range(3):
        e(f"buffer_load_dwordx4 v[{24+4*i}:{27+4*i}], v1, {WS}, s8 offen offset:{1024*i} sc1")
    e("s_mov_b32 exec_hi, s57")
    e(f"buffer_load_dwordx4 v[36:39], v1, {WS}, s8 offen offset:3072 sc1")
    e("s_sub_u32 s7, s7, 1"); e("s_cbranch_scc1 L_fail")
    e("s_waitcnt vmcnt(0)")
    tagcheck(g, [36], 11)
    e("v_cmp_ne_u32 s[60:61], 0, v11")
    e("s_mov_b32 exec_hi, -1")
    tagcheck(g, [24, 28, 32], 11)
    e("v_cmp_ne_u32 vcc, 0, v11"); e("s_or_b64 vcc, vcc, s[60:61]"); e(f"s_cbranch_vccnz {lp}")
    if diag: e("s_mov_b32 s90, s7")
    g.stamp(5)
    for r in range(4): e(f"v_add_f32 v{24+r}, v{24+r}, v{28+r}")
    for r in range(4): e(f"v_add_f32 v{32+r}, v{32+r}, v{36+r}")
    for r in range(4): e(f"v_add_f32 v{24+r}, v{24+r}, v{32+r}")
    xreduce(g, "v_add_f32", [24, 25, 26, 27], [28, 29, 30, 31])
    e(f"s_lshl_b32 s6, s{S_WAVE}, 8"); e("v_add_u32 v1, s6, v1")
    e("s_mov_b64 exec, 0xffff")
    e(f"ds_write_b128 v1, v[24:27] offset:{L_RED}")
    e("s_mov_b64 exec, -1")
    e("s_waitcnt lgkmcnt(0)")
    e("s_barrier")
    e(f"s_cmp_eq_u32 s{S_WAVE}, 0"); e("s_cbranch_scc1 L_C2")
    e(f"s_cmp_lg_u32 s{S_WAVE}, 1"); e("s_cbranch_scc1 L_fin")
    e("s_cmp_lg_u32 s5, 0"); e("s_cbranch_scc1 L_fin")
    e("s_mov_b64 exec, 1")
    e("v_mov_b32 v9, 0"); e(f"v_mov_b32 v10, s{S_T[0]}")
    e(f"buffer_store_dword v10, v9, {WS}, 0 offen offset:{WS_E} sc1")
    e("s_mov_b64 exec, -1")
    e("s_branch L_fin")
    g.label("L_C2")
    e("v_lshlrev_b32 v1, 2, v0")
    for p in range(8): e(f"ds_read_b32 v{24+p}, v1 offset:{L_RED + 256*p}")
    e("s_waitcnt lgkmcnt(0)")
    e("v_add_f32 v24, v24, v25"); e("v_add_f32 v26, v26, v27"); e("v_add_f32 v28, v28, v29"); e("v_add_f32 v30, v30, v31")
    e("v_add_f32 v24, v24, v26"); e("v_add_f32 v28, v28, v30")
    e("v_cvt_pk_bf16_f32 v9, v24, v28")
    e("v_lshlrev_b32 v24, 16, v9"); e("v_and_b32 v28, 0xffff0000, v9")
    e("v_mul_f32 v10, 0xbfb8aa3b, v28"); e("v_exp_f32 v10, v10"); g.nop(1); e("v_add_f32 v10, 1.0, v10"); e("v_rcp_f32 v10, v10"); g.nop(1)
    e("v_mul_f32 v10, v28, v10")
    e("v_cvt_pk_bf16_f32 v10, v10, v10"); e("v_lshlrev_b32 v10, 16, v10")
    e("v_mul_f32 v10, v24, v10")
    e("v_cvt_pk_bf16_f32 v10, v10, v10"); e("v_lshlrev_b32 v10, 16, v10")
    e("v_lshlrev_b32 v3, 16, v3"); e("v_add_f32 v10, v3, v10")
    e("v_cvt_pk_bf16_f32 v10, v10, v10")
    e("buffer_store_short v10, v2, s[44:47], s9 offen")
    if pad:
        if pad == "min":
            g.label("L_p3")
            e("s_memrealtime s[92:93]"); e("s_waitcnt lgkmcnt(0)"); e("s_sub_u32 s92, s92, s94"); e("s_cmp_lt_u32 s92, 3000"); e("s_cbranch_scc1 L_p3")
            e("s_load_dword s94, s[36:37], 128 glc"); e("s_waitcnt lgkmcnt(0)"); e("s_not_b32 s94, s94")
        g.label("L_p2")
        e("s_memrealtime s[92:93]"); e("s_waitcnt lgkmcnt(0)"); e("s_sub_u32 s92, s92, s94"); e("s_cmp_lt_u32 s92, 5000"); e("s_cbranch_scc1 L_p2")
    g.stamp(9)
    g.label("L_fin")
    if diag:
        e("s_waitcnt vmcnt(0)")
        g.stamp(10)
        e("s_getreg_b32 s92, hwreg(HW_REG_XCC_ID)")
        e("s_waitcnt lgkmcnt(0)")
        e("s_lshl_b32 s6, s2, 3"); e(f"s_add_u32 s6, s6, s{S_WAVE}"); e("s_lshl_b32 s6, s6, 6"); e(f"s_add_u32 s6, s6, {WS_DIAG}")
        e("s_mov_b64 exec, 1"); e("v_mov_b32 v1, 0")
        for i in range(11):
            e(f"v_mov_b32 v2, s{64+2*i}"); e(f"buffer_store_dword v2, v1, {WS}, s6 offen offset:{4*i}")
        for i, sr in enumerate((90, 91, 92)):
            e(f"v_mov_b32 v2, s{sr}"); e(f"buffer_store_dword v2, v1, {WS}, s6 offen offset:{44+4*i}")
    g.label("L_end")
    e("s_endpgm")
    g.label("L_fail")
    e("s_endpgm")
    g.L += ['.section .rodata,"a"', ".p2align 6", f".amdhsa_kernel {NAME}_kernel",
            "  .amdhsa_next_free_vgpr 128", "  .amdhsa_next_free_sgpr 96", "  .amdhsa_accum_offset 128",
            "  .amdhsa_group_segment_fixed_size 0", "  .amdhsa_kernarg_size 96", "  .amdhsa_user_sgpr_count 2",
            "  .amdhsa_user_sgpr_kernarg_segment_ptr 1", "  .amdhsa_system_sgpr_workgroup_id_x 1",
            ".end_amdhsa_kernel"]
    return "\n".join(x for x in g.L if x is not None) + "\n"

if __name__ == "__main__":
    import argparse
    ap = argparse.ArgumentParser()
    ap.add_argument("out"); ap.add_argument("--diag", action="store_true")
    ap.add_argument("--w", default="8,8,8,6,8"); ap.add_argument("--pad", default=None); ap.add_argument("--nont", action="store_true"); ap.add_argument("--pf", type=int, default=0)
    a = ap.parse_args()
    open(a.out, "w").write(gen(a.diag, *map(int, a.w.split(",")), pad=a.pad, NT="" if a.nont else " nt", pf=a.pf))
```

```python
import sys
NAME = "recurrent_scan__sliding_block_cached__glu_gated_glu__decode"
HEADER = open("cdna_kernels/" + NAME + ".s.ref").read().split("; @launch")[0]

WS_E  = 0x0
WS_QP = 0x1000
WS_GP = 0x11000
WS_OP = 0x50000
WS_SP = 0xD0000
WS_USED = 0x148000
WS_DIAG = 0x1000000
L_CNT = 0
L_ML  = 64
L_OO  = 1024
L_RED = 2048
L_Q   = 4096
L_XN  = 8192
L_OW  = 12288
L_V   = 32768
LDS_BYTES = 65536
OWROW = 528
SPIN = 200000

class G:
    def __init__(s, diag):
        s.L = []; s.diag = diag; s.lab = 0
    def e(s, t): s.L.append("  " + t)
    def label(s, n): s.L.append(n + ":")
    def newlab(s, p="L"):
        s.lab += 1; return f"{p}_{s.lab}"
    def nop(s, n):
        while n > 0:
            k = min(n, 16); s.e(f"s_nop {k-1}"); n -= k
    def stamp(s, i):
        if s.diag: s.e(f"s_memrealtime s[{64+2*i}:{65+2*i}]")
    def srd(s, d, lo, size):
        s.e(f"s_mov_b32 s{d}, s{lo}"); s.e(f"s_mov_b32 s{d+1}, s{lo+1}")
        s.e(f"s_mov_b32 s{d+2}, {size:#x}"); s.e(f"s_mov_b32 s{d+3}, 0x20000")

S_WAVE = 4
S_T = [10, 11, 12, 13]
S_SELA = 14; S_SELB = 15
WS = "s[52:55]"
V_M = 4; V_FF = 8; V_TMP = 12; V_ACC = 20; V_XX = 24; V_W = 56

def tagcheck(g, regs_list, acc):
    for k, r in enumerate(regs_list):
        g.e(f"v_perm_b32 v9, v{r+1}, v{r}, s{S_SELA}")
        g.e(f"v_perm_b32 v10, v{r+3}, v{r+2}, s{S_SELB}")
        if k == 0:
            g.e(f"v_bitop3_b32 v{acc}, v9, v10, s{S_T[0]} bitop3:0x56")
        else:
            g.e(f"v_bitop3_b32 v9, v9, v10, s{S_T[0]} bitop3:0x56")
            g.e(f"v_or_b32 v{acc}, v{acc}, v9")

def tagput(g, r, src=None):
    for i in range(4):
        g.e(f"v_bfi_b32 v{r+i}, v{V_FF}, s{S_T[i]}, v{(src if src is not None else r)+i}")

def wave_sum(g, v, sdst):
    for ror in (8, 4, 2, 1):
        g.nop(2); g.e(f"v_add_f32_dpp v{v}, v{v}, v{v} row_ror:{ror} row_mask:0xf bank_mask:0xf")
    g.nop(2); g.e(f"v_add_f32_dpp v{v}, v{v}, v{v} row_bcast:15 row_mask:0xa bank_mask:0xf")
    g.nop(2); g.e(f"v_add_f32_dpp v{v}, v{v}, v{v} row_bcast:31 row_mask:0xc bank_mask:0xf")
    g.nop(1); g.e(f"v_readlane_b32 s{sdst}, v{v}, 63")

def xreduce(g, op, regs, tmps, steps=(16, 32)):
    for st in steps:
        for r, t in zip(regs, tmps): g.e(f"v_mov_b32 v{t}, v{r}")
        if len(regs) < 3: g.nop(3 - len(regs))
        for r, t in zip(regs, tmps): g.e(f"v_permlane{st}_swap_b32 v{t}, v{r}")
        if len(regs) < 2: g.nop(1)
        for r, t in zip(regs, tmps): g.e(f"{op} v{r}, v{t}, v{r}")

def layernorm(g, xr, xm):
    U = 28
    for i in range(8):
        g.e(f"v_lshlrev_b32 v{U+2*i}, 16, v{xr+i}")
        g.e(f"v_and_b32 v{U+2*i+1}, 0xffff0000, v{xr+i}")
    g.e(f"v_add_f32 v9, v{U}, v{U+1}"); g.e(f"v_add_f32 v10, v{U+2}, v{U+3}")
    for i in range(4, 16, 2):
        g.e(f"v_add_f32 v9, v9, v{U+i}"); g.e(f"v_add_f32 v10, v10, v{U+i+1}")
    g.e("v_add_f32 v9, v9, v10")
    wave_sum(g, 9, 6)
    g.e("v_mov_b32 v11, 0x3a800000")
    g.e("v_mov_b32 v9, 0")
    g.e("v_mul_f32 v3, s6, v11")
    g.e("v_mov_b32 v10, 0")
    for i in range(0, 16, 2):
        g.e(f"v_sub_f32 v{U+i}, v{U+i}, v3"); g.e(f"v_sub_f32 v{U+i+1}, v{U+i+1}, v3")
        g.e(f"v_fmac_f32 v9, v{U+i}, v{U+i}"); g.e(f"v_fmac_f32 v10, v{U+i+1}, v{U+i+1}")
    g.e("v_add_f32 v9, v9, v10")
    wave_sum(g, 9, 6)
    g.e(f"v_lshlrev_b32 v24, 16, v{xm}"); g.e(f"v_and_b32 v25, 0xffff0000, v{xm}")
    g.e("v_mul_f32 v9, s6, v11")
    g.e("v_cvt_pk_bf16_f32 v9, v9, v3")
    g.e("v_and_b32 v3, 0xffff0000, v9")
    g.e("v_lshlrev_b32 v9, 16, v9")
    g.e("v_add_f32 v9, 0x3727c5ac, v9")
    g.e("v_cvt_pk_bf16_f32 v9, v9, v9"); g.e("v_lshlrev_b32 v9, 16, v9")
    g.e("v_sqrt_f32 v9, v9")
    g.e(f"v_lshlrev_b32 v26, 16, v{xm+1}"); g.e(f"v_and_b32 v27, 0xffff0000, v{xm+1}")
    g.e("v_cvt_pk_bf16_f32 v9, v9, v9"); g.e("v_lshlrev_b32 v9, 16, v9")
    g.e("v_rcp_f32 v9, v9")
    for i in range(4): g.e(f"v_sub_f32 v{24+i}, v{24+i}, v3")
    g.e("v_cvt_pk_bf16_f32 v10, v24, v25"); g.e("v_cvt_pk_bf16_f32 v11, v26, v27")
    g.e("v_lshlrev_b32 v24, 16, v10"); g.e("v_and_b32 v25, 0xffff0000, v10"); g.e("v_lshlrev_b32 v26, 16, v11"); g.e("v_and_b32 v27, 0xffff0000, v11")
    for i in range(4): g.e(f"v_mul_f32 v{24+i}, v{24+i}, v9")
    for i in range(4): g.e(f"v_cvt_pk_bf16_f32 v{24+i}, v{24+i}, v{24+i}")

def gemv_step(g, i, xx):
    t = V_TMP + 4 * (i & 1)
    for r in range(4): g.e(f"v_and_b32 v{t+r}, v{xx}, v{V_M+r}")
def gemv_mfma(g, i, w, first):
    t = V_TMP + 4 * (i & 1)
    c = "0" if first else f"v[{V_ACC}:{V_ACC+3}]"
    g.e(f"v_mfma_f32_16x16x32_bf16 v[{V_ACC}:{V_ACC+3}], v[{t}:{t+3}], v[{w}:{w+3}], {c}")

def lds_arrive(g, off, rtn=None):
    g.e("s_mov_b64 exec, 1")
    g.e("v_mov_b32 v9, 0"); g.e("v_mov_b32 v10, 1")
    if rtn is None:
        g.e(f"ds_add_u32 v9, v10 offset:{off}")
    else:
        g.e(f"ds_add_rtn_u32 v10, v9, v10 offset:{off}")
        g.e("s_waitcnt lgkmcnt(0)")
        g.e(f"v_readfirstlane_b32 s{rtn}, v10")
    g.e("s_mov_b64 exec, -1")

def lds_spin(g, off, target, sleep=0):
    lp = g.newlab("Lsp")
    g.e(f"s_mov_b32 s7, {SPIN}")
    g.e("v_mov_b32 v9, 0")
    g.label(lp)
    if sleep: g.e(f"s_sleep {sleep}")
    g.e(f"ds_read_b32 v10, v9 offset:{off}")
    g.e("s_sub_u32 s7, s7, 1"); g.e("s_cbranch_scc1 L_fail")
    g.e("s_waitcnt lgkmcnt(0)")
    g.e("v_readfirstlane_b32 s6, v10")
    g.e(f"s_cmp_lt_u32 s6, {target}"); g.e(f"s_cbranch_scc1 {lp}")

def make_tag(g):
    g.e(f"v_readfirstlane_b32 s{S_T[0]}, v124")
    g.nop(1)
    g.e(f"s_add_u32 s{S_T[0]}, s{S_T[0]}, 0x9e3779b9")
    for i in range(1, 4): g.e(f"s_lshr_b32 s{S_T[i]}, s{S_T[0]}, {8*i}")

def masks(g):
    e = g.e
    e("v_and_b32 v1, 1, v0"); e("v_lshlrev_b32 v1, 4, v1"); e("v_mov_b32 v2, 0xffff"); e("v_lshlrev_b32 v2, v1, v2")
    e("v_bfe_u32 v1, v0, 1, 2")
    for r in range(4):
        e(f"v_cmp_eq_u32 vcc, {r}, v1"); g.nop(2); e(f"v_cndmask_b32 v{V_M+r}, 0, v2, vcc")
    e(f"v_mov_b32 v{V_FF}, 0xff")
    e(f"s_mov_b32 s{S_SELA}, 0x0c0c0400"); e(f"s_mov_b32 s{S_SELB}, 0x04000c0c")

def gen(diag=False, WA=10, WB1=5, WB2=9, WBsw=10, WYA=6, WYB=9, b2late=0, pad=None, NT=" nt", csleep=0):
    g = G(diag); e = g.e
    g.L.append(HEADER.rstrip("\n"))
    g.L.append(f"; @launch grid=(256,1,1) block=(512,1,1) lds={LDS_BYTES}")
    g.L.append('.amdgcn_target "amdgcn-amd-amdhsa--gfx950"')
    g.L += [".text", f".globl {NAME}_kernel", ".p2align 8", f".type {NAME}_kernel,@function", f"{NAME}_kernel:"]
    g.stamp(0)
    if pad: e("s_memrealtime s[94:95]")
    e("s_cmp_ge_u32 s2, 256"); e("s_cbranch_scc1 L_end")
    e("s_load_dwordx16 s[16:31], s[0:1], 0"); e("s_load_dwordx8 s[32:39], s[0:1], 64")
    e("v_lshrrev_b32 v1, 6, v0"); e("v_and_b32 v0, 63, v0")
    e(f"v_readfirstlane_b32 s{S_WAVE}, v1")
    masks(g)
    e(f"s_mov_b32 s54, {(WS_DIAG + 0x100000 if diag else WS_USED):#x}"); e("s_mov_b32 s55, 0x20000")
    e("s_mov_b32 s43, 0x20000")
    e("s_cmp_ge_u32 s2, 240"); e("s_cbranch_scc1 L_C")
    e(f"s_cmp_ge_u32 s{S_WAVE}, 4"); e("s_cbranch_scc1 L_Y")
    e("v_lshrrev_b32 v2, 4, v0"); e("v_and_b32 v3, 15, v0")
    e("s_cmp_ge_u32 s2, 128"); e("s_cbranch_scc1 L_BX")
    e("s_and_b32 s5, s2, 7"); e("s_lshl_b32 s5, s5, 4"); e("s_lshr_b32 s6, s2, 3"); e("s_add_u32 s5, s5, s6")
    e("v_lshlrev_b32 v1, 17, v2"); e("v_lshl_add_u32 v1, v3, 4, v1")
    e("s_and_b32 s6, s5, 3"); e("s_lshl_b32 s6, s6, 2"); e(f"s_add_u32 s6, s6, s{S_WAVE}")
    e("s_lshl_b32 s8, s6, 19"); e("s_lshr_b32 s7, s5, 2"); e("s_lshl_b32 s7, s7, 8"); e("s_add_u32 s8, s8, s7")
    e("s_lshl_b32 s9, s6, 8")
    e("v_lshl_add_u32 v120, v2, 6, s9")
    e("s_mov_b32 s42, 0x800000")
    e("s_waitcnt lgkmcnt(0)")
    e("s_mov_b32 s40, s22"); e("s_mov_b32 s41, s23")
    e("s_mov_b32 s52, s38"); e("s_mov_b32 s53, s39")
    g.stamp(1)
    def issue_A(k):
        if k < 16:
            e(f"buffer_load_dwordx4 v[{V_W+4*k}:{V_W+4*k+3}], v1, s[40:43], s8 offen{NT}")
            if k < 15: e("s_add_u32 s8, s8, 0x2000")
        elif k < 24:
            j = k - 16
            e(f"s_mov_b32 m0, s58"); e("s_add_u32 s58, s58, 1024")
            e(f"buffer_load_dwordx4 v{122 + (j & 1)}, s[60:63], s57 offen{NT} lds")
            if j < 7: e("s_add_u32 s57, s57, 1024")
        else:
            j = k - 24; s = j & 3
            e(f"buffer_load_dwordx4 v[{V_W+4*j}:{V_W+4*j+3}], v121, s[44:47], s56 offen offset:{64*s}{NT}")
            if j == 3: e("s_add_u32 s56, s56, 4096")
    for k in range(WA): issue_A(k)
    e(f"buffer_load_dword v124, off, {WS}, 0 offset:{WS_E} sc1")
    e("s_setprio 3")
    g.srd(44, 18, 67108864); g.srd(60, 20, 67108864)
    e("s_lshr_b32 s56, s5, 5"); e("s_lshl_b32 s56, s56, 24"); e("s_and_b32 s7, s5, 31"); e("s_lshl_b32 s7, s7, 15"); e("s_add_u32 s56, s56, s7")
    e(f"s_lshl_b32 s7, s{S_WAVE}, 13"); e("s_add_u32 s56, s56, s7"); e(f"s_add_u32 s56, s56, {61440*256}")
    e("s_mov_b32 s57, s56")
    e(f"s_add_u32 s58, s7, {L_V}")
    e("v_lshlrev_b32 v10, 8, v3"); e("v_lshl_add_u32 v121, v2, 4, v10")
    e("v_lshlrev_b32 v10, 1, v2"); e("v_xor_b32 v10, v10, v3"); e("v_lshlrev_b32 v10, 4, v10")
    e("v_lshl_add_u32 v122, v2, 8, v10"); e("v_xor_b32 v123, 0x80, v122")
    def pos(k): return k if k < WA else k + 1
    nis = WA
    PRE = min(16, WA + 4)
    while nis < PRE:
        e(f"s_waitcnt vmcnt({WA-1})"); issue_A(nis); nis += 1
    e("s_barrier")
    for i in range(4):
        e(f"ds_read_b128 v[{V_XX+4*i}:{V_XX+4*i+3}], v120 offset:{L_XN + 16*i}")
    e("s_waitcnt lgkmcnt(0)")
    g.stamp(2)
    gemv_step(g, 0, V_XX)
    for i in range(16):
        e(f"s_waitcnt vmcnt({pos(nis-1) - pos(i)})")
        if nis < i + 1 + WA and (nis < 24 or nis - 24 < i):
            issue_A(nis); nis += 1
        else: g.nop(1)
        gemv_mfma(g, i, V_W + 4 * i, i == 0)
        if i < 15: gemv_step(g, i + 1, V_XX + i + 1)
    g.stamp(3)
    make_tag(g)
    e("v_lshlrev_b32 v1, 5, v3"); e("v_lshl_add_u32 v1, v2, 4, v1")
    e(f"s_lshl_b32 s6, s{S_WAVE}, 9"); e("v_add_u32 v11, s6, v1")
    e("s_mov_b32 exec_hi, 0")
    e(f"ds_write_b128 v11, v[{V_ACC}:{V_ACC+3}] offset:{L_RED}")
    lds_arrive(g, L_CNT + 0, rtn=6)
    skip = g.newlab("Lnl")
    e("s_cmp_lg_u32 s6, 3"); e(f"s_cbranch_scc1 {skip}")
    e("s_mov_b32 exec_hi, 0")
    e("v_lshlrev_b32 v1, 4, v0")
    for p in range(4): e(f"ds_read_b128 v[{24+4*p}:{27+4*p}], v1 offset:{L_RED + 512*p}")
    e("s_lshr_b32 s6, s5, 5"); e("s_lshl_b32 s6, s6, 14"); e("s_and_b32 s7, s5, 3"); e("s_lshl_b32 s7, s7, 12"); e("s_add_u32 s6, s6, s7")
    e("s_bfe_u32 s7, s5, 0x30002"); e("s_lshl_b32 s7, s7, 9"); e("s_add_u32 s6, s6, s7"); e(f"s_add_u32 s6, s6, {WS_QP}")
    e("s_waitcnt lgkmcnt(2)")
    for r in range(4): e(f"v_add_f32 v{24+r}, v{24+r}, v{28+r}")
    e("s_waitcnt lgkmcnt(0)")
    for r in range(4): e(f"v_add_f32 v{32+r}, v{32+r}, v{36+r}")
    for r in range(4): e(f"v_add_f32 v{20+r}, v{24+r}, v{32+r}")
    tagput(g, V_ACC)
    e(f"buffer_store_dwordx4 v[{V_ACC}:{V_ACC+3}], v1, {WS}, s6 offen sc1")
    e("s_mov_b64 exec, -1")
    g.label(skip)
    g.stamp(4)
    while nis < 32:
        e(f"s_waitcnt vmcnt({WA-1})"); issue_A(nis); nis += 1
    if not b2late: e("s_barrier")
    e("s_lshr_b32 s8, s5, 5"); e("s_lshl_b32 s8, s8, 14"); e(f"s_lshl_b32 s7, s{S_WAVE}, 10"); e("s_add_u32 s8, s8, s7"); e(f"s_add_u32 s8, s8, {WS_QP}")
    e("s_add_u32 s9, s8, 4096"); e("s_add_u32 s56, s8, 8192"); e("s_add_u32 s57, s8, 12288")
    e("v_lshlrev_b32 v120, 4, v0")
    e("v_lshrrev_b32 v1, 2, v0")
    e("v_and_b32 v2, 7, v1"); e("v_lshlrev_b32 v2, 5, v2")
    e("v_and_b32 v3, 3, v0"); e("v_lshlrev_b32 v3, 3, v3")
    e("v_lshl_add_u32 v1, v1, 8, v3")
    e(f"s_lshl_b32 s6, s{S_WAVE}, 13"); e(f"s_add_u32 s6, s6, {L_V}"); e("v_add_u32 v1, s6, v1")
    e("s_waitcnt vmcnt(8)")
    VV = V_W + 32
    for t in range(8):
        e(f"v_xor_b32 v3, {32*t}, v2"); e("v_add_u32 v3, v3, v1")
        e(f"ds_read_b64_tr_b16 v[{VV+4*t}:{VV+4*t+1}], v3")
        e(f"ds_read_b64_tr_b16 v[{VV+4*t+2}:{VV+4*t+3}], v3 offset:4096")
    e("v_lshrrev_b32 v1, 5, v0"); e(f"s_lshl_b32 s6, s{S_WAVE}, 1"); e("v_add_u32 v1, s6, v1")
    e("v_and_b32 v2, 31, v0")
    e("v_mul_u32_u24 v121, 272, v1"); e("v_lshl_add_u32 v121, v2, 3, v121")
    e(f"v_mul_u32_u24 v125, {OWROW}, v1"); e("v_lshl_add_u32 v125, v2, 4, v125")
    e("v_lshlrev_b32 v126, 3, v1")
    e("v_and_b32 v1, 7, v0"); e("v_and_b32 v2, 48, v0")
    e("v_mul_u32_u24 v122, 272, v1"); e("v_add_u32 v122, v122, v2")
    e("v_and_b32 v1, 15, v0"); e(f"s_lshl_b32 s6, s{S_WAVE}, 3"); e("v_add_u32 v3, s6, v1")
    e(f"v_mul_u32_u24 v123, {OWROW}, v3"); e("v_add_u32 v123, v123, v2")
    e(f"s_lshl_b32 s6, s{S_WAVE}, 7"); e("v_lshl_add_u32 v124, v1, 3, s6")
    e("v_lshrrev_b32 v2, 4, v0"); e("v_lshlrev_b32 v2, 13, v2"); e("v_lshl_add_u32 v127, v1, 4, v2")
    e("v_mov_b32 v12, 0x3f803f80"); e("v_mov_b32 v13, v12"); e("v_mov_b32 v14, v12"); e("v_mov_b32 v15, v12")
    lp = g.newlab("Lq")
    e(f"s_mov_b32 s7, {SPIN}")
    g.label(lp)
    for i, so in enumerate(("s8", "s9", "s56", "s57")):
        e(f"buffer_load_dwordx4 v[{24+4*i}:{27+4*i}], v120, {WS}, {so} offen sc1")
    e("s_sub_u32 s7, s7, 1"); e("s_cbranch_scc1 L_fail")
    e("s_waitcnt vmcnt(0)")
    tagcheck(g, [24, 28, 32, 36], 11)
    e("v_cmp_ne_u32 vcc, 0, v11"); e(f"s_cbranch_vccnz {lp}")
    if diag: e("s_mov_b32 s90, s7")
    g.stamp(5)
    for r in range(4): e(f"v_add_f32 v{24+r}, v{24+r}, v{28+r}")
    for r in range(4): e(f"v_add_f32 v{32+r}, v{32+r}, v{36+r}")
    for r in range(4): e(f"v_add_f32 v{24+r}, v{24+r}, v{32+r}")
    e("v_cvt_pk_bf16_f32 v24, v24, v25"); e("v_cvt_pk_bf16_f32 v25, v26, v27")
    e(f"ds_write_b64 v121, v[24:25] offset:{L_Q}")
    if b2late:
        e("s_waitcnt lgkmcnt(0)"); e("s_barrier")
    else:
        lds_arrive(g, L_CNT + 4)
        lds_spin(g, L_CNT + 4, 4)
    for s in range(4):
        e(f"ds_read_b128 v[{24+4*s}:{27+4*s}], v122 offset:{L_Q + 64*s}")
    e("s_mov_b32 s6, 0x3db504f3")
    e("s_mov_b32 s7, 0x3fb8aa3b")
    for s in range(4):
        e(f"s_waitcnt lgkmcnt({3-s})")
        for u in range(2):
            c = "0" if s == 0 else f"v[{40+4*u}:{43+4*u}]"
            e(f"v_mfma_f32_16x16x32_bf16 v[{40+4*u}:{43+4*u}], v[{V_W+16*u+4*s}:{V_W+16*u+4*s+3}], v[{24+4*s}:{27+4*s}], {c}")
    g.nop(7)
    for i in range(0, 8, 2):
        e(f"v_cvt_pk_bf16_f32 v9, v{40+i}, v{41+i}")
        e(f"v_lshlrev_b32 v{40+i}, 16, v9"); e(f"v_and_b32 v{41+i}, 0xffff0000, v9")
        e(f"v_mul_f32 v{40+i}, s6, v{40+i}"); e(f"v_mul_f32 v{41+i}, s6, v{41+i}")
        e(f"v_cvt_pk_bf16_f32 v9, v{40+i}, v{41+i}")
        e(f"v_lshlrev_b32 v{40+i}, 16, v9"); e(f"v_and_b32 v{41+i}, 0xffff0000, v9")
    e("v_max3_f32 v9, v40, v41, v42"); e("v_max3_f32 v10, v43, v44, v45"); e("v_max3_f32 v9, v9, v46, v47"); e("v_max_f32 v16, v9, v10")
    xreduce(g, "v_max_f32", [16], [9])
    e("v_mul_f32 v16, s7, v16")
    for i in range(8): e(f"v_fma_f32 v{40+i}, v{40+i}, s7, -v16")
    for i in range(8): e(f"v_exp_f32 v{40+i}, v{40+i}")
    for i in range(4): e(f"v_cvt_pk_bf16_f32 v{48+i}, v{40+2*i}, v{41+2*i}")
    g.nop(2)
    e(f"v_mfma_f32_16x16x32_bf16 v[20:23], v[12:15], v[48:51], 0")
    O = V_W
    for t in range(8):
        e(f"v_mfma_f32_16x16x32_bf16 v[{O+4*t}:{O+4*t+3}], v[{VV+4*t}:{VV+4*t+3}], v[48:51], 0")
    e("v_mov_b32 v17, v20")
    e("s_mov_b32 exec_lo, 0x00ff00ff"); e("s_mov_b32 exec_hi, 0x00ff00ff")
    e(f"ds_write_b64 v124, v[16:17] offset:{L_ML}")
    for t in range(8):
        e(f"ds_write_b128 v123, v[{O+4*t}:{O+4*t+3}] offset:{L_OW + 64*t}")
    lds_arrive(g, L_CNT + 8)
    g.stamp(6)
    e("s_lshr_b32 s8, s5, 5"); e("s_lshl_b32 s8, s8, 17"); e(f"s_lshl_b32 s7, s{S_WAVE}, 15"); e("s_add_u32 s8, s8, s7")
    e("s_and_b32 s7, s5, 31"); e("s_lshl_b32 s7, s7, 8"); e("s_add_u32 s8, s8, s7"); e(f"s_add_u32 s8, s8, {WS_OP}")
    e(f"v_mov_b32 v23, s{S_T[0]}")
    lds_spin(g, L_CNT + 8, 4)
    for w in range(4): e(f"ds_read_b64 v[{24+2*w}:{25+2*w}], v126 offset:{L_ML + 128*w}")
    for w in range(4): e(f"ds_read_b128 v[{32+4*w}:{35+4*w}], v125 offset:{L_OW + 8*OWROW*w}")
    e("s_waitcnt lgkmcnt(4)")
    e("v_max3_f32 v16, v24, v26, v28"); e("v_max_f32 v16, v16, v30")
    for w in range(4): e(f"v_sub_f32 v{24+2*w}, v{24+2*w}, v16")
    for w in range(4): e(f"v_exp_f32 v{24+2*w}, v{24+2*w}")
    e("v_mul_f32 v17, v24, v25"); e("v_fmac_f32 v17, v26, v27"); e("v_fmac_f32 v17, v28, v29"); e("v_fmac_f32 v17, v30, v31")
    e("v_rcp_f32 v18, v17"); e("v_log_f32 v17, v17")
    e("s_waitcnt lgkmcnt(0)")
    for r in range(4): e(f"v_mul_f32 v{32+r}, v24, v{32+r}")
    for w in range(1, 4):
        for r in range(4): e(f"v_fmac_f32 v{32+r}, v{24+2*w}, v{32+4*w+r}")
    for r in range(4): e(f"v_mul_f32 v{32+r}, v18, v{32+r}")
    e("v_add_f32 v22, v16, v17")
    e("v_cvt_pk_bf16_f32 v20, v32, v33"); e("v_cvt_pk_bf16_f32 v21, v34, v35")
    e(f"buffer_store_dwordx4 v[20:23], v127, {WS}, s8 offen sc1")
    g.stamp(7)
    e("s_lshr_b32 s8, s5, 1"); e("s_lshl_b32 s8, s8, 13"); e(f"s_lshl_b32 s7, s{S_WAVE}, 6"); e("s_add_u32 s8, s8, s7"); e(f"s_add_u32 s8, s8, {WS_OP}")
    e("s_add_u32 s9, s8, 4096")
    e("v_lshrrev_b32 v1, 2, v0"); e("v_lshlrev_b32 v1, 8, v1"); e("v_and_b32 v2, 3, v0"); e("v_lshl_add_u32 v1, v2, 4, v1")
    e(f"s_lshl_b32 s6, s{S_WAVE}, 6"); e("v_lshl_add_u32 v2, v0, 4, s6")
    lp = g.newlab("Lo")
    e(f"s_mov_b32 s7, {SPIN}")
    g.label(lp)
    e(f"buffer_load_dwordx4 v[24:27], v1, {WS}, s8 offen sc1")
    e(f"buffer_load_dwordx4 v[28:31], v1, {WS}, s9 offen sc1")
    e("s_sub_u32 s7, s7, 1"); e("s_cbranch_scc1 L_fail")
    e("s_waitcnt vmcnt(0)")
    e(f"v_xor_b32 v9, s{S_T[0]}, v27"); e(f"v_xor_b32 v10, s{S_T[0]}, v31"); e("v_or_b32 v9, v9, v10")
    e("v_cmp_ne_u32 vcc, 0, v9"); e(f"s_cbranch_vccnz {lp}")
    if diag: e("s_mov_b32 s91, s7")
    g.stamp(8)
    e("v_max_f32 v16, v26, v30")
    e("v_lshlrev_b32 v32, 16, v24"); e("v_and_b32 v33, 0xffff0000, v24")
    e(f"v_max_f32_dpp v16, v16, v16 row_ror:4 row_mask:0xf bank_mask:0xf")
    e("v_lshlrev_b32 v34, 16, v25"); e("v_and_b32 v35, 0xffff0000, v25")
    e(f"v_max_f32_dpp v16, v16, v16 row_ror:8 row_mask:0xf bank_mask:0xf")
    e("v_lshlrev_b32 v40, 16, v28"); e("v_and_b32 v41, 0xffff0000, v28"); e("v_lshlrev_b32 v42, 16, v29"); e("v_and_b32 v43, 0xffff0000, v29")
    xreduce(g, "v_max_f32", [16], [9])
    e("v_sub_f32 v26, v26, v16"); e("v_sub_f32 v30, v30, v16")
    e("v_exp_f32 v26, v26"); e("v_exp_f32 v30, v30"); g.nop(1)
    e("v_add_f32 v36, v26, v30")
    for r in range(4): e(f"v_mul_f32 v{32+r}, v26, v{32+r}")
    for r in range(4): e(f"v_fmac_f32 v{32+r}, v30, v{40+r}")
    for ror in (4, 8):
        for r in (36, 32, 33, 34, 35): e(f"v_add_f32_dpp v{r}, v{r}, v{r} row_ror:{ror} row_mask:0xf bank_mask:0xf")
    xreduce(g, "v_add_f32", [36, 32, 33, 34, 35], [44, 40, 41, 42, 43])
    e("v_rcp_f32 v36, v36"); g.nop(1)
    for r in range(4): e(f"v_mul_f32 v{32+r}, v36, v{32+r}")
    for r in range(4): e(f"v_cvt_pk_bf16_f32 v{32+r}, v{32+r}, v{32+r}")
    e("s_mov_b64 exec, 15")
    e(f"ds_write_b128 v2, v[32:35] offset:{L_OO}")
    lds_arrive(g, L_CNT + 12)
    g.stamp(9)
    e("s_branch L_fin")

    g.label("L_BX")
    e("s_sub_u32 s6, s2, 128"); e("s_and_b32 s5, s6, 7"); e("s_mul_i32 s5, s5, 14"); e("s_lshr_b32 s6, s6, 3"); e("s_add_u32 s5, s5, s6")
    e(f"s_mov_b32 s6, {32*7168}"); e("v_mul_lo_u32 v1, v2, s6"); e("v_lshl_add_u32 v1, v3, 4, v1")
    e("s_bfe_u32 s9, s5, 0x30001")
    e(f"s_mul_i32 s8, s9, {128*7168}"); e("s_lshr_b32 s7, s5, 4"); e("s_lshl_b32 s7, s7, 2"); e(f"s_add_u32 s7, s7, s{S_WAVE}")
    e("s_lshl_b32 s56, s7, 9")
    e("s_lshl_b32 s7, s7, 8"); e("s_add_u32 s8, s8, s7")
    e("s_lshl_b32 s7, s9, 9"); e("v_lshl_add_u32 v120, v2, 7, s7")
    e("s_mov_b32 s42, 7340032")
    e("s_and_b32 s6, s5, 1"); e("s_cmp_eq_u32 s6, 0")
    e("s_waitcnt lgkmcnt(0)")
    e("s_cselect_b32 s40, s28, s30"); e("s_cselect_b32 s41, s29, s31")
    e("s_mov_b32 s52, s38"); e("s_mov_b32 s53, s39")
    g.stamp(1)
    def issue_B(k):
        r = V_W + 4 * (k & 15)
        e(f"buffer_load_dwordx4 v[{r}:{r+3}], v1, s[40:43], s8 offen{NT}")
        if k < 31: e("s_add_u32 s8, s8, 7168")
    for k in range(WB1): issue_B(k)
    e(f"buffer_load_dword v124, off, {WS}, 0 offset:{WS_E} sc1")
    e("s_setprio 3")
    e("s_lshl_b32 s6, s6, 3"); e("s_add_u32 s6, s6, s9"); e("s_mul_i32 s6, s6, 14336"); e("s_add_u32 s56, s56, s6"); e(f"s_add_u32 s56, s56, {WS_GP}")
    e("v_lshlrev_b32 v121, 5, v3"); e("v_lshl_add_u32 v121, v2, 4, v121")
    e("v_lshrrev_b32 v122, 2, v0"); e("v_mul_u32_u24 v122, 14336, v122"); e("v_and_b32 v9, 3, v0"); e("v_lshl_add_u32 v122, v9, 4, v122")
    e("s_lshr_b32 s57, s5, 1"); e("s_lshl_b32 s57, s57, 8"); e(f"s_lshl_b32 s6, s{S_WAVE}, 6"); e("s_add_u32 s57, s57, s6"); e(f"s_add_u32 s57, s57, {WS_GP}")
    e("v_lshl_add_u32 v123, v0, 4, s6")
    def posb(k): return k if k < WB1 else k + 1
    nis = WB1
    PRE = min(15, WB1 + 4)
    while nis < PRE:
        e(f"s_waitcnt vmcnt({WB1-1})"); issue_B(nis); nis += 1
    e("s_barrier")
    for i in range(8):
        e(f"ds_read_b128 v[{V_XX+4*i}:{V_XX+4*i+3}], v120 offset:{L_XN + 16*i}")
    e("s_waitcnt lgkmcnt(7)")
    g.stamp(2)
    gemv_step(g, 0, V_XX)
    for i in range(32):
        e(f"s_waitcnt vmcnt({posb(nis-1) - posb(i)})" + (" lgkmcnt(0)" if i == 2 else ""))
        W = WB1 if i < WBsw else WB2
        if not (nis < 32 and nis < i + 1 + W): g.nop(1)
        while nis < 32 and nis < i + 1 + W:
            issue_B(nis); nis += 1
            if nis == 32: e("s_barrier")
        gemv_mfma(g, i, V_W + 4 * (i & 15), i == 0)
        if i < 31: gemv_step(g, i + 1, V_XX + i + 1)
        if i == 20: make_tag(g)
    g.stamp(3)
    g.nop(7)
    e("s_mov_b32 exec_hi, 0")
    tagput(g, V_ACC)
    e(f"buffer_store_dwordx4 v[20:23], v121, {WS}, s56 offen sc1")
    e("s_mov_b64 exec, -1")
    g.stamp(4)
    lp = g.newlab("Lh")
    e(f"s_mov_b32 s7, {SPIN}")
    g.label(lp)
    e(f"buffer_load_dwordx4 v[28:31], v122, {WS}, s57 offen sc1")
    e("s_sub_u32 s7, s7, 1"); e("s_cbranch_scc1 L_fail")
    e("s_waitcnt vmcnt(0)")
    tagcheck(g, [28], 11)
    e("v_cmp_ne_u32 vcc, 0, v11"); e(f"s_cbranch_vccnz {lp}")
    if diag: e("s_mov_b32 s90, s7")
    g.stamp(5)
    for ror in (4, 8):
        for r in range(28, 32): e(f"v_add_f32_dpp v{r}, v{r}, v{r} row_ror:{ror} row_mask:0xf bank_mask:0xf")
    xreduce(g, "v_add_f32", [28, 29, 30, 31], [32, 33, 34, 35], steps=(16,))
    e("v_cvt_pk_bf16_f32 v28, v28, v29"); e("v_cvt_pk_bf16_f32 v29, v30, v31")
    e("v_mov_b32 v30, v28"); e("v_mov_b32 v31, v29"); g.nop(1)
    e("v_permlane32_swap_b32 v28, v30"); e("v_permlane32_swap_b32 v29, v31")
    e("s_mov_b32 s7, 0xbfb8aa3b")
    e("v_lshlrev_b32 v32, 16, v28"); e("v_and_b32 v33, 0xffff0000, v28"); e("v_lshlrev_b32 v34, 16, v29"); e("v_and_b32 v35, 0xffff0000, v29")
    for i in range(4): e(f"v_mul_f32 v{32+i}, s7, v{32+i}")
    for i in range(4): e(f"v_exp_f32 v{32+i}, v{32+i}")
    e("v_lshlrev_b32 v36, 16, v30"); e("v_and_b32 v37, 0xffff0000, v30"); e("v_lshlrev_b32 v38, 16, v31"); e("v_and_b32 v39, 0xffff0000, v31")
    for i in range(4): e(f"v_add_f32 v{32+i}, 1.0, v{32+i}")
    for i in range(4): e(f"v_rcp_f32 v{32+i}, v{32+i}")
    e("v_cvt_pk_bf16_f32 v9, v32, v33"); e("v_cvt_pk_bf16_f32 v10, v34, v35")
    e("v_lshlrev_b32 v32, 16, v9"); e("v_and_b32 v33, 0xffff0000, v9"); e("v_lshlrev_b32 v34, 16, v10"); e("v_and_b32 v35, 0xffff0000, v10")
    for i in range(4): e(f"v_mul_f32 v{32+i}, v{32+i}, v{36+i}")
    for i in range(4): e(f"v_cvt_pk_bf16_f32 v{32+i}, v{32+i}, v{32+i}")
    e("s_mov_b64 exec, 15")
    e(f"ds_write_b128 v123, v[32:35] offset:{L_OO}")
    lds_arrive(g, L_CNT + 12)
    g.stamp(9)
    e("s_branch L_fin")

    g.label("L_Y")
    e("s_setprio 3")
    e("v_lshlrev_b32 v1, 5, v0")
    e(f"s_lshl_b32 s6, s{S_WAVE}, 9"); e("s_sub_u32 s6, s6, 2048"); e("v_lshlrev_b32 v2, 3, v0")
    e("s_mov_b32 s50, 2048"); e("s_mov_b32 s51, 0x20000")
    e("s_waitcnt lgkmcnt(0)")
    e("s_mov_b32 s48, s16"); e("s_mov_b32 s49, s17")
    e("buffer_load_dwordx4 v[112:115], v1, s[48:51], 0 offen")
    e("buffer_load_dwordx4 v[116:119], v1, s[48:51], 0 offen offset:16")
    e("buffer_load_dwordx2 v[110:111], v2, s[48:51], s6 offen")
    e("s_mov_b32 s52, s38"); e("s_mov_b32 s53, s39")
    e(f"buffer_load_dword v124, off, {WS}, 0 offset:{WS_E} sc1")
    g.stamp(1)
    e("s_lshl_b32 s6, s6, 1"); e("v_lshl_add_u32 v122, v0, 4, s6")
    e("v_mov_b32 v9, 0"); e("v_mov_b32 v12, 0"); e("v_mov_b32 v13, 0"); e("v_mov_b32 v14, 0"); e("v_mov_b32 v15, 0")
    e(f"ds_write_b128 v9, v[12:15] offset:{L_CNT}")
    e("s_cmp_ge_u32 s2, 128"); e("s_cbranch_scc1 L_YB")
    e("s_and_b32 s5, s2, 7"); e("s_lshl_b32 s5, s5, 4"); e("s_lshr_b32 s6, s2, 3"); e("s_add_u32 s5, s5, s6")
    e("s_mov_b32 s40, s24"); e("s_mov_b32 s41, s25"); e("s_mov_b32 s42, 0x800000")
    e("s_lshr_b32 s9, s5, 1")
    e("s_branch L_YC")
    g.label("L_YB")
    e("s_sub_u32 s6, s2, 128"); e("s_and_b32 s5, s6, 7"); e("s_mul_i32 s5, s5, 14"); e("s_lshr_b32 s6, s6, 3"); e("s_add_u32 s5, s5, s6")
    e("s_mov_b32 s40, s32"); e("s_mov_b32 s41, s33"); e("s_mov_b32 s42, 7340032")
    e("s_lshr_b32 s9, s5, 1"); e("s_add_u32 s9, s9, 64")
    g.label("L_YC")
    e("v_lshrrev_b32 v2, 4, v0"); e("v_lshlrev_b32 v1, 15, v2"); e("v_and_b32 v3, 15, v0"); e("v_lshl_add_u32 v1, v3, 4, v1")
    e("s_lshr_b32 s8, s5, 1"); e("s_lshl_b32 s8, s8, 17"); e("s_and_b32 s6, s5, 1"); e("s_lshl_b32 s6, s6, 2")
    e(f"s_add_u32 s6, s6, s{S_WAVE}"); e("s_sub_u32 s6, s6, 4")
    e("s_lshl_b32 s7, s6, 8"); e("s_add_u32 s8, s8, s7")
    e(f"s_mul_i32 s59, s6, {2*120*256}"); e("s_lshl_b32 s9, s9, 8"); e("s_add_u32 s59, s59, s9"); e(f"s_add_u32 s59, s59, {WS_SP}")
    e("v_bfe_u32 v9, v0, 3, 1"); e(f"v_mul_u32_u24 v9, {120*256}, v9"); e("v_and_b32 v10, 7, v0"); e("v_lshl_add_u32 v9, v10, 5, v9")
    e("v_lshl_add_u32 v121, v2, 4, v9")
    e("v_lshlrev_b32 v120, 6, v2")
    e("s_waitcnt vmcnt(1)")
    layernorm(g, 112, 110)
    e(f"ds_write_b128 v122, v[24:27] offset:{L_XN}")
    e("s_waitcnt lgkmcnt(0) vmcnt(0)")
    g.stamp(6)
    e("s_barrier")
    make_tag(g)
    e("s_setprio 0")
    e("s_barrier")
    g.stamp(2)
    def yloads(W):
        for k in range(16):
            if k >= W: e(f"s_waitcnt vmcnt({W-1})")
            e(f"buffer_load_dwordx4 v[{V_W+4*k}:{V_W+4*k+3}], v1, s[40:43], s8 offen{NT}")
            if k < 15: e("s_add_u32 s8, s8, 2048")
    if WYA != WYB:
        e("s_cmp_ge_u32 s2, 128"); e("s_cbranch_scc1 L_YL2")
        yloads(WYA); e("s_branch L_YL3")
        g.label("L_YL2"); yloads(WYB); g.label("L_YL3")
    else:
        yloads(WYA)
    g.stamp(3)
    lds_spin(g, L_CNT + 12, 4)
    g.stamp(4)
    for i in range(4):
        e(f"ds_read_b128 v[{V_XX+4*i}:{V_XX+4*i+3}], v120 offset:{L_OO + 16*i}")
    e("s_waitcnt lgkmcnt(3)")
    gemv_step(g, 0, V_XX)
    for i in range(16):
        e(f"s_waitcnt vmcnt({15-i})" + (" lgkmcnt(0)" if i == 2 else ""))
        g.nop(1)
        gemv_mfma(g, i, V_W + 4 * i, i == 0)
        if i < 15: gemv_step(g, i + 1, V_XX + i + 1)
    g.stamp(5)
    g.nop(7)
    e("s_mov_b32 exec_hi, 0")
    tagput(g, V_ACC)
    e(f"buffer_store_dwordx4 v[{V_ACC}:{V_ACC+3}], v121, {WS}, s59 offen sc1")
    e("s_mov_b64 exec, -1")
    g.stamp(9)
    e("s_branch L_fin")

    g.label("L_C")
    e("s_waitcnt lgkmcnt(0)")
    e("s_mov_b32 s52, s38"); e("s_mov_b32 s53, s39")
    e(f"buffer_load_dword v124, off, {WS}, 0 offset:{WS_E} sc1")
    e("s_sub_u32 s5, s2, 240")
    e(f"s_lshl_b32 s6, s{S_WAVE}, 4"); e(f"s_mul_i32 s7, s{S_WAVE}, 14"); e("s_add_u32 s7, s7, 8")
    e(f"s_cmp_lt_u32 s{S_WAVE}, 4"); e("s_cselect_b32 s6, s6, s7")
    e("s_cselect_b32 s57, -1, 0")
    e("s_lshl_b32 s6, s6, 8"); e(f"s_mul_i32 s8, s5, {120*256}"); e("s_add_u32 s8, s8, s6"); e(f"s_add_u32 s8, s8, {WS_SP}")
    e("v_lshlrev_b32 v1, 4, v0")
    g.srd(48, 16, 2048); g.srd(44, 34, 2048)
    e("s_lshl_b32 s9, s5, 7"); e("v_lshlrev_b32 v2, 1, v0")
    e("buffer_load_ushort v3, v2, s[48:51], s9 offen")
    e("s_waitcnt vmcnt(0)")
    make_tag(g)
    e("s_barrier")
    e(f"s_cmp_lg_u32 s{S_WAVE}, 1"); e("s_cbranch_scc1 L_C1")
    e("s_mov_b32 s6, 1"); e("s_atomic_add s6, s[36:37], 0")
    e("s_cmp_lg_u32 s5, 0"); e("s_cbranch_scc1 L_C1")
    lp = g.newlab("Le")
    e(f"s_mov_b32 s7, {SPIN}")
    g.label(lp)
    e("s_load_dword s6, s[36:37], 0 glc")
    e("s_sub_u32 s7, s7, 1"); e("s_cbranch_scc1 L_fail")
    e("s_waitcnt lgkmcnt(0)")
    e("s_cmp_lt_u32 s6, 16"); e(f"s_cbranch_scc1 {lp}")
    g.label("L_C1")
    for r in range(4): e(f"v_mov_b32 v{36+r}, 0")
    e(f"s_lshl_b32 s6, s{S_WAVE}, 8"); e("v_add_u32 v120, s6, v1"); e("v_lshlrev_b32 v121, 2, v0"); e("v_lshlrev_b32 v3, 16, v3")
    if csleep:
        lp = g.newlab("Lf0")
        e(f"s_mov_b32 s7, {SPIN}")
        e("s_mov_b64 exec, 1")
        g.label(lp)
        e(f"s_sleep {csleep}")
        e(f"buffer_load_dwordx4 v[24:27], v1, {WS}, s8 offen sc1")
        e("s_sub_u32 s7, s7, 1"); e("s_cbranch_scc1 L_fail")
        e("s_waitcnt vmcnt(0)")
        tagcheck(g, [24], 11)
        e("v_cmp_ne_u32 vcc, 0, v11"); e(f"s_cbranch_vccnz {lp}")
        e("s_mov_b64 exec, -1")
    lp = g.newlab("Lf")
    e(f"s_mov_b32 s7, {SPIN}")
    g.label(lp)
    for i in range(3):
        e(f"buffer_load_dwordx4 v[{24+4*i}:{27+4*i}], v1, {WS}, s8 offen offset:{1024*i} sc1")
    e("s_mov_b32 exec_hi, s57")
    e(f"buffer_load_dwordx4 v[36:39], v1, {WS}, s8 offen offset:3072 sc1")
    e("s_sub_u32 s7, s7, 1"); e("s_cbranch_scc1 L_fail")
    e("s_waitcnt vmcnt(0)")
    tagcheck(g, [36], 11)
    e("v_cmp_ne_u32 s[60:61], 0, v11")
    e("s_mov_b32 exec_hi, -1")
    tagcheck(g, [24, 28, 32], 11)
    e("v_cmp_ne_u32 vcc, 0, v11"); e("s_or_b64 vcc, vcc, s[60:61]"); e(f"s_cbranch_vccnz {lp}")
    if diag: e("s_mov_b32 s90, s7")
    g.stamp(5)
    for r in range(4): e(f"v_add_f32 v{24+r}, v{24+r}, v{28+r}")
    for r in range(4): e(f"v_add_f32 v{32+r}, v{32+r}, v{36+r}")
    for r in range(4): e(f"v_add_f32 v{24+r}, v{24+r}, v{32+r}")
    xreduce(g, "v_add_f32", [24, 25, 26, 27], [28, 29, 30, 31])
    e("s_mov_b64 exec, 0xffff")
    e(f"ds_write_b128 v120, v[24:27] offset:{L_RED}")
    e("s_mov_b64 exec, -1")
    e("s_waitcnt lgkmcnt(0)")
    e("s_barrier")
    e(f"s_cmp_eq_u32 s{S_WAVE}, 0"); e("s_cbranch_scc1 L_C2")
    e(f"s_cmp_lg_u32 s{S_WAVE}, 1"); e("s_cbranch_scc1 L_fin")
    e("s_cmp_lg_u32 s5, 0"); e("s_cbranch_scc1 L_fin")
    e("s_mov_b64 exec, 1")
    e(f"v_mov_b32 v10, s{S_T[0]}")
    e(f"buffer_store_dword v10, off, {WS}, 0 offset:{WS_E} sc1")
    e("s_mov_b64 exec, -1")
    e("s_branch L_fin")
    g.label("L_C2")
    for p in range(8): e(f"ds_read_b32 v{24+p}, v121 offset:{L_RED + 256*p}")
    e("s_waitcnt lgkmcnt(0)")
    e("v_add_f32 v24, v24, v25"); e("v_add_f32 v26, v26, v27"); e("v_add_f32 v28, v28, v29"); e("v_add_f32 v30, v30, v31")
    e("v_add_f32 v24, v24, v26"); e("v_add_f32 v28, v28, v30")
    e("v_cvt_pk_bf16_f32 v9, v24, v28")
    e("v_and_b32 v28, 0xffff0000, v9")
    e("v_mul_f32 v10, 0xbfb8aa3b, v28"); e("v_exp_f32 v10, v10"); e("v_lshlrev_b32 v24, 16, v9"); e("v_add_f32 v10, 1.0, v10"); e("v_rcp_f32 v10, v10"); g.nop(1)
    e("v_mul_f32 v10, v28, v10")
    e("v_cvt_pk_bf16_f32 v10, v10, v10"); e("v_lshlrev_b32 v10, 16, v10")
    e("v_mul_f32 v10, v24, v10")
    e("v_cvt_pk_bf16_f32 v10, v10, v10"); e("v_lshlrev_b32 v10, 16, v10")
    e("v_add_f32 v10, v3, v10")
    e("v_cvt_pk_bf16_f32 v10, v10, v10")
    e("buffer_store_short v10, v2, s[44:47], s9 offen")
    if pad:
        g.label("L_p2")
        e("s_memrealtime s[92:93]"); e("s_waitcnt lgkmcnt(0)"); e("s_sub_u32 s92, s92, s94"); e("s_cmp_lt_u32 s92, 5000"); e("s_cbranch_scc1 L_p2")
    g.stamp(9)
    g.label("L_fin")
    if diag:
        e("s_waitcnt vmcnt(0)")
        g.stamp(10)
        e("s_getreg_b32 s92, hwreg(HW_REG_XCC_ID)")
        e("s_waitcnt lgkmcnt(0)")
        e("s_lshl_b32 s6, s2, 3"); e(f"s_add_u32 s6, s6, s{S_WAVE}"); e("s_lshl_b32 s6, s6, 6"); e(f"s_add_u32 s6, s6, {WS_DIAG}")
        e("s_mov_b64 exec, 1"); e("v_mov_b32 v1, 0")
        for i in range(11):
            e(f"v_mov_b32 v2, s{64+2*i}"); e(f"buffer_store_dword v2, v1, {WS}, s6 offen offset:{4*i}")
        for i, sr in enumerate((90, 91, 92)):
            e(f"v_mov_b32 v2, s{sr}"); e(f"buffer_store_dword v2, v1, {WS}, s6 offen offset:{44+4*i}")
    g.label("L_end")
    e("s_endpgm")
    g.label("L_fail")
    e("s_endpgm")
    g.L += ['.section .rodata,"a"', ".p2align 6", f".amdhsa_kernel {NAME}_kernel",
            "  .amdhsa_next_free_vgpr 128", "  .amdhsa_next_free_sgpr 96", "  .amdhsa_accum_offset 128",
            "  .amdhsa_group_segment_fixed_size 0", "  .amdhsa_kernarg_size 96", "  .amdhsa_user_sgpr_count 2",
            "  .amdhsa_user_sgpr_kernarg_segment_ptr 1", "  .amdhsa_system_sgpr_workgroup_id_x 1",
            ".end_amdhsa_kernel"]
    return "\n".join(x for x in g.L if x is not None) + "\n"

def parse(cfg):
    kw = {}
    for t in cfg.split(","):
        if not t: continue
        k, v = t.split("=")
        kw[k] = v if k in ("pad", "NT") else int(v)
    return kw

if __name__ == "__main__":
    open(sys.argv[1], "w").write(gen(**parse(sys.argv[2] if len(sys.argv) > 2 else "")))
```

```python
import sys
NAME = "recurrent_scan__sliding_block_cached__glu_gated_glu__decode"
HEADER = open("cdna_kernels/" + NAME + ".s.ref").read().split("; @launch")[0]

WS_E  = 0x0
WS_QP = 0x1000
WS_GP = 0x11000
WS_OP = 0x50000
WS_SP = 0xD0000
WS_USED = 0x148000
WS_DIAG = 0x1000000
L_CNT = 0
L_ML  = 64
L_OO  = 1024
L_RED = 2048
L_Q   = 4096
L_XN  = 8192
L_K   = 12288
L_V   = 45056
LDS_BYTES = 77824
OWROW = 528
SPIN = 200000

class G:
    def __init__(s, diag):
        s.L = []; s.diag = diag; s.lab = 0
    def e(s, t): s.L.append("  " + t)
    def label(s, n): s.L.append(n + ":")
    def newlab(s, p="L"):
        s.lab += 1; return f"{p}_{s.lab}"
    def nop(s, n):
        while n > 0:
            k = min(n, 16); s.e(f"s_nop {k-1}"); n -= k
    def stamp(s, i):
        if s.diag: s.e(f"s_memrealtime s[{64+2*i}:{65+2*i}]")
    def srd(s, d, lo, size):
        s.e(f"s_mov_b32 s{d}, s{lo}"); s.e(f"s_mov_b32 s{d+1}, s{lo+1}")
        s.e(f"s_mov_b32 s{d+2}, {size:#x}"); s.e(f"s_mov_b32 s{d+3}, 0x20000")

S_WAVE = 4
S_T = [10, 11, 12, 13]
S_SELA = 14; S_SELB = 15
S_MSK = 3
WS = "s[52:55]"
V_M = 4; V_FF = 8; V_TMP = 12; V_ACC = 20; V_XX = 24; V_W = 56

def tagcheck(g, regs_list, acc):
    for k, r in enumerate(regs_list):
        g.e(f"v_perm_b32 v9, v{r+1}, v{r}, s{S_SELA}")
        g.e(f"v_perm_b32 v10, v{r+3}, v{r+2}, s{S_SELB}")
        if k == 0:
            g.e(f"v_bitop3_b32 v{acc}, v9, v10, s{S_T[0]} bitop3:0x56")
        else:
            g.e(f"v_bitop3_b32 v9, v9, v10, s{S_T[0]} bitop3:0x56")
            g.e(f"v_or_b32 v{acc}, v{acc}, v9")

def tagput(g, r):
    for i in range(4):
        g.e(f"v_bfi_b32 v{r+i}, v{V_FF}, s{S_T[i]}, v{r+i}")

def wave_sum(g, v, sdst):
    for ror in (8, 4, 2, 1):
        g.nop(2); g.e(f"v_add_f32_dpp v{v}, v{v}, v{v} row_ror:{ror} row_mask:0xf bank_mask:0xf")
    g.nop(2); g.e(f"v_add_f32_dpp v{v}, v{v}, v{v} row_bcast:15 row_mask:0xa bank_mask:0xf")
    g.nop(2); g.e(f"v_add_f32_dpp v{v}, v{v}, v{v} row_bcast:31 row_mask:0xc bank_mask:0xf")
    g.nop(1); g.e(f"v_readlane_b32 s{sdst}, v{v}, 63")

def xreduce(g, op, regs, tmps, steps=(16, 32)):
    for st in steps:
        for r, t in zip(regs, tmps): g.e(f"v_mov_b32 v{t}, v{r}")
        if len(regs) < 3: g.nop(3 - len(regs))
        for r, t in zip(regs, tmps): g.e(f"v_permlane{st}_swap_b32 v{t}, v{r}")
        if len(regs) < 2: g.nop(1)
        for r, t in zip(regs, tmps): g.e(f"{op} v{r}, v{t}, v{r}")

def layernorm(g, xr, xm):
    U = 28
    for i in range(8):
        g.e(f"v_lshlrev_b32 v{U+2*i}, 16, v{xr+i}")
        g.e(f"v_and_b32 v{U+2*i+1}, 0xffff0000, v{xr+i}")
    g.e(f"v_add_f32 v9, v{U}, v{U+1}"); g.e(f"v_add_f32 v10, v{U+2}, v{U+3}")
    for i in range(4, 16, 2):
        g.e(f"v_add_f32 v9, v9, v{U+i}"); g.e(f"v_add_f32 v10, v10, v{U+i+1}")
    g.e("v_add_f32 v9, v9, v10")
    wave_sum(g, 9, 6)
    g.e("v_mov_b32 v11, 0x3a800000")
    g.e("v_mov_b32 v9, 0")
    g.e("v_mul_f32 v3, s6, v11")
    g.e("v_mov_b32 v10, 0")
    for i in range(0, 16, 2):
        g.e(f"v_sub_f32 v{U+i}, v{U+i}, v3"); g.e(f"v_sub_f32 v{U+i+1}, v{U+i+1}, v3")
        g.e(f"v_fmac_f32 v9, v{U+i}, v{U+i}"); g.e(f"v_fmac_f32 v10, v{U+i+1}, v{U+i+1}")
    g.e("v_add_f32 v9, v9, v10")
    wave_sum(g, 9, 6)
    g.e(f"v_lshlrev_b32 v24, 16, v{xm}"); g.e(f"v_and_b32 v25, 0xffff0000, v{xm}")
    g.e("v_mul_f32 v9, s6, v11")
    g.e("v_cvt_pk_bf16_f32 v9, v9, v3")
    g.e("v_and_b32 v3, 0xffff0000, v9")
    g.e("v_lshlrev_b32 v9, 16, v9")
    g.e("v_add_f32 v9, 0x3727c5ac, v9")
    g.e("v_cvt_pk_bf16_f32 v9, v9, v9"); g.e("v_lshlrev_b32 v9, 16, v9")
    g.e("v_sqrt_f32 v9, v9")
    g.e(f"v_lshlrev_b32 v26, 16, v{xm+1}"); g.e(f"v_and_b32 v27, 0xffff0000, v{xm+1}")
    g.e("v_cvt_pk_bf16_f32 v9, v9, v9"); g.e("v_lshlrev_b32 v9, 16, v9")
    g.e("v_rcp_f32 v9, v9")
    for i in range(4): g.e(f"v_sub_f32 v{24+i}, v{24+i}, v3")
    g.e("v_cvt_pk_bf16_f32 v10, v24, v25"); g.e("v_cvt_pk_bf16_f32 v11, v26, v27")
    g.e("v_lshlrev_b32 v24, 16, v10"); g.e("v_and_b32 v25, 0xffff0000, v10"); g.e("v_lshlrev_b32 v26, 16, v11"); g.e("v_and_b32 v27, 0xffff0000, v11")
    for i in range(4): g.e(f"v_mul_f32 v{24+i}, v{24+i}, v9")
    for i in range(4): g.e(f"v_cvt_pk_bf16_f32 v{24+i}, v{24+i}, v{24+i}")

def gemv_step(g, i, xx):
    t = V_TMP + 4 * (i & 1)
    for r in range(4): g.e(f"v_and_b32 v{t+r}, v{xx}, v{V_M+r}")
def gemv_mfma(g, i, w, first):
    t = V_TMP + 4 * (i & 1)
    c = "0" if first else f"v[{V_ACC}:{V_ACC+3}]"
    g.e(f"v_mfma_f32_16x16x32_bf16 v[{V_ACC}:{V_ACC+3}], v[{t}:{t+3}], v[{w}:{w+3}], {c}")

def lds_arrive(g, off, rtn=None):
    g.e("s_mov_b64 exec, 1")
    g.e("v_mov_b32 v9, 0"); g.e("v_mov_b32 v10, 1")
    if rtn is None:
        g.e(f"ds_add_u32 v9, v10 offset:{off}")
    else:
        g.e(f"ds_add_rtn_u32 v10, v9, v10 offset:{off}")
        g.e("s_waitcnt lgkmcnt(0)")
        g.e(f"v_readfirstlane_b32 s{rtn}, v10")
    g.e("s_mov_b64 exec, -1")

def lds_spin(g, off, target):
    lp = g.newlab("Lsp")
    g.e(f"s_mov_b32 s7, {SPIN}")
    g.e("v_mov_b32 v9, 0")
    g.label(lp)
    g.e(f"ds_read_b32 v10, v9 offset:{off}")
    g.e("s_sub_u32 s7, s7, 1"); g.e("s_cbranch_scc1 L_fail")
    g.e("s_waitcnt lgkmcnt(0)")
    g.e("v_readfirstlane_b32 s6, v10")
    g.e(f"s_cmp_lt_u32 s6, {target}"); g.e(f"s_cbranch_scc1 {lp}")

def poll(g, depth, nload, base, issue, check, take, gap=2, noretry=False):
    e = g.e; sz = 4 * nload
    lp = g.newlab("Lp"); done = g.newlab("Lpd")
    e(f"s_mov_b32 s7, {SPIN}")
    for k in range(depth - 1):
        issue(base + sz * k); e(f"s_sleep {gap}")
    oks = [g.newlab("Lpk") for _ in range(depth)]
    g.label(lp)
    for k in range(depth):
        issue(base + sz * ((k + depth - 1) % depth))
        if k == 0: e("s_sub_u32 s7, s7, 1"); e("s_cbranch_scc1 L_fail")
        e(f"s_waitcnt vmcnt({nload * (depth - 1)})")
        check(base + sz * k)
        if k < depth - 1: e(f"s_cbranch_vccz {oks[k]}")
        elif not noretry: e(f"s_cbranch_vccnz {lp}")
    for k in reversed(range(depth)):
        if k < depth - 1: g.label(oks[k])
        take(base + sz * k)
        if k > 0: e(f"s_branch {done}")
    g.label(done)

def make_tag(g):
    g.e(f"v_readfirstlane_b32 s{S_T[0]}, v124")
    g.nop(1)
    g.e(f"s_add_u32 s{S_T[0]}, s{S_T[0]}, 0x9e3779b9")
    for i in range(1, 4): g.e(f"s_lshr_b32 s{S_T[i]}, s{S_T[0]}, {8*i}")

def masks(g):
    e = g.e
    e("v_and_b32 v1, 1, v0"); e("v_lshlrev_b32 v1, 4, v1"); e("v_mov_b32 v2, 0xffff"); e("v_lshlrev_b32 v2, v1, v2")
    e("v_bfe_u32 v1, v0, 1, 2")
    for r in range(4):
        e(f"v_cmp_eq_u32 vcc, {r}, v1"); g.nop(2); e(f"v_cndmask_b32 v{V_M+r}, 0, v2, vcc")
    e(f"v_mov_b32 v{V_FF}, 0xff")
    e(f"s_mov_b32 s{S_SELA}, 0x0c0c0400"); e(f"s_mov_b32 s{S_SELB}, 0x04000c0c"); e(f"s_mov_b32 s{S_MSK}, 0xffffff00")

def gen(diag=False, WA=10, WB1=2, WB2=8, WBsw=8, WYA=4, WYB=6, b2=2, HB=3, pad=None, NT=" nt", dbg=0, ackw=0, rot=1,
        PREA=6, PREB=2, qd=99, PO=1, PH=1, PC=1, gap=2):
    g = G(diag); e = g.e
    ST = "sc1"; LD = "sc1"
    g.L.append(HEADER.rstrip("\n"))
    g.L.append(f"; @launch grid=(256,1,1) block=(512,1,1) lds={LDS_BYTES}")
    g.L.append('.amdgcn_target "amdgcn-amd-amdhsa--gfx950"')
    g.L += [".text", f".globl {NAME}_kernel", ".p2align 8", f".type {NAME}_kernel,@function", f"{NAME}_kernel:"]
    def mapA(dst):
        if rot: e(f"s_and_b32 s{dst}, s2, 7"); e(f"s_lshl_b32 s{dst}, s{dst}, 4"); e("s_lshr_b32 s6, s2, 3"); e(f"s_add_u32 s{dst}, s{dst}, s6")
        else: e(f"s_mov_b32 s{dst}, s2")
    def mapAq(dst, a):
        if rot: e(f"s_add_u32 s{dst}, s{a}, 32"); e(f"s_and_b32 s{dst}, s{dst}, 127")
        else: e(f"s_mov_b32 s{dst}, s{a}")
    def mapAo(dst):
        if rot:
            e("s_bfe_u32 s6, s2, 0x10002"); e(f"s_lshl_b32 s{dst}, s6, 1"); e(f"s_add_u32 s{dst}, s{dst}, s2"); e(f"s_add_u32 s{dst}, s{dst}, 1")
            e(f"s_and_b32 s{dst}, s{dst}, 3"); e(f"s_lshl_b32 s{dst}, s{dst}, 4"); e("s_lshr_b32 s7, s2, 3"); e(f"s_add_u32 s{dst}, s{dst}, s7")
            e(f"s_lshl_b32 s{dst}, s{dst}, 1"); e(f"s_add_u32 s{dst}, s{dst}, s6")
        else: e(f"s_mov_b32 s{dst}, s2")
    def mapB(dst):
        if rot: e("s_sub_u32 s6, s2, 128"); e(f"s_and_b32 s{dst}, s6, 7"); e(f"s_mul_i32 s{dst}, s{dst}, 14"); e("s_lshr_b32 s6, s6, 3"); e(f"s_add_u32 s{dst}, s{dst}, s6")
        else: e(f"s_sub_u32 s{dst}, s2, 128")
    def mapBd(dst):
        if rot:
            e("s_and_b32 s6, s2, 7"); e("s_lshl_b32 s6, s6, 2"); e(f"s_lshr_b32 s{dst}, {JTAB:#x}, s6"); e(f"s_and_b32 s{dst}, s{dst}, 3")
            e(f"s_mul_i32 s{dst}, s{dst}, 14"); e("s_sub_u32 s7, s2, 128"); e("s_lshr_b32 s7, s7, 3"); e(f"s_add_u32 s{dst}, s{dst}, s7")
            e(f"s_lshl_b32 s{dst}, s{dst}, 1"); e("s_bfe_u32 s6, s2, 0x10002"); e(f"s_add_u32 s{dst}, s{dst}, s6")
        else: e(f"s_sub_u32 s{dst}, s2, 128")
    def mapC(dst):
        if rot:
            e(f"s_and_b32 s{dst}, s2, 7"); e(f"s_xor_b32 s{dst}, s{dst}, 4"); e(f"s_lshl_b32 s{dst}, s{dst}, 1"); e("s_bfe_u32 s6, s2, 0x10003"); e(f"s_add_u32 s{dst}, s{dst}, s6")
        else: e(f"s_sub_u32 s{dst}, s2, 240")
    JT = [1, 2, 3, 0, 3, 0, 1, 2]
    JTAB = sum(j << (4 * x) for x, j in enumerate(JT))

    g.stamp(0)
    if pad: e("s_memrealtime s[94:95]")
    e("s_cmp_ge_u32 s2, 256"); e("s_cbranch_scc1 L_end")
    e("s_load_dwordx16 s[16:31], s[0:1], 0"); e("s_load_dwordx8 s[32:39], s[0:1], 64")
    e("v_lshrrev_b32 v1, 6, v0"); e("v_and_b32 v0, 63, v0")
    e(f"v_readfirstlane_b32 s{S_WAVE}, v1")
    masks(g)
    e(f"s_mov_b32 s54, {(WS_DIAG + 0x100000 if diag else WS_USED):#x}"); e("s_mov_b32 s55, 0x20000")
    e("s_mov_b32 s43, 0x20000")
    e("s_cmp_ge_u32 s2, 240"); e("s_cbranch_scc1 L_C")
    e(f"s_cmp_ge_u32 s{S_WAVE}, 4"); e("s_cbranch_scc1 L_Y")
    e("v_lshrrev_b32 v2, 4, v0"); e("v_and_b32 v3, 15, v0")
    e("s_cmp_ge_u32 s2, 128"); e("s_cbranch_scc1 L_BX")
    mapA(5); mapAq(59, 5)
    e("v_lshlrev_b32 v1, 17, v2"); e("v_lshl_add_u32 v1, v3, 4, v1")
    e("s_and_b32 s6, s59, 3"); e("s_lshl_b32 s6, s6, 2"); e(f"s_add_u32 s6, s6, s{S_WAVE}")
    e("s_lshl_b32 s8, s6, 19"); e("s_lshr_b32 s7, s59, 2"); e("s_lshl_b32 s7, s7, 8"); e("s_add_u32 s8, s8, s7")
    e("s_lshl_b32 s9, s6, 8")
    e("v_lshl_add_u32 v120, v2, 6, s9")
    e("s_mov_b32 s42, 0x800000")
    e("s_waitcnt lgkmcnt(0)")
    e("s_mov_b32 s40, s22"); e("s_mov_b32 s41, s23")
    e("s_mov_b32 s52, s38"); e("s_mov_b32 s53, s39")
    def issue_A(k):
        if k < 16:
            e(f"buffer_load_dwordx4 v[{V_W+4*k}:{V_W+4*k+3}], v1, s[40:43], s8 offen{NT}")
            if k < 15: e("s_add_u32 s8, s8, 0x2000")
        elif k < 24:
            j = k - 16
            e(f"s_mov_b32 m0, s58")
            e(f"v_xor_b32 v123, {64*(j&3)}, v121")
            e(f"buffer_load_dwordx4 v123, s[44:47], s56 offen{NT} lds")
            e(f"s_add_u32 s58, s58, {1024 if j < 7 else L_V - L_K - 7168}")
            e(f"s_add_u32 s56, s56, 1024" if j < 7 else "s_sub_u32 s56, s56, 7168")
        else:
            j = k - 24
            e(f"s_mov_b32 m0, s58")
            e(f"v_xor_b32 v123, {128*(j&1)}, v122")
            e(f"buffer_load_dwordx4 v123, s[60:63], s56 offen{NT} lds")
            if j < 7: e("s_add_u32 s58, s58, 1024"); e("s_add_u32 s56, s56, 1024")
    for k in range(WA): issue_A(k)
    e(f"buffer_load_dword v124, off, {WS}, 0 offset:{WS_E} sc1")
    e("s_setprio 3")
    g.srd(44, 18, 67108864); g.srd(60, 20, 67108864)
    e("s_lshr_b32 s56, s5, 5"); e("s_lshl_b32 s56, s56, 24"); e("s_and_b32 s7, s5, 31"); e("s_lshl_b32 s7, s7, 15"); e("s_add_u32 s56, s56, s7")
    e(f"s_lshl_b32 s7, s{S_WAVE}, 13"); e("s_add_u32 s56, s56, s7"); e(f"s_add_u32 s56, s56, {61440*256}")
    e(f"s_add_u32 s58, s7, {L_K}")
    e("v_xor_b32 v10, v2, v3"); e("v_lshlrev_b32 v10, 4, v10"); e("v_lshl_add_u32 v121, v2, 8, v10")
    e("v_lshlrev_b32 v10, 1, v2"); e("v_xor_b32 v10, v10, v3"); e("v_lshlrev_b32 v10, 4, v10")
    e("v_lshl_add_u32 v122, v2, 8, v10")
    def pos(k): return k if k < WA else k + 1
    nis = WA
    PRE = min(32, WA + PREA)
    while nis < PRE:
        e(f"s_waitcnt vmcnt({WA-1})"); issue_A(nis); nis += 1
    e("s_barrier")
    for i in range(4):
        e(f"ds_read_b128 v[{V_XX+4*i}:{V_XX+4*i+3}], v120 offset:{L_XN + 16*i}")
    e("s_waitcnt lgkmcnt(3)")
    g.stamp(2)
    gemv_step(g, 0, V_XX)
    for i in range(16):
        if i == 2: e("s_waitcnt lgkmcnt(0)")
        if i < 15: gemv_step(g, i + 1, V_XX + i + 1)
        e(f"s_waitcnt vmcnt({pos(nis-1) - pos(i)})")
        if nis < i + 1 + WA and nis < 32:
            issue_A(nis); nis += 1
        gemv_mfma(g, i, V_W + 4 * i, i == 0)
    g.stamp(3)
    make_tag(g)
    e("v_lshlrev_b32 v1, 5, v3"); e("v_lshl_add_u32 v1, v2, 4, v1")
    e(f"s_lshl_b32 s6, s{S_WAVE}, 9"); e("v_add_u32 v11, s6, v1")
    e("s_mov_b32 exec_hi, 0")
    e(f"ds_write_b128 v11, v[{V_ACC}:{V_ACC+3}] offset:{L_RED}")
    lds_arrive(g, L_CNT + 0, rtn=6)
    skip = g.newlab("Lnl")
    e("s_cmp_lg_u32 s6, 3"); e(f"s_cbranch_scc1 {skip}")
    e("s_mov_b32 exec_hi, 0")
    e("v_lshlrev_b32 v1, 4, v0")
    for p in range(4): e(f"ds_read_b128 v[{24+4*p}:{27+4*p}], v1 offset:{L_RED + 512*p}")
    e("s_lshr_b32 s6, s59, 5"); e("s_lshl_b32 s6, s6, 14"); e("s_and_b32 s7, s59, 3"); e("s_lshl_b32 s7, s7, 12"); e("s_add_u32 s6, s6, s7")
    e("s_bfe_u32 s7, s59, 0x30002"); e("s_lshl_b32 s7, s7, 9"); e("s_add_u32 s6, s6, s7"); e(f"s_add_u32 s6, s6, {WS_QP}")
    e("s_waitcnt lgkmcnt(2)")
    for r in range(4): e(f"v_add_f32 v{24+r}, v{24+r}, v{28+r}")
    e("s_waitcnt lgkmcnt(0)")
    for r in range(4): e(f"v_add_f32 v{32+r}, v{32+r}, v{36+r}")
    for r in range(4): e(f"v_add_f32 v{20+r}, v{24+r}, v{32+r}")
    tagput(g, V_ACC)
    if not dbg & 16: e(f"buffer_store_dwordx4 v[{V_ACC}:{V_ACC+3}], v1, {WS}, s6 offen {ST}")
    e("s_mov_b64 exec, -1")
    g.label(skip)
    g.stamp(4)
    while nis < 32:
        e(f"s_waitcnt vmcnt({WA-1})"); issue_A(nis); nis += 1
    if b2 == 0: e("s_barrier")
    e("v_xor_b32 v10, v2, v3"); e("v_lshlrev_b32 v10, 4, v10"); e("v_lshl_add_u32 v1, v3, 8, v10")
    e(f"s_lshl_b32 s58, s{S_WAVE}, 13")
    e("s_lshr_b32 s8, s5, 5"); e("s_lshl_b32 s8, s8, 14"); e(f"s_lshl_b32 s7, s{S_WAVE}, 10"); e("s_add_u32 s8, s8, s7"); e(f"s_add_u32 s8, s8, {WS_QP}")
    e("s_add_u32 s9, s8, 4096"); e("s_add_u32 s56, s8, 8192"); e("s_add_u32 s57, s8, 12288")
    e("v_lshlrev_b32 v120, 4, v0")
    e("s_waitcnt vmcnt(8)")
    for s in range(4):
        e(f"v_xor_b32 v10, {64*s}, v1"); e("v_add_u32 v10, s58, v10")
        for u in range(2):
            e(f"ds_read_b128 v[{V_W+16*u+4*s}:{V_W+16*u+4*s+3}], v10 offset:{L_K + 4096*u}")
    e("v_lshrrev_b32 v1, 2, v0")
    e("v_and_b32 v2, 7, v1"); e("v_lshlrev_b32 v2, 5, v2")
    e("v_and_b32 v3, 3, v0"); e("v_lshlrev_b32 v3, 3, v3")
    e("v_lshl_add_u32 v1, v1, 8, v3"); e("v_add_u32 v1, s58, v1")
    VV = V_W + 32
    for t in range(8):
        e(f"v_xor_b32 v3, {32*t}, v2"); e(f"v_add_u32 v{VV+4*t+3}, v3, v1")
    e("v_lshrrev_b32 v1, 5, v0"); e(f"s_lshl_b32 s6, s{S_WAVE}, 1"); e("v_add_u32 v1, s6, v1")
    e("v_and_b32 v2, 31, v0")
    e("v_mul_u32_u24 v121, 272, v1"); e("v_lshl_add_u32 v121, v2, 3, v121")
    e(f"v_mul_u32_u24 v125, {OWROW}, v1"); e("v_lshl_add_u32 v125, v2, 4, v125")
    e("v_lshlrev_b32 v126, 3, v1")
    e("v_and_b32 v1, 7, v0"); e("v_and_b32 v2, 48, v0")
    e("v_mul_u32_u24 v122, 272, v1"); e("v_add_u32 v122, v122, v2")
    e(f"v_mul_u32_u24 v123, {OWROW}, v1"); e("v_add3_u32 v123, v123, v2, s58")
    e("v_and_b32 v1, 15, v0")
    e(f"s_lshl_b32 s6, s{S_WAVE}, 7"); e("v_lshl_add_u32 v124, v1, 3, s6")
    e("v_lshrrev_b32 v2, 4, v0"); e("v_lshlrev_b32 v2, 13, v2"); e("v_lshl_add_u32 v127, v1, 4, v2")
    e("v_mov_b32 v12, 0x3f803f80"); e("v_mov_b32 v13, v12"); e("v_mov_b32 v14, v12"); e("v_mov_b32 v15, v12")
    g.stamp(1)
    if qd < 8: e(f"s_waitcnt vmcnt({qd})")
    lp = g.newlab("Lq"); lq1 = g.newlab("Lq1")
    e(f"s_mov_b32 s7, {SPIN}")
    def qissue():
        for i, so in enumerate(("s8", "s9", "s56", "s57") if not dbg & 1 else ()):
            e(f"buffer_load_dwordx4 v[{24+4*i}:{27+4*i}], v120, {WS}, {so} offen {LD}")
    if b2 == 1:
        qissue(); e("s_barrier"); e(f"s_branch {lq1}")
    g.label(lp)
    qissue()
    g.label(lq1)
    e("s_sub_u32 s7, s7, 1"); e("s_cbranch_scc1 L_fail")
    e("s_waitcnt vmcnt(0)")
    tagcheck(g, [24, 28, 32, 36], 11)
    e("v_cmp_ne_u32 vcc, 0, v11")
    if not dbg & 33: e(f"s_cbranch_vccnz {lp}")
    if diag: e("s_mov_b32 s90, s7")
    g.stamp(5)
    for r in range(16): e(f"v_and_b32 v{24+r}, s{S_MSK}, v{24+r}")
    for r in range(0, 4, 2): e(f"v_pk_add_f32 v[{24+r}:{25+r}], v[{24+r}:{25+r}], v[{28+r}:{29+r}]")
    for r in range(0, 4, 2): e(f"v_pk_add_f32 v[{32+r}:{33+r}], v[{32+r}:{33+r}], v[{36+r}:{37+r}]")
    for r in range(0, 4, 2): e(f"v_pk_add_f32 v[{24+r}:{25+r}], v[{24+r}:{25+r}], v[{32+r}:{33+r}]")
    e("v_cvt_pk_bf16_f32 v24, v24, v25"); e("v_cvt_pk_bf16_f32 v25, v26, v27")
    e(f"ds_write_b64 v121, v[24:25] offset:{L_Q}")
    if b2 == 2:
        e("s_waitcnt lgkmcnt(0)"); e("s_barrier")
    else:
        lds_arrive(g, L_CNT + 4)
        lds_spin(g, L_CNT + 4, 4)
    for s in range(4):
        e(f"ds_read_b128 v[{24+4*s}:{27+4*s}], v122 offset:{L_Q + 64*s}")
    def vtr(t):
        e(f"ds_read_b64_tr_b16 v[{VV+4*t}:{VV+4*t+1}], v{VV+4*t+3} offset:{L_V}")
        e(f"ds_read_b64_tr_b16 v[{VV+4*t+2}:{VV+4*t+3}], v{VV+4*t+3} offset:{L_V + 4096}")
    vtr(0); vtr(1); vtr(2); vtr(3)
    e("s_mov_b32 s6, 0x3db504f3")
    e("s_mov_b32 s7, 0x3fb8aa3b")
    for s in range(4):
        e(f"s_waitcnt lgkmcnt({8 + 3 - s})")
        for u in range(2):
            c = "0" if s == 0 else f"v[{40+4*u}:{43+4*u}]"
            e(f"v_mfma_f32_16x16x32_bf16 v[{40+4*u}:{43+4*u}], v[{V_W+16*u+4*s}:{V_W+16*u+4*s+3}], v[{24+4*s}:{27+4*s}], {c}")
    vtr(4); vtr(5); vtr(6); e("s_waitcnt lgkmcnt(13)"); vtr(7)
    for i in range(0, 8, 2):
        e(f"v_cvt_pk_bf16_f32 v9, v{40+i}, v{41+i}")
        e(f"v_lshlrev_b32 v{40+i}, 16, v9"); e(f"v_and_b32 v{41+i}, 0xffff0000, v9")
        e(f"v_mul_f32 v{40+i}, s6, v{40+i}"); e(f"v_mul_f32 v{41+i}, s6, v{41+i}")
        e(f"v_cvt_pk_bf16_f32 v9, v{40+i}, v{41+i}")
        e(f"v_lshlrev_b32 v{40+i}, 16, v9"); e(f"v_and_b32 v{41+i}, 0xffff0000, v9")
    e("v_max3_f32 v9, v40, v41, v42"); e("v_max3_f32 v10, v43, v44, v45"); e("v_max3_f32 v9, v9, v46, v47"); e("v_max_f32 v16, v9, v10")
    xreduce(g, "v_max_f32", [16], [9])
    e("v_mul_f32 v16, s7, v16")
    for i in range(8): e(f"v_fma_f32 v{40+i}, v{40+i}, s7, -v16")
    for i in range(8): e(f"v_exp_f32 v{40+i}, v{40+i}")
    for i in range(4): e(f"v_cvt_pk_bf16_f32 v{48+i}, v{40+2*i}, v{41+2*i}")
    e("s_waitcnt lgkmcnt(0)")
    g.nop(1)
    e(f"v_mfma_f32_16x16x32_bf16 v[20:23], v[12:15], v[48:51], 0")
    O = V_W
    for t in range(8):
        e(f"v_mfma_f32_16x16x32_bf16 v[{O+4*t}:{O+4*t+3}], v[{VV+4*t}:{VV+4*t+3}], v[48:51], 0")
    e("v_mov_b32 v17, v20")
    e("s_mov_b32 exec_lo, 0x00ff00ff"); e("s_mov_b32 exec_hi, 0x00ff00ff")
    e(f"ds_write_b64 v124, v[16:17] offset:{L_ML}")
    for t in range(8):
        e(f"ds_write_b128 v123, v[{O+4*t}:{O+4*t+3}] offset:{L_K + 64*t}")
    lds_arrive(g, L_CNT + 8)
    g.stamp(6)
    e("s_lshr_b32 s8, s5, 5"); e("s_lshl_b32 s8, s8, 17"); e(f"s_lshl_b32 s7, s{S_WAVE}, 15"); e("s_add_u32 s8, s8, s7")
    e("s_and_b32 s7, s5, 31"); e("s_lshl_b32 s7, s7, 8"); e("s_add_u32 s8, s8, s7"); e(f"s_add_u32 s8, s8, {WS_OP}")
    e(f"v_mov_b32 v23, s{S_T[0]}")
    lds_spin(g, L_CNT + 8, 4)
    for w in range(4): e(f"ds_read_b64 v[{24+2*w}:{25+2*w}], v126 offset:{L_ML + 128*w}")
    for w in range(4): e(f"ds_read_b128 v[{32+4*w}:{35+4*w}], v125 offset:{L_K + 8192*w}")
    e("s_waitcnt lgkmcnt(4)")
    e("v_max3_f32 v16, v24, v26, v28"); e("v_max_f32 v16, v16, v30")
    for w in range(4): e(f"v_sub_f32 v{24+2*w}, v{24+2*w}, v16")
    for w in range(4): e(f"v_exp_f32 v{24+2*w}, v{24+2*w}")
    e("v_mul_f32 v17, v24, v25"); e("v_fmac_f32 v17, v26, v27"); e("v_fmac_f32 v17, v28, v29"); e("v_fmac_f32 v17, v30, v31")
    e("v_rcp_f32 v18, v17"); e("v_log_f32 v17, v17")
    e("s_waitcnt lgkmcnt(0)")
    for r in range(4): e(f"v_mul_f32 v{32+r}, v24, v{32+r}")
    for w in range(1, 4):
        for r in range(4): e(f"v_fmac_f32 v{32+r}, v{24+2*w}, v{32+4*w+r}")
    for r in range(4): e(f"v_mul_f32 v{32+r}, v18, v{32+r}")
    e("v_add_f32 v22, v16, v17")
    e("v_cvt_pk_bf16_f32 v20, v32, v33"); e("v_cvt_pk_bf16_f32 v21, v34, v35")
    if not dbg & 16: e(f"buffer_store_dwordx4 v[20:23], v127, {WS}, s8 offen {ST}")
    g.stamp(7)
    mapAo(5)
    e("s_lshr_b32 s8, s5, 1"); e("s_lshl_b32 s8, s8, 13"); e(f"s_lshl_b32 s7, s{S_WAVE}, 6"); e("s_add_u32 s8, s8, s7"); e(f"s_add_u32 s8, s8, {WS_OP}")
    e("s_add_u32 s9, s8, 4096")
    e("v_lshrrev_b32 v1, 2, v0"); e("v_lshlrev_b32 v1, 8, v1"); e("v_and_b32 v2, 3, v0"); e("v_lshl_add_u32 v1, v2, 4, v1")
    e(f"s_lshl_b32 s6, s{S_WAVE}, 6"); e("v_lshl_add_u32 v2, v0, 4, s6")
    if ackw & 1: e("s_waitcnt vmcnt(0)")
    def o_issue(rb):
        if dbg & 2: return
        e(f"buffer_load_dwordx4 v[{rb}:{rb+3}], v1, {WS}, s8 offen {LD}")
        e(f"buffer_load_dwordx4 v[{rb+4}:{rb+7}], v1, {WS}, s9 offen {LD}")
    def o_check(rb):
        e(f"v_xor_b32 v9, s{S_T[0]}, v{rb+3}"); e(f"v_xor_b32 v10, s{S_T[0]}, v{rb+7}"); e("v_or_b32 v9, v9, v10")
        e("v_cmp_ne_u32 vcc, 0, v9")
    def o_take(rb):
        e(f"v_max_f32 v16, v{rb+2}, v{rb+6}")
        e(f"v_lshlrev_b32 v32, 16, v{rb}"); e(f"v_and_b32 v33, 0xffff0000, v{rb}")
        e(f"v_max_f32_dpp v16, v16, v16 row_ror:4 row_mask:0xf bank_mask:0xf")
        e(f"v_lshlrev_b32 v34, 16, v{rb+1}"); e(f"v_and_b32 v35, 0xffff0000, v{rb+1}")
        e(f"v_max_f32_dpp v16, v16, v16 row_ror:8 row_mask:0xf bank_mask:0xf")
        e(f"v_lshlrev_b32 v40, 16, v{rb+4}"); e(f"v_and_b32 v41, 0xffff0000, v{rb+4}")
        e("v_mov_b32 v9, v16")
        e(f"v_lshlrev_b32 v42, 16, v{rb+5}"); e(f"v_and_b32 v43, 0xffff0000, v{rb+5}")
        e("v_permlane16_swap_b32 v9, v16")
        e(f"v_mov_b32 v26, v{rb+2}")
        e("v_max_f32 v16, v9, v16")
        e("v_mov_b32 v9, v16")
        e(f"v_mov_b32 v30, v{rb+6}")
    poll(g, PO, 2, 56, o_issue, o_check, o_take, gap, noretry=bool(dbg & 34))
    if diag: e("s_mov_b32 s91, s7")
    g.stamp(8)
    g.nop(1)
    e("v_permlane32_swap_b32 v9, v16"); g.nop(1); e("v_max_f32 v16, v9, v16")
    e("v_sub_f32 v26, v26, v16"); e("v_sub_f32 v30, v30, v16")
    e("v_exp_f32 v26, v26"); e("v_exp_f32 v30, v30"); g.nop(1)
    e("v_add_f32 v36, v26, v30")
    for r in range(4): e(f"v_mul_f32 v{32+r}, v26, v{32+r}")
    for r in range(4): e(f"v_fmac_f32 v{32+r}, v30, v{40+r}")
    for ror in (4, 8):
        for r in (36, 32, 33, 34, 35): e(f"v_add_f32_dpp v{r}, v{r}, v{r} row_ror:{ror} row_mask:0xf bank_mask:0xf")
    xreduce(g, "v_add_f32", [36, 32, 33, 34, 35], [44, 40, 41, 42, 43])
    e("v_rcp_f32 v36, v36"); g.nop(1)
    for r in range(4): e(f"v_mul_f32 v{32+r}, v36, v{32+r}")
    for r in range(4): e(f"v_cvt_pk_bf16_f32 v{32+r}, v{32+r}, v{32+r}")
    e("s_mov_b64 exec, 15")
    e(f"ds_write_b128 v2, v[32:35] offset:{L_OO}")
    lds_arrive(g, L_CNT + 12)
    g.stamp(9)
    e("s_branch L_fin")

    g.label("L_BX")
    mapB(5)
    e(f"s_mov_b32 s6, {32*7168}"); e("v_mul_lo_u32 v1, v2, s6"); e("v_lshl_add_u32 v1, v3, 4, v1")
    e("s_bfe_u32 s9, s5, 0x30001")
    e(f"s_mul_i32 s8, s9, {128*7168}"); e("s_lshr_b32 s7, s5, 4"); e("s_lshl_b32 s7, s7, 2"); e(f"s_add_u32 s7, s7, s{S_WAVE}")
    e("s_lshl_b32 s56, s7, 9")
    e("s_lshl_b32 s7, s7, 8"); e("s_add_u32 s8, s8, s7")
    e("s_lshl_b32 s7, s9, 9"); e("v_lshl_add_u32 v120, v2, 7, s7")
    e("s_mov_b32 s42, 7340032")
    e("s_and_b32 s6, s5, 1"); e("s_cmp_eq_u32 s6, 0")
    e("s_waitcnt lgkmcnt(0)")
    e("s_cselect_b32 s40, s28, s30"); e("s_cselect_b32 s41, s29, s31")
    e("s_mov_b32 s52, s38"); e("s_mov_b32 s53, s39")
    g.stamp(1)
    def issue_B(k):
        r = V_W + 4 * (k & 15)
        e(f"buffer_load_dwordx4 v[{r}:{r+3}], v1, s[40:43], s8 offen{NT}")
        if k < 31: e("s_add_u32 s8, s8, 7168")
    for k in range(WB1): issue_B(k)
    e(f"buffer_load_dword v124, off, {WS}, 0 offset:{WS_E} sc1")
    e("s_setprio 3")
    e("s_lshl_b32 s6, s6, 3"); e("s_add_u32 s6, s6, s9"); e("s_mul_i32 s6, s6, 14336"); e("s_add_u32 s56, s56, s6"); e(f"s_add_u32 s56, s56, {WS_GP}")
    e("v_lshlrev_b32 v121, 5, v3"); e("v_lshl_add_u32 v121, v2, 4, v121")
    e("v_lshrrev_b32 v122, 2, v0"); e("v_mul_u32_u24 v122, 14336, v122"); e("v_and_b32 v9, 3, v0"); e("v_lshl_add_u32 v122, v9, 4, v122")
    mapBd(57)
    e("s_lshr_b32 s57, s57, 1"); e("s_lshl_b32 s57, s57, 8"); e(f"s_lshl_b32 s6, s{S_WAVE}, 6"); e("s_add_u32 s57, s57, s6"); e(f"s_add_u32 s57, s57, {WS_GP}")
    e("v_lshl_add_u32 v123, v0, 4, s6")
    def posb(k): return k if k < WB1 else k + 1
    nis = WB1
    PRE = min(15, WB1 + PREB)
    while nis < PRE:
        e(f"s_waitcnt vmcnt({WB1-1})"); issue_B(nis); nis += 1
    e("s_barrier")
    for i in range(8):
        e(f"ds_read_b128 v[{V_XX+4*i}:{V_XX+4*i+3}], v120 offset:{L_XN + 16*i}")
    e("s_waitcnt lgkmcnt(7)")
    g.stamp(2)
    gemv_step(g, 0, V_XX)
    b2done = False
    for i in range(32):
        if i == 2: e("s_waitcnt lgkmcnt(0)")
        if i < 31: gemv_step(g, i + 1, V_XX + i + 1)
        e(f"s_waitcnt vmcnt({posb(nis-1) - posb(i)})")
        W = WB1 if i < WBsw else WB2
        while nis < 32 and nis < i + 1 + W:
            issue_B(nis); nis += 1
        if nis == 32 and not b2done and 31 - i <= HB:
            e("s_barrier"); b2done = True
        gemv_mfma(g, i, V_W + 4 * (i & 15), i == 0)
        if i == 20: make_tag(g)
    g.stamp(3)
    g.nop(7)
    e("s_mov_b32 exec_hi, 0")
    tagput(g, V_ACC)
    if not dbg & 16: e(f"buffer_store_dwordx4 v[20:23], v121, {WS}, s56 offen {ST}")
    e("s_mov_b64 exec, -1")
    g.stamp(4)
    if ackw & 2: e("s_waitcnt vmcnt(0)")
    def h_issue(rb):
        if not dbg & 4: e(f"buffer_load_dwordx4 v[{rb}:{rb+3}], v122, {WS}, s57 offen {LD}")
    def h_check(rb):
        tagcheck(g, [rb], 11); e("v_cmp_ne_u32 vcc, 0, v11")
    def h_take(rb):
        for r in range(4): e(f"v_and_b32 v{28+r}, s{S_MSK}, v{rb+r}")
    poll(g, PH, 1, 56, h_issue, h_check, h_take, gap, noretry=bool(dbg & 36))
    if diag: e("s_mov_b32 s90, s7")
    g.stamp(5)
    for ror in (4, 8):
        for r in range(28, 32): e(f"v_add_f32_dpp v{r}, v{r}, v{r} row_ror:{ror} row_mask:0xf bank_mask:0xf")
    xreduce(g, "v_add_f32", [28, 29, 30, 31], [32, 33, 34, 35], steps=(16,))
    e("v_cvt_pk_bf16_f32 v28, v28, v29"); e("v_cvt_pk_bf16_f32 v29, v30, v31")
    e("v_mov_b32 v30, v28"); e("v_mov_b32 v31, v29"); g.nop(1)
    e("v_permlane32_swap_b32 v28, v30"); e("v_permlane32_swap_b32 v29, v31")
    e("s_mov_b32 s7, 0xbfb8aa3b")
    e("v_lshlrev_b32 v32, 16, v28"); e("v_and_b32 v33, 0xffff0000, v28"); e("v_lshlrev_b32 v34, 16, v29"); e("v_and_b32 v35, 0xffff0000, v29")
    for i in range(4): e(f"v_mul_f32 v{32+i}, s7, v{32+i}")
    for i in range(4): e(f"v_exp_f32 v{32+i}, v{32+i}")
    e("v_lshlrev_b32 v36, 16, v30"); e("v_and_b32 v37, 0xffff0000, v30"); e("v_lshlrev_b32 v38, 16, v31"); e("v_and_b32 v39, 0xffff0000, v31")
    for i in range(4): e(f"v_add_f32 v{32+i}, 1.0, v{32+i}")
    for i in range(4): e(f"v_rcp_f32 v{32+i}, v{32+i}")
    e("v_cvt_pk_bf16_f32 v9, v32, v33"); e("v_cvt_pk_bf16_f32 v10, v34, v35")
    e("v_lshlrev_b32 v32, 16, v9"); e("v_and_b32 v33, 0xffff0000, v9"); e("v_lshlrev_b32 v34, 16, v10"); e("v_and_b32 v35, 0xffff0000, v10")
    for i in range(4): e(f"v_mul_f32 v{32+i}, v{32+i}, v{36+i}")
    for i in range(4): e(f"v_cvt_pk_bf16_f32 v{32+i}, v{32+i}, v{32+i}")
    e("s_mov_b64 exec, 15")
    e(f"ds_write_b128 v123, v[32:35] offset:{L_OO}")
    lds_arrive(g, L_CNT + 12)
    g.stamp(9)
    e("s_branch L_fin")

    g.label("L_Y")
    e("s_setprio 3")
    e("v_lshlrev_b32 v1, 5, v0")
    e(f"s_lshl_b32 s9, s{S_WAVE}, 9"); e("s_sub_u32 s9, s9, 2048"); e("v_lshlrev_b32 v2, 3, v0")
    e("s_mov_b32 s50, 2048"); e("s_mov_b32 s51, 0x20000")
    e("s_waitcnt lgkmcnt(0)")
    e("s_mov_b32 s48, s16"); e("s_mov_b32 s49, s17")
    e("buffer_load_dwordx4 v[112:115], v1, s[48:51], 0 offen")
    e("buffer_load_dwordx4 v[116:119], v1, s[48:51], 0 offen offset:16")
    e("buffer_load_dwordx2 v[110:111], v2, s[48:51], s9 offen")
    e("s_mov_b32 s52, s38"); e("s_mov_b32 s53, s39")
    e(f"buffer_load_dword v124, off, {WS}, 0 offset:{WS_E} sc1")
    e("s_lshl_b32 s9, s9, 1"); e("v_lshl_add_u32 v122, v0, 4, s9")
    e("v_mov_b32 v9, 0"); e("v_mov_b32 v12, 0"); e("v_mov_b32 v13, 0"); e("v_mov_b32 v14, 0"); e("v_mov_b32 v15, 0")
    e(f"ds_write_b128 v9, v[12:15] offset:{L_CNT}")
    e("s_cmp_ge_u32 s2, 128"); e("s_cbranch_scc1 L_YB")
    mapAo(5)
    e("s_mov_b32 s40, s24"); e("s_mov_b32 s41, s25"); e("s_mov_b32 s42, 0x800000")
    e("s_lshr_b32 s9, s5, 1")
    e("s_branch L_YC")
    g.label("L_YB")
    mapBd(5)
    e("s_mov_b32 s40, s32"); e("s_mov_b32 s41, s33"); e("s_mov_b32 s42, 7340032")
    e("s_lshr_b32 s9, s5, 1"); e("s_add_u32 s9, s9, 64")
    g.label("L_YC")
    e("v_lshrrev_b32 v2, 4, v0"); e("v_lshlrev_b32 v1, 15, v2"); e("v_and_b32 v3, 15, v0"); e("v_lshl_add_u32 v1, v3, 4, v1")
    e("s_lshr_b32 s8, s5, 1"); e("s_lshl_b32 s8, s8, 17"); e("s_and_b32 s6, s5, 1"); e("s_lshl_b32 s6, s6, 2")
    e(f"s_add_u32 s6, s6, s{S_WAVE}"); e("s_sub_u32 s6, s6, 4")
    e("s_lshl_b32 s7, s6, 8"); e("s_add_u32 s8, s8, s7")
    e(f"s_mul_i32 s59, s6, {2*120*256}"); e("s_lshl_b32 s9, s9, 8"); e("s_add_u32 s59, s59, s9"); e(f"s_add_u32 s59, s59, {WS_SP}")
    e("v_bfe_u32 v9, v0, 3, 1"); e(f"v_mul_u32_u24 v9, {120*256}, v9"); e("v_and_b32 v10, 7, v0"); e("v_lshl_add_u32 v9, v10, 5, v9")
    e("v_lshl_add_u32 v121, v2, 4, v9")
    e("v_lshlrev_b32 v120, 6, v2")
    e("s_waitcnt vmcnt(1)")
    g.stamp(1)
    layernorm(g, 112, 110)
    e(f"ds_write_b128 v122, v[24:27] offset:{L_XN}")
    e("s_waitcnt lgkmcnt(0) vmcnt(0)")
    g.stamp(6)
    e("s_barrier")
    make_tag(g)
    e("s_setprio 0")
    e("s_barrier")
    g.stamp(2)
    def yloads(W):
        for k in range(16):
            if k >= W: e(f"s_waitcnt vmcnt({W-1})")
            e(f"buffer_load_dwordx4 v[{V_W+4*k}:{V_W+4*k+3}], v1, s[40:43], s8 offen{NT}")
            if k < 15: e("s_add_u32 s8, s8, 2048")
    if WYA != WYB:
        e("s_cmp_ge_u32 s2, 128"); e("s_cbranch_scc1 L_YL2")
        yloads(WYA); e("s_branch L_YL3")
        g.label("L_YL2"); yloads(WYB); g.label("L_YL3")
    else:
        yloads(WYA)
    g.stamp(3)
    lds_spin(g, L_CNT + 12, 4)
    g.stamp(4)
    for i in range(4):
        e(f"ds_read_b128 v[{V_XX+4*i}:{V_XX+4*i+3}], v120 offset:{L_OO + 16*i}")
    e("s_waitcnt lgkmcnt(3)")
    gemv_step(g, 0, V_XX)
    for i in range(16):
        if i < 15: gemv_step(g, i + 1, V_XX + i + 1)
        e(f"s_waitcnt vmcnt({15-i})" + (" lgkmcnt(0)" if i == 2 else ""))
        gemv_mfma(g, i, V_W + 4 * i, i == 0)
    g.stamp(5)
    g.nop(7)
    e("s_mov_b32 exec_hi, 0")
    tagput(g, V_ACC)
    if not dbg & 16: e(f"buffer_store_dwordx4 v[{V_ACC}:{V_ACC+3}], v121, {WS}, s59 offen {ST}")
    e("s_mov_b64 exec, -1")
    g.stamp(9)
    e("s_branch L_fin")

    g.label("L_C")
    e("s_waitcnt lgkmcnt(0)")
    e("s_mov_b32 s52, s38"); e("s_mov_b32 s53, s39")
    e(f"buffer_load_dword v124, off, {WS}, 0 offset:{WS_E} sc1")
    mapC(5)
    e(f"s_lshl_b32 s6, s{S_WAVE}, 4"); e(f"s_mul_i32 s7, s{S_WAVE}, 14"); e("s_add_u32 s7, s7, 8")
    e(f"s_cmp_lt_u32 s{S_WAVE}, 4"); e("s_cselect_b32 s6, s6, s7")
    e("s_cselect_b32 s57, 0, 512")
    e(f"s_cselect_b32 s58, s{S_MSK}, 0")
    e("s_lshl_b32 s6, s6, 8"); e(f"s_mul_i32 s8, s5, {120*256}"); e("s_add_u32 s8, s8, s6"); e(f"s_add_u32 s8, s8, {WS_SP}")
    e("v_lshlrev_b32 v1, 4, v0")
    e("v_and_b32 v122, s57, v1"); e("v_sub_u32 v122, v1, v122")
    e(f"v_mov_b32 v123, s{S_MSK}"); e("s_mov_b32 exec_lo, 0"); e("v_mov_b32 v123, s58"); e("s_mov_b32 exec_lo, -1")
    g.srd(48, 16, 2048); g.srd(44, 34, 2048)
    e("s_lshl_b32 s9, s5, 7"); e("v_lshlrev_b32 v2, 1, v0")
    e("buffer_load_ushort v3, v2, s[48:51], s9 offen")
    e("s_waitcnt vmcnt(0)")
    make_tag(g)
    e("s_barrier")
    e(f"s_cmp_lg_u32 s{S_WAVE}, 1"); e("s_cbranch_scc1 L_C1")
    e("s_mov_b32 s6, 1"); e("s_atomic_add s6, s[36:37], 0")
    e("s_cmp_lg_u32 s5, 0"); e("s_cbranch_scc1 L_C1")
    lp = g.newlab("Le")
    e(f"s_mov_b32 s7, {SPIN}")
    g.label(lp)
    e("s_load_dword s6, s[36:37], 0 glc")
    e("s_sub_u32 s7, s7, 1"); e("s_cbranch_scc1 L_fail")
    e("s_waitcnt lgkmcnt(0)")
    e("s_cmp_lt_u32 s6, 16"); e(f"s_cbranch_scc1 {lp}")
    g.label("L_C1")
    e(f"s_lshl_b32 s6, s{S_WAVE}, 8"); e("v_add_u32 v120, s6, v1"); e("v_lshlrev_b32 v121, 2, v0"); e("v_lshlrev_b32 v3, 16, v3")
    def c_issue(rb):
        for i in range(3):
            e(f"buffer_load_dwordx4 v[{rb+4*i}:{rb+4*i+3}], v1, {WS}, s8 offen offset:{1024*i} {LD}")
        e(f"buffer_load_dwordx4 v[{rb+12}:{rb+15}], v122, {WS}, s8 offen offset:3072 {LD}")
    def c_check(rb):
        tagcheck(g, [rb, rb + 4, rb + 8, rb + 12], 11); e("v_cmp_ne_u32 vcc, 0, v11")
    def c_take(rb):
        for r in range(12): e(f"v_and_b32 v{24+r}, s{S_MSK}, v{rb+r}")
        for r in range(12, 16): e(f"v_and_b32 v{24+r}, v123, v{rb+r}")
    poll(g, PC, 4, 40, c_issue, c_check, c_take, gap, noretry=bool(dbg & 8))
    if diag: e("s_mov_b32 s90, s7")
    g.stamp(5)
    for r in range(0, 4, 2): e(f"v_pk_add_f32 v[{24+r}:{25+r}], v[{24+r}:{25+r}], v[{28+r}:{29+r}]")
    for r in range(0, 4, 2): e(f"v_pk_add_f32 v[{32+r}:{33+r}], v[{32+r}:{33+r}], v[{36+r}:{37+r}]")
    for r in range(0, 4, 2): e(f"v_pk_add_f32 v[{24+r}:{25+r}], v[{24+r}:{25+r}], v[{32+r}:{33+r}]")
    xreduce(g, "v_add_f32", [24, 25, 26, 27], [28, 29, 30, 31])
    e("s_mov_b64 exec, 0xffff")
    e(f"ds_write_b128 v120, v[24:27] offset:{L_RED}")
    e("s_mov_b64 exec, -1")
    e("s_waitcnt lgkmcnt(0)")
    e("s_barrier")
    e(f"s_cmp_eq_u32 s{S_WAVE}, 0"); e("s_cbranch_scc1 L_C2")
    e(f"s_cmp_lg_u32 s{S_WAVE}, 1"); e("s_cbranch_scc1 L_fin")
    e("s_cmp_lg_u32 s5, 0"); e("s_cbranch_scc1 L_fin")
    e("s_mov_b64 exec, 1")
    e(f"v_mov_b32 v10, s{S_T[0]}")
    e(f"buffer_store_dword v10, off, {WS}, 0 offset:{WS_E} sc1")
    e("s_mov_b64 exec, -1")
    e("s_branch L_fin")
    g.label("L_C2")
    for p in range(8): e(f"ds_read_b32 v{24+p}, v121 offset:{L_RED + 256*p}")
    e("s_waitcnt lgkmcnt(0)")
    e("v_add_f32 v24, v24, v25"); e("v_add_f32 v26, v26, v27"); e("v_add_f32 v28, v28, v29"); e("v_add_f32 v30, v30, v31")
    e("v_add_f32 v24, v24, v26"); e("v_add_f32 v28, v28, v30")
    e("v_cvt_pk_bf16_f32 v9, v24, v28")
    e("v_and_b32 v28, 0xffff0000, v9")
    e("v_mul_f32 v10, 0xbfb8aa3b, v28"); e("v_exp_f32 v10, v10"); e("v_lshlrev_b32 v24, 16, v9"); e("v_add_f32 v10, 1.0, v10"); e("v_rcp_f32 v10, v10"); g.nop(1)
    e("v_mul_f32 v10, v28, v10")
    e("v_cvt_pk_bf16_f32 v10, v10, v10"); e("v_lshlrev_b32 v10, 16, v10")
    e("v_mul_f32 v10, v24, v10")
    e("v_cvt_pk_bf16_f32 v10, v10, v10"); e("v_lshlrev_b32 v10, 16, v10")
    e("v_add_f32 v10, v3, v10")
    e("v_cvt_pk_bf16_f32 v10, v10, v10")
    e("buffer_store_short v10, v2, s[44:47], s9 offen")
    if pad:
        g.label("L_p2")
        e("s_memrealtime s[92:93]"); e("s_waitcnt lgkmcnt(0)"); e("s_sub_u32 s92, s92, s94"); e("s_cmp_lt_u32 s92, 5000"); e("s_cbranch_scc1 L_p2")
    g.stamp(9)
    g.label("L_fin")
    if diag:
        e("s_waitcnt vmcnt(0)")
        g.stamp(10)
        e("s_getreg_b32 s92, hwreg(HW_REG_XCC_ID)")
        e("s_waitcnt lgkmcnt(0)")
        e("s_lshl_b32 s6, s2, 3"); e(f"s_add_u32 s6, s6, s{S_WAVE}"); e("s_lshl_b32 s6, s6, 6"); e(f"s_add_u32 s6, s6, {WS_DIAG}")
        e("s_mov_b64 exec, 1"); e("v_mov_b32 v1, 0")
        for i in range(11):
            e(f"v_mov_b32 v2, s{64+2*i}"); e(f"buffer_store_dword v2, v1, {WS}, s6 offen offset:{4*i}")
        for i, sr in enumerate((90, 91, 92)):
            e(f"v_mov_b32 v2, s{sr}"); e(f"buffer_store_dword v2, v1, {WS}, s6 offen offset:{44+4*i}")
    g.label("L_end")
    e("s_endpgm")
    g.label("L_fail")
    e("s_endpgm")
    g.L += ['.section .rodata,"a"', ".p2align 6", f".amdhsa_kernel {NAME}_kernel",
            "  .amdhsa_next_free_vgpr 128", "  .amdhsa_next_free_sgpr 96", "  .amdhsa_accum_offset 128",
            "  .amdhsa_group_segment_fixed_size 0", "  .amdhsa_kernarg_size 96", "  .amdhsa_user_sgpr_count 2",
            "  .amdhsa_user_sgpr_kernarg_segment_ptr 1", "  .amdhsa_system_sgpr_workgroup_id_x 1",
            ".end_amdhsa_kernel"]
    return "\n".join(x for x in g.L if x is not None) + "\n"

def parse(cfg):
    kw = {}
    for t in cfg.split(","):
        if not t: continue
        k, v = t.split("=")
        kw[k] = v if k in ("pad", "NT") else int(v)
    return kw

if __name__ == "__main__":
    open(sys.argv[1], "w").write(gen(**parse(sys.argv[2] if len(sys.argv) > 2 else "")))
```

```python
import sys
NAME = "recurrent_scan__sliding_block_cached__glu_gated_glu__decode"
HEADER = open("cdna_kernels/" + NAME + ".s.ref").read().split("; @launch")[0]

WS_E  = 0x0
WS_QP = 0x1000
WS_GP = 0x21000
WS_OP = 0x60000
WS_SP = 0xE0000
WS_USED = 0x158000
WS_DIAG = 0x1000000
L_CNT = 0
L_M   = 64
L_OO  = 512
L_RED = 2048
L_Q   = 4096
L_XN  = 8192
L_P   = 8192
L_K   = 12288
L_V   = 45056
LDS_BYTES = 77824
SPIN = 200000

class G:
    def __init__(s, diag):
        s.L = []; s.diag = diag; s.lab = 0; s.only = ()
    def e(s, t): s.L.append("  " + t)
    def label(s, n): s.L.append(n + ":")
    def newlab(s, p="L"):
        s.lab += 1; return f"{p}_{s.lab}"
    def nop(s, n):
        while n > 0:
            k = min(n, 16); s.e(f"s_nop {k-1}"); n -= k
    def stamp(s, i):
        if s.diag or i in s.only: s.e(f"s_memrealtime s[{64+2*i}:{65+2*i}]")
    def srd(s, d, lo, size):
        s.e(f"s_mov_b32 s{d}, s{lo}"); s.e(f"s_mov_b32 s{d+1}, s{lo+1}")
        s.e(f"s_mov_b32 s{d+2}, {size:#x}"); s.e(f"s_mov_b32 s{d+3}, 0x20000")

S_WAVE = 4
S_T = [10, 11, 12, 13]
S_SELA = 14; S_SELB = 15
S_MSK = 3
WS = "s[52:55]"
V_M = 4; V_FF = 8; V_TMP = 12; V_ACC = 20; V_XX = 24; V_W = 56

def tagcheck(g, regs_list, acc):
    for k, r in enumerate(regs_list):
        g.e(f"v_perm_b32 v9, v{r+1}, v{r}, s{S_SELA}")
        g.e(f"v_perm_b32 v10, v{r+3}, v{r+2}, s{S_SELB}")
        if k == 0:
            g.e(f"v_bitop3_b32 v{acc}, v9, v10, s{S_T[0]} bitop3:0x56")
        else:
            g.e(f"v_bitop3_b32 v9, v9, v10, s{S_T[0]} bitop3:0x56")
            g.e(f"v_or_b32 v{acc}, v{acc}, v9")

def tagput(g, r, rnd=True):
    if rnd:
        for i in range(4): g.e(f"v_add_u32 v{r+i}, 0x80, v{r+i}")
    for i in range(4):
        g.e(f"v_bfi_b32 v{r+i}, v{V_FF}, s{S_T[i]}, v{r+i}")

def wave_sum(g, v, sdst, fill=()):
    fill = list(fill)
    def pad(n):
        for _ in range(n):
            if fill: g.e(fill.pop(0))
            else: g.nop(1)
    for ror in (8, 4, 2, 1):
        pad(2); g.e(f"v_add_f32_dpp v{v}, v{v}, v{v} row_ror:{ror} row_mask:0xf bank_mask:0xf")
    pad(2); g.e(f"v_add_f32_dpp v{v}, v{v}, v{v} row_bcast:15 row_mask:0xa bank_mask:0xf")
    pad(2); g.e(f"v_add_f32_dpp v{v}, v{v}, v{v} row_bcast:31 row_mask:0xc bank_mask:0xf")
    pad(1); g.e(f"v_readlane_b32 s{sdst}, v{v}, 63")
    pad(2)
    for f in fill: g.e(f)

def xreduce(g, op, regs, tmps, steps=(16, 32)):
    for st in steps:
        for r, t in zip(regs, tmps): g.e(f"v_mov_b32 v{t}, v{r}")
        if len(regs) < 3: g.nop(3 - len(regs))
        for r, t in zip(regs, tmps): g.e(f"v_permlane{st}_swap_b32 v{t}, v{r}")
        if len(regs) < 2: g.nop(1)
        for r, t in zip(regs, tmps): g.e(f"{op} v{r}, v{t}, v{r}")

def layernorm(g, xr, xm):
    U = 28
    for i in range(8): g.e(f"v_dot2c_f32_bf16 v{9 + (i & 1)}, v12, v{xr+i}")
    unp = []
    for i in range(8):
        unp += [f"v_lshlrev_b32 v{U+2*i}, 16, v{xr+i}", f"v_and_b32 v{U+2*i+1}, 0xffff0000, v{xr+i}"]
    for _ in range(3): g.e(unp.pop(0))
    g.e("v_add_f32 v9, v9, v10")
    wave_sum(g, 9, 6, unp)
    g.e("v_mul_f32 v2, s6, v11"); g.e("v_mul_f32 v3, s6, v11")
    for i in range(0, 16, 2):
        g.e(f"v_pk_add_f32 v[{U+i}:{U+i+1}], v[{U+i}:{U+i+1}], v[2:3] neg_lo:[0,1] neg_hi:[0,1]")
    for i in range(0, 16, 2):
        a = 44 + 2 * ((i >> 1) & 1)
        g.e(f"v_pk_fma_f32 v[{a}:{a+1}], v[{U+i}:{U+i+1}], v[{U+i}:{U+i+1}], v[{a}:{a+1}]")
    g.e("v_pk_add_f32 v[44:45], v[44:45], v[46:47]")
    g.e("v_add_f32 v9, v44, v45")
    fill = [f"v_lshlrev_b32 v24, 16, v{xm}", f"v_and_b32 v25, 0xffff0000, v{xm}", f"v_lshlrev_b32 v26, 16, v{xm+1}", f"v_and_b32 v27, 0xffff0000, v{xm+1}",
            "v_cvt_pk_bf16_f32 v3, v3, v3", "v_lshlrev_b32 v3, 16, v3"] + [f"v_sub_f32 v{24+i}, v{24+i}, v3" for i in range(4)] + \
           ["v_cvt_pk_bf16_f32 v10, v24, v25", "v_cvt_pk_bf16_f32 v2, v26, v27", "v_lshlrev_b32 v24, 16, v10", "v_and_b32 v25, 0xffff0000, v10", "v_lshlrev_b32 v26, 16, v2"]
    wave_sum(g, 9, 6, fill)
    g.e("v_mul_f32 v9, s6, v11")
    g.e("v_cvt_pk_bf16_f32 v9, v9, v9"); g.e("v_lshlrev_b32 v9, 16, v9")
    g.e("v_add_f32 v9, 0x3727c5ac, v9")
    g.e("v_cvt_pk_bf16_f32 v9, v9, v9"); g.e("v_lshlrev_b32 v9, 16, v9")
    g.e("v_sqrt_f32 v9, v9")
    g.e("v_and_b32 v27, 0xffff0000, v2")
    g.e("v_cvt_pk_bf16_f32 v9, v9, v9"); g.e("v_lshlrev_b32 v9, 16, v9")
    g.e("v_rcp_f32 v9, v9"); g.nop(1)
    for i in range(4): g.e(f"v_mul_f32 v{24+i}, v{24+i}, v9")
    for i in range(4): g.e(f"v_cvt_pk_bf16_f32 v{24+i}, v{24+i}, v{24+i}")

def gemv_step(g, i, xx):
    t = V_TMP + 4 * (i & 1)
    for r in range(4): g.e(f"v_and_b32 v{t+r}, v{xx}, v{V_M+r}")
def gemv_mfma(g, i, w, first):
    t = V_TMP + 4 * (i & 1)
    c = "0" if first else f"v[{V_ACC}:{V_ACC+3}]"
    g.e(f"v_mfma_f32_16x16x32_bf16 v[{V_ACC}:{V_ACC+3}], v[{t}:{t+3}], v[{w}:{w+3}], {c}")

def lds_arrive(g, off):
    g.e("s_mov_b64 exec, 1")
    g.e("v_mov_b32 v9, 0"); g.e("v_mov_b32 v10, 1")
    g.e(f"ds_add_u32 v9, v10 offset:{off}")
    g.e("s_mov_b64 exec, -1")

def lds_spin(g, off, target):
    lp = g.newlab("Lsp")
    g.e(f"s_mov_b32 s7, {SPIN}")
    g.e("v_mov_b32 v9, 0")
    g.label(lp)
    g.e(f"ds_read_b32 v10, v9 offset:{off}")
    g.e("s_sub_u32 s7, s7, 1"); g.e("s_cbranch_scc1 L_fail")
    g.e("s_waitcnt lgkmcnt(0)")
    g.e("v_readfirstlane_b32 s6, v10")
    g.e(f"s_cmp_lt_u32 s6, {target}"); g.e(f"s_cbranch_scc1 {lp}")

def mpoll(g, n, load, check, sbase, first=None, noretry=False, backoff=0, ownwait=False):
    e = g.e
    lp = g.newlab("Lm"); chk = g.newlab("Lmc")
    for i in range(n): load(i)
    if first: first()
    e(f"s_mov_b32 s7, {SPIN}")
    e(f"s_branch {chk}")
    g.label(lp)
    if backoff: e(f"s_sleep {backoff}")
    for i in range(n):
        e(f"s_mov_b64 exec, s[{sbase+2*i}:{sbase+2*i+1}]")
        if n > 1:
            sk = g.newlab("Lms"); e(f"s_cbranch_execz {sk}"); load(i); g.label(sk)
        else: load(i)
    e("s_mov_b64 exec, -1")
    e("s_sub_u32 s7, s7, 1"); e("s_cbranch_scc1 L_fail")
    if ownwait: e("s_waitcnt vmcnt(0)")
    g.label(chk)
    if not ownwait: e("s_waitcnt vmcnt(0)")
    for i in range(n): check(i, f"s[{sbase+2*i}:{sbase+2*i+1}]")
    if n == 1:
        e(f"s_cmp_lg_u64 s[{sbase}:{sbase+1}], 0")
    else:
        e(f"s_or_b64 vcc, s[{sbase}:{sbase+1}], s[{sbase+2}:{sbase+3}]")
        for i in range(2, n): e(f"s_or_b64 vcc, vcc, s[{sbase+2*i}:{sbase+2*i+1}]")
    if not noretry: e(f"s_cbranch_scc1 {lp}")

def tagchk1(g, r, dst):
    g.e(f"v_perm_b32 v9, v{r+1}, v{r}, s{S_SELA}")
    g.e(f"v_perm_b32 v10, v{r+3}, v{r+2}, s{S_SELB}")
    g.e(f"v_or_b32 v9, v9, v10")
    g.e(f"v_cmp_ne_u32 {dst}, s{S_T[0]}, v9")

def make_tag(g):
    g.e(f"v_readfirstlane_b32 s{S_T[0]}, v124")
    g.nop(1)
    g.e(f"s_add_u32 s{S_T[0]}, s{S_T[0]}, 0x9e3779b9")
    for i in range(1, 4): g.e(f"s_lshr_b32 s{S_T[i]}, s{S_T[0]}, {8*i}")

def masks(g):
    e = g.e
    e("v_and_b32 v9, 1, v0"); e("v_lshlrev_b32 v9, 4, v9"); e("v_mov_b32 v10, 0xffff"); e("v_lshlrev_b32 v10, v9, v10")
    e("v_bfe_u32 v9, v0, 1, 2")
    for r in range(4):
        e(f"v_cmp_eq_u32 vcc, {r}, v9"); g.nop(2); e(f"v_cndmask_b32 v{V_M+r}, 0, v10, vcc")
def consts(g):
    e = g.e
    e(f"v_mov_b32 v{V_FF}, 0xff")
    e(f"s_mov_b32 s{S_SELA}, 0x0c0c0400"); e(f"s_mov_b32 s{S_SELB}, 0x04000c0c"); e(f"s_mov_b32 s{S_MSK}, 0xffffff00")

def gen(diag=False, WA=8, WB1=4, WB2=8, WBsw=12, WYA=6, WYB=6, HB=3, pad=None, NT=" nt", dbg=0, ackw=3, rot=1,
        PREA=6, PREB=4, QW=2, NPRE=4, cpf=1, cbo=0, obo=0, hbo=0, qbo=0, cdel=0,
        N1A=16, W2A=8, GA=0, N1B=16, W2B=8, GB=0, oslp=0, hslp=0, WBS=None, cwait=1, olay=1, trace=0, hv=0, pair=0, ost=0, cw2=0, npe=0, tlb=0, probe=None):
    global TR
    TR = {}; cur = [None]
    def role(n, cont=None): cur[0] = n; TR[n] = list(TR[cont]) if cont else []
    def tr(landed):
        if not trace: return
        i = len(TR[cur[0]]); TR[cur[0]].append(landed)
        e('s_memrealtime s[86:87]'); e('s_waitcnt lgkmcnt(0)'); e(f'v_writelane_b32 v128, s86, {i}')
    JV = 8
    g = G(diag); e = g.e
    if probe:
        pw0, pw1, pv0, pv1, pidx = map(int, probe.split(':')); g.only = (0, pidx)
    ST = "sc1"; LD = "sc1"
    wssize = WS_DIAG + 0x100000 if diag else WS_USED
    g.L.append(HEADER.rstrip("\n"))
    g.L.append(f"; @launch grid=(256,1,1) block=(512,1,1) lds={LDS_BYTES}")
    g.L.append('.amdgcn_target "amdgcn-amd-amdhsa--gfx950"')
    g.L += [".text", f".globl {NAME}_kernel", ".p2align 8", f".type {NAME}_kernel,@function", f"{NAME}_kernel:"]
    def mapA(dst):
        if rot: e(f"s_and_b32 s{dst}, s2, 7"); e(f"s_lshl_b32 s{dst}, s{dst}, 4"); e("s_lshr_b32 s6, s2, 3"); e(f"s_add_u32 s{dst}, s{dst}, s6")
        else: e(f"s_mov_b32 s{dst}, s2")
    def mapAq(dst, a):
        if rot: e(f"s_add_u32 s{dst}, s{a}, 32"); e(f"s_and_b32 s{dst}, s{dst}, 127")
        else: e(f"s_mov_b32 s{dst}, s{a}")
    def mapAo(dst):
        if rot and pair & 1:
            e(f"s_and_b32 s{dst}, s2, 7"); e(f"s_xor_b32 s{dst}, s{dst}, 4"); e(f"s_lshl_b32 s{dst}, s{dst}, 4"); e("s_lshr_b32 s6, s2, 3"); e(f"s_add_u32 s{dst}, s{dst}, s6")
        elif rot:
            e("s_bfe_u32 s6, s2, 0x10002"); e(f"s_lshl_b32 s{dst}, s6, 1"); e(f"s_add_u32 s{dst}, s{dst}, s2"); e(f"s_add_u32 s{dst}, s{dst}, 1")
            e(f"s_and_b32 s{dst}, s{dst}, 3"); e(f"s_lshl_b32 s{dst}, s{dst}, 4"); e("s_lshr_b32 s7, s2, 3"); e(f"s_add_u32 s{dst}, s{dst}, s7")
            e(f"s_lshl_b32 s{dst}, s{dst}, 1"); e(f"s_add_u32 s{dst}, s{dst}, s6")
        else: e(f"s_mov_b32 s{dst}, s2")
    def mapB(dst):
        if rot: e("s_sub_u32 s6, s2, 128"); e(f"s_and_b32 s{dst}, s6, 7"); e(f"s_mul_i32 s{dst}, s{dst}, 14"); e("s_lshr_b32 s6, s6, 3"); e(f"s_add_u32 s{dst}, s{dst}, s6")
        else: e(f"s_sub_u32 s{dst}, s2, 128")
    JT = [1, 2, 3, 0, 3, 0, 1, 2]
    JTAB = sum(j << (4 * x) for x, j in enumerate(JT))
    def mapBd(dst):
        if rot and pair & 2:
            e(f"s_and_b32 s{dst}, s2, 7"); e(f"s_xor_b32 s{dst}, s{dst}, 4"); e(f"s_mul_i32 s{dst}, s{dst}, 14"); e("s_sub_u32 s6, s2, 128"); e("s_lshr_b32 s6, s6, 3"); e(f"s_add_u32 s{dst}, s{dst}, s6")
        elif rot:
            e("s_and_b32 s6, s2, 7"); e("s_lshl_b32 s6, s6, 2"); e(f"s_lshr_b32 s{dst}, {JTAB:#x}, s6"); e(f"s_and_b32 s{dst}, s{dst}, 3")
            e(f"s_mul_i32 s{dst}, s{dst}, 14"); e("s_sub_u32 s7, s2, 128"); e("s_lshr_b32 s7, s7, 3"); e(f"s_add_u32 s{dst}, s{dst}, s7")
            e(f"s_lshl_b32 s{dst}, s{dst}, 1"); e("s_bfe_u32 s6, s2, 0x10002"); e(f"s_add_u32 s{dst}, s{dst}, s6")
        else: e(f"s_sub_u32 s{dst}, s2, 128")
    def mapC(dst):
        if rot:
            e(f"s_and_b32 s{dst}, s2, 7"); e(f"s_xor_b32 s{dst}, s{dst}, 4"); e(f"s_lshl_b32 s{dst}, s{dst}, 1"); e("s_bfe_u32 s6, s2, 0x10003"); e(f"s_add_u32 s{dst}, s{dst}, s6")
        else: e(f"s_sub_u32 s{dst}, s2, 240")
    def ws_srd():
        e("s_mov_b32 s52, s38"); e("s_mov_b32 s53, s39"); e(f"s_mov_b32 s54, {wssize:#x}"); e("s_mov_b32 s55, 0x20000")
    def epoch():
        e(f"buffer_load_dword v124, off, {WS}, 0 offset:{WS_E} sc1")

    g.stamp(0)
    if pad: e("s_memrealtime s[94:95]")
    e("s_cmp_ge_u32 s2, 256"); e("s_cbranch_scc1 L_end")
    e("s_load_dwordx16 s[16:31], s[0:1], 0"); e("s_load_dwordx8 s[32:39], s[0:1], 64")
    e("v_lshrrev_b32 v1, 6, v0"); e("v_and_b32 v0, 63, v0")
    e(f"v_readfirstlane_b32 s{S_WAVE}, v1")
    e("s_mov_b32 s43, 0x20000")
    e("v_lshrrev_b32 v2, 4, v0"); e("v_and_b32 v3, 15, v0")
    e("s_cmp_ge_u32 s2, 240"); e("s_cbranch_scc1 L_C")
    e(f"s_cmp_lt_u32 s{S_WAVE}, 4"); e("s_cbranch_scc1 L_X")

    e("s_setprio 3")
    e("v_lshlrev_b32 v1, 5, v0")
    e(f"s_lshl_b32 s9, s{S_WAVE}, 9"); e("s_sub_u32 s9, s9, 2048"); e("v_lshlrev_b32 v9, 3, v0")
    e("s_mov_b32 s50, 2048"); e("s_mov_b32 s51, 0x20000")
    e("s_waitcnt lgkmcnt(0)")
    e("s_mov_b32 s48, s16"); e("s_mov_b32 s49, s17")
    e("buffer_load_dwordx4 v[112:115], v1, s[48:51], 0 offen")
    e("buffer_load_dwordx4 v[116:119], v1, s[48:51], 0 offen offset:16")
    e("buffer_load_dwordx2 v[110:111], v9, s[48:51], s9 offen")
    ws_srd(); epoch()
    e("s_branch L_Y")

    g.label("L_X")
    e("s_cmp_ge_u32 s2, 128"); e("s_cbranch_scc1 L_BX")
    mapA(5); mapAq(59, 5)
    e("v_lshlrev_b32 v1, 17, v2"); e("v_lshl_add_u32 v1, v3, 4, v1")
    e("s_and_b32 s6, s59, 7"); e("s_lshl_b32 s6, s6, 1"); e(f"s_lshr_b32 s7, s{S_WAVE}, 1"); e("s_add_u32 s6, s6, s7")
    e("s_lshr_b32 s57, s59, 3"); e("s_lshl_b32 s57, s57, 1"); e(f"s_and_b32 s7, s{S_WAVE}, 1"); e("s_add_u32 s57, s57, s7")
    e("s_lshl_b32 s8, s6, 19"); e("s_lshl_b32 s7, s57, 8"); e("s_add_u32 s8, s8, s7")
    e("s_lshl_b32 s9, s6, 8")
    e("s_mov_b32 s42, 0x800000")
    e("s_waitcnt lgkmcnt(0)")
    e("s_mov_b32 s40, s22"); e("s_mov_b32 s41, s23")
    def issue_A(k):
        if k < 16:
            e(f"buffer_load_dwordx4 v[{V_W+4*k}:{V_W+4*k+3}], v1, s[40:43], s8 offen{NT}")
            if k < 15: e("s_add_u32 s8, s8, 0x2000")
        elif k < 24:
            j = k - 16
            e(f"s_mov_b32 m0, s58")
            e(f"s_add_u32 s58, s58, {4096 if j < 7 else L_V - L_K - 7*4096}")
            e(f"buffer_load_dwordx4 v121, s[44:47], s56 offen{NT} lds")
            e(f"s_add_u32 s56, s56, 4096" if j < 7 else f"s_sub_u32 s56, s56, {7*4096}")
        else:
            j = k - 24
            e(f"s_mov_b32 m0, s58")
            e("s_add_u32 s58, s58, 4096")
            e(f"buffer_load_dwordx4 v122, s[60:63], s56 offen{NT} lds")
            if j < 7: e("s_add_u32 s56, s56, 4096")
    if dbg & 512: g.stamp(6)
    for k in range(WA): issue_A(k)
    ws_srd(); epoch()
    e("s_setprio 3")
    e("v_lshl_add_u32 v120, v2, 6, s9")
    masks(g); consts(g)
    g.srd(44, 18, 67108864); g.srd(60, 20, 67108864)
    e("s_lshr_b32 s56, s5, 5"); e("s_lshl_b32 s56, s56, 24"); e("s_and_b32 s7, s5, 31"); e("s_lshl_b32 s7, s7, 15"); e("s_add_u32 s56, s56, s7")
    e(f"s_lshl_b32 s7, s{S_WAVE}, 10"); e("s_add_u32 s56, s56, s7"); e(f"s_add_u32 s56, s56, {61440*256}")
    e(f"s_add_u32 s58, s7, {L_K}")
    e(f"s_lshl_b32 s7, s{S_WAVE}, 2"); e("v_add_u32 v9, s7, v2")
    e("v_xor_b32 v10, v9, v3"); e("v_lshlrev_b32 v10, 4, v10"); e("v_lshl_add_u32 v121, v2, 8, v10")
    e("v_and_b32 v9, 7, v9"); e("v_lshlrev_b32 v10, 1, v9"); e("v_xor_b32 v10, v10, v3"); e("v_lshlrev_b32 v10, 4, v10")
    e("v_lshl_add_u32 v122, v2, 8, v10")
    e("s_lshr_b32 s6, s57, 3"); e("s_lshl_b32 s6, s6, 15"); e("s_and_b32 s57, s57, 7"); e("s_lshl_b32 s57, s57, 9"); e("s_add_u32 s57, s57, s6")
    e("s_and_b32 s6, s59, 7"); e("s_lshl_b32 s6, s6, 12"); e("s_add_u32 s57, s57, s6"); e(f"s_add_u32 s57, s57, {WS_QP}")
    e("v_lshlrev_b32 v125, 5, v3"); e("v_lshl_add_u32 v125, v2, 4, v125")
    e(f"s_lshl_b32 s6, s{S_WAVE}, 9"); e("v_add_u32 v126, s6, v125"); e("v_xor_b32 v127, 0x400, v126")
    def pos(k): return k if k < WA else k + 1
    nis = WA
    PRE = min(32, WA + PREA)
    role("AX")
    while nis < PRE:
        e(f"s_waitcnt vmcnt({WA-1})"); issue_A(nis); nis += 1; tr(nis - WA)
    e("s_barrier")
    for i in range(4):
        e(f"ds_read_b128 v[{V_XX+4*i}:{V_XX+4*i+3}], v120 offset:{L_XN + 16*i}")
    e("s_waitcnt lgkmcnt(3)")
    g.stamp(2)
    gemv_step(g, 0, V_XX)
    for i in range(16):
        if i == 2: e("s_waitcnt lgkmcnt(0)")
        if i < 15: gemv_step(g, i + 1, V_XX + i + 1)
        e(f"s_waitcnt vmcnt({pos(nis-1) - pos(i)})")
        if nis < i + 1 + WA and nis < 24 + JV:
            issue_A(nis); nis += 1
        gemv_mfma(g, i, V_W + 4 * i, i == 0)
        if i + 1 > PRE - WA: tr(i + 1)
        if i == 14: make_tag(g)
    g.stamp(3)
    e(f"s_and_b32 s6, s{S_WAVE}, 1"); e("s_lshl_b32 s6, s6, 2"); e("v_mov_b32 v9, s6"); e("v_mov_b32 v10, 1")
    e("s_mov_b32 exec_hi, 0")
    g.nop(3)
    e(f"ds_write_b128 v126, v[{V_ACC}:{V_ACC+3}] offset:{L_RED}")
    e("s_mov_b32 exec_lo, 1")
    e(f"ds_add_rtn_u32 v10, v9, v10 offset:{L_CNT}")
    e("s_mov_b32 exec_lo, -1")
    e(f"ds_read_b128 v[24:27], v127 offset:{L_RED}")
    e("s_waitcnt lgkmcnt(1)")
    e("v_readfirstlane_b32 s6, v10")
    skip = g.newlab("Lnl")
    e("s_cmp_eq_u32 s6, 0"); e(f"s_cbranch_scc1 {skip}")
    e("s_waitcnt lgkmcnt(0)")
    for r in range(0, 4, 2): e(f"v_pk_add_f32 v[{20+r}:{21+r}], v[{20+r}:{21+r}], v[{24+r}:{25+r}]")
    tagput(g, V_ACC)
    if hv & 4: e(f"s_bitcmp1_b32 s{S_WAVE}, 0"); e(f"s_cbranch_scc1 {skip}")
    if not dbg & 16: e(f"buffer_store_dwordx4 v[{V_ACC}:{V_ACC+3}], v125, {WS}, s57 offen {ST}")
    g.label(skip)
    e("s_mov_b64 exec, -1")
    g.stamp(4)
    while nis < 24 + JV:
        e(f"s_waitcnt vmcnt({WA-1})"); issue_A(nis); nis += 1; tr(nis - WA)
    def att_pre():
        e("v_lshrrev_b32 v2, 4, v0"); e("v_and_b32 v3, 15, v0")
        e("v_xor_b32 v10, v2, v3"); e("v_lshlrev_b32 v10, 4, v10"); e("v_lshl_add_u32 v1, v3, 8, v10")
        e(f"s_lshl_b32 s6, s{S_WAVE}, 12")
        for s in range(4):
            e(f"v_xor_b32 v10, {64*s}, v1"); e(f"v_add_u32 v{107+4*s}, s6, v10")
        e("v_lshrrev_b32 v1, 2, v0"); e("v_and_b32 v9, 7, v1"); e(f"v_xor_b32 v9, s{S_WAVE}, v9"); e("v_lshlrev_b32 v9, 5, v9")
        e("v_and_b32 v10, 3, v0"); e("v_lshl_add_u32 v9, v10, 3, v9"); e("v_lshl_add_u32 v9, v1, 8, v9"); e(f"v_add_u32 v122, {L_V}, v9")
        e("v_and_b32 v1, 7, v0"); e("v_mul_u32_u24 v123, 272, v1"); e("v_lshl_add_u32 v123, v2, 4, v123")
        e("v_lshlrev_b32 v124, 2, v3")
        e(f"s_lshr_b32 s6, s{S_WAVE}, 1"); e("s_lshl_b32 s6, s6, 10"); e(f"s_and_b32 s7, s{S_WAVE}, 1"); e("s_lshl_b32 s7, s7, 3"); e("s_add_u32 s6, s6, s7")
        e("v_lshlrev_b32 v125, 4, v0"); e("v_add_u32 v126, s6, v125")
        if olay:
            e("v_lshlrev_b32 v127, 6, v3"); e("v_lshl_add_u32 v127, v2, 4, v127")
            e("s_lshl_b32 s58, s5, 12"); e(f"s_lshl_b32 s7, s{S_WAVE}, 9"); e("s_add_u32 s58, s58, s7"); e(f"s_add_u32 s58, s58, {WS_OP}")
        else:
            e("v_lshlrev_b32 v127, 14, v3"); e("v_lshl_add_u32 v127, v2, 4, v127")
            e("s_lshr_b32 s58, s5, 5"); e("s_lshl_b32 s58, s58, 17"); e(f"s_lshl_b32 s7, s{S_WAVE}, 11"); e("s_add_u32 s58, s58, s7")
            e("s_and_b32 s7, s5, 31"); e("s_lshl_b32 s7, s7, 6"); e("s_add_u32 s58, s58, s7"); e(f"s_add_u32 s58, s58, {WS_OP}")
        e("v_mov_b32 v12, 0x3f803f80"); e("v_mov_b32 v13, v12"); e("v_mov_b32 v14, v12"); e("v_mov_b32 v15, v12")
        e("s_lshr_b32 s9, s5, 5"); e("s_lshl_b32 s9, s9, 15"); e(f"s_and_b32 s7, s{S_WAVE}, {6 if hv & 4 else 7}"); e("s_lshl_b32 s7, s7, 9"); e("s_add_u32 s9, s9, s7"); e(f"s_add_u32 s9, s9, {WS_QP}")
        e("s_add_u32 s56, s9, 8192")
        e("v_lshrrev_b32 v9, 5, v0"); e("v_and_b32 v10, 31, v0"); e("v_lshlrev_b32 v16, 12, v9"); e("v_lshl_add_u32 v16, v10, 4, v16")
        e("v_add_u32 v17, 16384, v16")
        e(f"s_mul_i32 s6, s{S_WAVE}, 272"); e("v_lshlrev_b32 v18, 3, v10"); e("v_lshl_add_u32 v18, v9, 2, v18"); e("v_add_u32 v18, s6, v18")
    att_pre()
    if trace:
        for k in range(WA - 1, min(JV, QW) - 1, -1): e(f"s_waitcnt vmcnt({k})"); tr(32 - k)
    e(f"s_waitcnt vmcnt({min(JV, QW)}) lgkmcnt(0)")
    g.label("L_att")
    e("s_barrier")
    g.stamp(1)
    def q_load(i):
        if not dbg & 1: e(f"buffer_load_dwordx4 v[{24+4*i}:{27+4*i}], v{16 + (i >> 1)}, {WS}, {'s56' if i & 1 else 's9'} offen {LD}")
    def k_reads():
        for s in range(4): e(f"ds_read_b128 v[{104+4*s}:{107+4*s}], v{107+4*s} offset:{L_K}")
    def yload(k):
        e(f"buffer_load_dwordx4 v[{V_W+4*k}:{V_W+4*k+3}], v120, s[40:43], s8 offen{NT}")
        if k < 15: e("s_add_u32 s8, s8, 8192")
    def q_first():
        k_reads()
        lx = g.newlab("Lxp"); ly = g.newlab("Lxq")
        e(f"s_cmp_lt_u32 s{S_WAVE}, 4"); e(f"s_cbranch_scc1 {lx}")
        for k in range(npe): yload(k)
        e(f"s_waitcnt vmcnt({npe})"); e(f"s_branch {ly}")
        g.label(lx)
        e("s_waitcnt vmcnt(0)")
        g.label(ly)
    mpoll(g, 4, q_load, lambda i, dst: tagchk1(g, 24 + 4 * i, dst), 16, first=q_first, noretry=bool(dbg & 33), backoff=qbo, ownwait=True)
    if diag: e("s_mov_b32 s90, s7")
    g.stamp(2)
    for r in range(16): e(f"v_and_b32 v{24+r}, s{S_MSK}, v{24+r}")
    for st in (8, 4):
        for r in range(0, st, 2): e(f"v_pk_add_f32 v[{24+r}:{25+r}], v[{24+r}:{25+r}], v[{24+st+r}:{25+st+r}]")
    g.nop(2)
    e("v_permlane32_swap_b32 v24, v26"); e("v_permlane32_swap_b32 v25, v27"); g.nop(1)
    e("v_pk_add_f32 v[24:25], v[24:25], v[26:27]")
    e("v_cvt_pk_bf16_f32 v24, v24, v25")
    e(f"ds_write_b32 v18, v24 offset:{L_Q}")
    def yload(k):
        e(f"buffer_load_dwordx4 v[{V_W+4*k}:{V_W+4*k+3}], v120, s[40:43], s8 offen{NT}")
        if k < 15: e("s_add_u32 s8, s8, 8192")
    if NPRE > npe:
        lx = g.newlab("Lxp")
        e(f"s_cmp_lt_u32 s{S_WAVE}, 4"); e(f"s_cbranch_scc1 {lx}")
        for k in range(npe, NPRE): yload(k)
        g.label(lx)
    e("s_waitcnt lgkmcnt(0)")
    e("s_barrier")
    g.stamp(5)
    for s in range(4):
        e(f"ds_read_b128 v[{24+4*s}:{27+4*s}], v123 offset:{L_Q + 64*s}")
    e("s_mov_b32 s6, 0x3db504f3")
    e("s_mov_b32 s7, 0x3fb8aa3b")
    for s in range(4):
        e(f"s_waitcnt lgkmcnt({3 - s})")
        c = "0" if s == 0 else "v[20:23]"
        e(f"v_mfma_f32_16x16x32_bf16 v[20:23], v[{104+4*s}:{107+4*s}], v[{24+4*s}:{27+4*s}], {c}")
    for sg in range(4):
        for u in range(2):
            e(f"ds_read_b64_tr_b16 v[{88+4*sg+2*u}:{89+4*sg+2*u}], v122 offset:{8192*sg + 4096*u}")
    e("v_cvt_pk_bf16_f32 v9, v20, v21"); e("v_cvt_pk_bf16_f32 v10, v22, v23")
    e("v_lshlrev_b32 v20, 16, v9"); e("v_and_b32 v21, 0xffff0000, v9"); e("v_lshlrev_b32 v22, 16, v10"); e("v_and_b32 v23, 0xffff0000, v10")
    for i in range(4): e(f"v_mul_f32 v{20+i}, s6, v{20+i}")
    e("v_cvt_pk_bf16_f32 v9, v20, v21"); e("v_cvt_pk_bf16_f32 v10, v22, v23")
    e("v_lshlrev_b32 v20, 16, v9"); e("v_and_b32 v21, 0xffff0000, v9"); e("v_lshlrev_b32 v22, 16, v10"); e("v_and_b32 v23, 0xffff0000, v10")
    e("v_max3_f32 v9, v20, v21, v22"); e("v_max_f32 v9, v9, v23")
    e(f"ds_max_f32 v124, v9 offset:{L_M}")
    e("s_waitcnt lgkmcnt(0)")
    e("s_barrier")
    e(f"ds_read_b32 v11, v124 offset:{L_M}")
    e("s_waitcnt lgkmcnt(0)")
    e("v_mul_f32 v11, s7, v11")
    for i in range(4): e(f"v_fma_f32 v{20+i}, v{20+i}, s7, -v11")
    for i in range(4): e(f"v_exp_f32 v{20+i}, v{20+i}")
    e("v_cvt_pk_bf16_f32 v20, v20, v21"); e("v_cvt_pk_bf16_f32 v21, v22, v23")
    e(f"ds_write_b64 v126, v[20:21] offset:{L_P}")
    e("s_waitcnt lgkmcnt(0)")
    e("s_barrier")
    for sg in range(4):
        e(f"ds_read_b128 v[{40+4*sg}:{43+4*sg}], v125 offset:{L_P + 1024*sg}")
    e(f"v_mov_b32 v23, s{S_T[0]}")
    for sg in range(4):
        e(f"s_waitcnt lgkmcnt({3 - sg})")
        e(f"v_mfma_f32_16x16x32_bf16 v[24:27], v[12:15], v[{40+4*sg}:{43+4*sg}], " + ("0" if sg == 0 else "v[24:27]"))
        e(f"v_mfma_f32_16x16x32_bf16 v[16:19], v[{88+4*sg}:{91+4*sg}], v[{40+4*sg}:{43+4*sg}], " + ("0" if sg == 0 else "v[16:19]"))
    e("s_mov_b32 exec_lo, 0x00ff00ff"); e("s_mov_b32 exec_hi, 0x00ff00ff")
    g.nop(5)
    e("v_rcp_f32 v9, v24"); e("v_log_f32 v10, v24")
    for r in range(4): e(f"v_mul_f32 v{16+r}, v9, v{16+r}")
    e("v_add_f32 v22, v11, v10")
    e("v_cvt_pk_bf16_f32 v20, v16, v17"); e("v_cvt_pk_bf16_f32 v21, v18, v19")
    if hv & 1: e(f"s_cmp_ge_u32 s{S_WAVE}, 4"); e("s_cbranch_scc1 L_hv1")
    if not dbg & 16: e(f"buffer_store_dwordx4 v[20:23], v127, {WS}, s58 offen {ST}")
    if hv & 1: g.label("L_hv1")
    e("s_mov_b64 exec, -1")
    g.stamp(7)
    e(f"s_cmp_ge_u32 s{S_WAVE}, 4"); e("s_cbranch_scc1 L_YA2")
    mapAo(5)
    if olay:
        e("s_lshr_b32 s8, s5, 5"); e("s_lshl_b32 s8, s8, 17"); e("s_bfe_u32 s6, s5, 0x10001" if not hv & 1 else "s_mov_b32 s6, 0"); e("s_lshl_b32 s6, s6, 2"); e(f"s_add_u32 s6, s6, s{S_WAVE}")
        e("s_lshl_b32 s6, s6, 9"); e("s_add_u32 s8, s8, s6"); e("s_bfe_u32 s6, s5, 0x30002"); e("s_lshl_b32 s6, s6, 6"); e("s_add_u32 s8, s8, s6")
        e(f"s_add_u32 s8, s8, {WS_OP}"); e("s_add_u32 s9, s8, 0x10000")
        e("v_lshrrev_b32 v125, 2, v0"); e("v_lshlrev_b32 v125, 12, v125"); e("v_and_b32 v9, 3, v0"); e("v_lshl_add_u32 v125, v9, 4, v125")
    else:
        e("s_lshr_b32 s8, s5, 1"); e("s_lshl_b32 s8, s8, 2"); e(f"s_add_u32 s8, s8, s{S_WAVE}"); e("s_lshl_b32 s8, s8, 11"); e(f"s_add_u32 s8, s8, {WS_OP}")
        e("s_add_u32 s9, s8, 1024")
    e(f"s_lshl_b32 s6, s{S_WAVE}, 4"); e("v_lshl_add_u32 v2, v0, 2, s6")
    if ackw & 1: e("s_waitcnt vmcnt(0)")
    if not dbg & 512: g.stamp(6)
    def o_load(i):
        if not dbg & 2: e(f"buffer_load_dwordx4 v[{24+4*i}:{27+4*i}], v125, {WS}, s{8+i} offen {LD}")
    def o_check(i, dst): e(f"v_cmp_ne_u32 {dst}, s{S_T[0]}, v{27+4*i}")
    if oslp: e(f"s_sleep {oslp}")
    mpoll(g, 2, o_load, o_check, 44, first=(lambda: e("s_barrier")) if GA == 1 else None, noretry=bool(dbg & 34), backoff=obo)
    if GA == 2: e("s_barrier")
    if diag: e("s_mov_b32 s91, s7")
    g.stamp(8)
    e("v_max_f32 v16, v26, v30")
    e("v_lshlrev_b32 v32, 16, v24"); e("v_and_b32 v33, 0xffff0000, v24")
    e("v_max_f32_dpp v16, v16, v16 row_ror:4 row_mask:0xf bank_mask:0xf")
    e("v_lshlrev_b32 v34, 16, v25"); e("v_and_b32 v35, 0xffff0000, v25")
    e("v_max_f32_dpp v16, v16, v16 row_ror:8 row_mask:0xf bank_mask:0xf")
    e("v_mov_b32 v9, v16")
    e("v_lshlrev_b32 v40, 16, v28"); e("v_and_b32 v41, 0xffff0000, v28")
    e("v_permlane16_swap_b32 v9, v16")
    g.nop(1)
    e("v_max_f32 v16, v9, v16")
    e("v_mov_b32 v9, v16")
    e("v_lshlrev_b32 v42, 16, v29"); e("v_and_b32 v43, 0xffff0000, v29")
    e("v_permlane32_swap_b32 v9, v16"); g.nop(1); e("v_max_f32 v16, v9, v16")
    e("v_sub_f32 v26, v26, v16"); e("v_sub_f32 v30, v30, v16")
    e("v_exp_f32 v26, v26"); e("v_exp_f32 v30, v30"); g.nop(1)
    e("v_add_f32 v36, v26, v30")
    for r in range(4): e(f"v_mul_f32 v{32+r}, v26, v{32+r}")
    for r in range(4): e(f"v_fmac_f32 v{32+r}, v30, v{40+r}")
    for ror in (4, 8):
        for r in (36, 32, 33, 34, 35): e(f"v_add_f32_dpp v{r}, v{r}, v{r} row_ror:{ror} row_mask:0xf bank_mask:0xf")
    xreduce(g, "v_add_f32", [36, 32, 33, 34, 35], [44, 40, 41, 42, 43])
    e("v_rcp_f32 v36, v36"); g.nop(1)
    for r in range(4): e(f"v_mul_f32 v{32+r}, v36, v{32+r}")
    for r in range(4): e(f"v_cvt_pk_bf16_f32 v{32+r}, v{32+r}, v{32+r}")
    e("s_mov_b64 exec, 15")
    e(f"ds_write2_b32 v2, v32, v33 offset0:{L_OO//4} offset1:{L_OO//4 + 16}")
    e(f"ds_write2_b32 v2, v34, v35 offset0:{L_OO//4 + 32} offset1:{L_OO//4 + 48}")
    lds_arrive(g, L_CNT + 12)
    g.stamp(9)
    e("s_branch L_fin")

    g.label("L_BX")
    mapB(5)
    e(f"s_mov_b32 s6, {32*7168}"); e("v_mul_lo_u32 v1, v2, s6"); e("v_lshl_add_u32 v1, v3, 4, v1")
    e("s_bfe_u32 s9, s5, 0x30001")
    e(f"s_mul_i32 s8, s9, {128*7168}"); e("s_lshr_b32 s7, s5, 4"); e("s_lshl_b32 s7, s7, 2"); e(f"s_add_u32 s7, s7, s{S_WAVE}")
    e("s_lshl_b32 s56, s7, 9")
    e("s_lshl_b32 s7, s7, 8"); e("s_add_u32 s8, s8, s7")
    e("s_mov_b32 s42, 7340032")
    e("s_and_b32 s6, s5, 1"); e("s_cmp_eq_u32 s6, 0")
    e("s_waitcnt lgkmcnt(0)")
    e("s_cselect_b32 s40, s28, s30"); e("s_cselect_b32 s41, s29, s31")
    g.stamp(1)
    def issue_B(k):
        r = V_W + 4 * (k & 15)
        e(f"buffer_load_dwordx4 v[{r}:{r+3}], v1, s[40:43], s8 offen{NT}")
        if k < 31: e("s_add_u32 s8, s8, 7168")
    for k in range(WB1): issue_B(k)
    ws_srd(); epoch()
    e("s_setprio 3")
    e("s_lshl_b32 s7, s9, 9"); e("v_lshl_add_u32 v120, v2, 7, s7")
    masks(g); consts(g)
    e("s_lshl_b32 s6, s6, 3"); e("s_add_u32 s6, s6, s9"); e("s_mul_i32 s6, s6, 14336"); e("s_add_u32 s56, s56, s6"); e(f"s_add_u32 s56, s56, {WS_GP}")
    e("v_lshlrev_b32 v121, 5, v3"); e("v_lshl_add_u32 v121, v2, 4, v121")
    e("v_lshrrev_b32 v122, 2, v0"); e("v_mul_u32_u24 v122, 14336, v122"); e("v_and_b32 v9, 3, v0"); e("v_lshl_add_u32 v122, v9, 4, v122")
    mapBd(57)
    e("s_lshr_b32 s57, s57, 1")
    if hv & 2: e("s_and_b32 s57, s57, 0xfb")
    e("s_lshl_b32 s57, s57, 8"); e(f"s_lshl_b32 s6, s{S_WAVE}, 6"); e("s_add_u32 s57, s57, s6"); e(f"s_add_u32 s57, s57, {WS_GP}")
    e("s_lshr_b32 s6, s6, 2"); e("v_lshl_add_u32 v123, v0, 2, s6")
    def posb(k): return k if k < WB1 else k + 1
    nis = WB1
    PRE = min(15, WB1 + PREB)
    role("BX")
    while nis < PRE:
        e(f"s_waitcnt vmcnt({WB1-1})"); issue_B(nis); nis += 1; tr(nis - WB1)
    e("s_barrier")
    for i in range(8):
        e(f"ds_read_b128 v[{V_XX+4*i}:{V_XX+4*i+3}], v120 offset:{L_XN + 16*i}")
    e("s_waitcnt lgkmcnt(7)")
    g.stamp(2)
    gemv_step(g, 0, V_XX)
    b2done = False
    for i in range(32):
        if i == 2: e("s_waitcnt lgkmcnt(0)")
        if i < 31: gemv_step(g, i + 1, V_XX + i + 1)
        e(f"s_waitcnt vmcnt({posb(nis-1) - posb(i)})")
        W = WB1 if i < WBsw else WB2
        if WBS:
            W = WB1
            for t in WBS.split("/"):
                i0, w0 = map(int, t.split(":"))
                if i >= i0: W = w0
        while nis < 32 and nis < i + 1 + W:
            issue_B(nis); nis += 1
        if nis == 32 and not b2done and 31 - i <= HB:
            e("s_barrier"); b2done = True
        gemv_mfma(g, i, V_W + 4 * (i & 15), i == 0)
        if i + 1 > PRE - WB1: tr(i + 1)
        if i == 20: make_tag(g)
    g.stamp(3)
    g.nop(7)
    e("s_mov_b32 exec_hi, 0")
    tagput(g, V_ACC)
    if hv & 2: e(f"s_cmp_ge_u32 s{S_WAVE}, 2"); e("s_cbranch_scc1 L_hv2")
    if not dbg & 16: e(f"buffer_store_dwordx4 v[20:23], v121, {WS}, s56 offen {ST}")
    if hv & 2: g.label("L_hv2")
    e("s_mov_b64 exec, -1")
    if not b2done: e("s_barrier")
    if ackw & 2: e("s_waitcnt vmcnt(0)")
    g.stamp(4)
    def h_load(i):
        if not dbg & 4: e(f"buffer_load_dwordx4 v[28:31], v122, {WS}, s57 offen {LD}")
    if hslp: e(f"s_sleep {hslp}")
    mpoll(g, 1, h_load, lambda i, dst: tagchk1(g, 28, dst), 44, first=(lambda: e("s_barrier")) if GB == 1 else None, noretry=bool(dbg & 36), backoff=hbo)
    if GB == 2: e("s_barrier")
    if diag: e("s_mov_b32 s90, s7")
    g.stamp(5)
    for r in range(4): e(f"v_and_b32 v{28+r}, s{S_MSK}, v{28+r}")
    for ror in (4, 8):
        for r in range(28, 32): e(f"v_add_f32_dpp v{r}, v{r}, v{r} row_ror:{ror} row_mask:0xf bank_mask:0xf")
    xreduce(g, "v_add_f32", [28, 29, 30, 31], [32, 33, 34, 35], steps=(16,))
    e("v_cvt_pk_bf16_f32 v28, v28, v29"); e("v_cvt_pk_bf16_f32 v29, v30, v31")
    e("v_mov_b32 v30, v28"); e("v_mov_b32 v31, v29"); g.nop(1)
    e("v_permlane32_swap_b32 v28, v30"); e("v_permlane32_swap_b32 v29, v31")
    e("s_mov_b32 s7, 0xbfb8aa3b")
    e("v_lshlrev_b32 v32, 16, v28"); e("v_and_b32 v33, 0xffff0000, v28"); e("v_lshlrev_b32 v34, 16, v29"); e("v_and_b32 v35, 0xffff0000, v29")
    for i in range(4): e(f"v_mul_f32 v{32+i}, s7, v{32+i}")
    for i in range(4): e(f"v_exp_f32 v{32+i}, v{32+i}")
    e("v_lshlrev_b32 v36, 16, v30"); e("v_and_b32 v37, 0xffff0000, v30"); e("v_lshlrev_b32 v38, 16, v31"); e("v_and_b32 v39, 0xffff0000, v31")
    for i in range(4): e(f"v_add_f32 v{32+i}, 1.0, v{32+i}")
    for i in range(4): e(f"v_rcp_f32 v{32+i}, v{32+i}")
    e("v_cvt_pk_bf16_f32 v9, v32, v33"); e("v_cvt_pk_bf16_f32 v10, v34, v35")
    e("v_lshlrev_b32 v32, 16, v9"); e("v_and_b32 v33, 0xffff0000, v9"); e("v_lshlrev_b32 v34, 16, v10"); e("v_and_b32 v35, 0xffff0000, v10")
    for i in range(4): e(f"v_mul_f32 v{32+i}, v{32+i}, v{36+i}")
    for i in range(4): e(f"v_cvt_pk_bf16_f32 v{32+i}, v{32+i}, v{32+i}")
    e("s_mov_b64 exec, 15")
    e(f"ds_write2_b32 v123, v32, v33 offset0:{L_OO//4} offset1:{L_OO//4 + 16}")
    e(f"ds_write2_b32 v123, v34, v35 offset0:{L_OO//4 + 32} offset1:{L_OO//4 + 48}")
    lds_arrive(g, L_CNT + 12)
    g.stamp(9)
    e("s_branch L_fin")

    g.label("L_Y")
    e("s_lshl_b32 s9, s9, 1"); e("v_lshl_add_u32 v122, v0, 4, s9")
    e("v_mov_b32 v9, 0"); e("v_mov_b32 v44, 0"); e("v_mov_b32 v45, 0"); e("v_mov_b32 v46, 0"); e("v_mov_b32 v47, 0")
    e(f"ds_write_b128 v9, v[44:47] offset:{L_CNT}")
    e("v_lshlrev_b32 v10, 2, v3"); e("v_mov_b32 v11, 0xff800000"); e(f"ds_write_b32 v10, v11 offset:{L_M}")
    e("s_cmp_ge_u32 s2, 128"); e("s_cbranch_scc1 L_YB")
    mapAo(5)
    e("s_mov_b32 s40, s24"); e("s_mov_b32 s41, s25"); e("s_mov_b32 s42, 0x800000")
    e("s_lshr_b32 s9, s5, 1")
    e("s_branch L_YC")
    g.label("L_YB")
    mapBd(5)
    e("s_mov_b32 s40, s32"); e("s_mov_b32 s41, s33"); e("s_mov_b32 s42, 7340032")
    e("s_lshr_b32 s9, s5, 1"); e("s_add_u32 s9, s9, 64")
    g.label("L_YC")
    e("v_lshlrev_b32 v120, 11, v2"); e("v_lshl_add_u32 v120, v3, 4, v120")
    e("s_lshr_b32 s8, s5, 1"); e("s_lshl_b32 s8, s8, 17"); e("s_and_b32 s6, s5, 1"); e("s_lshl_b32 s6, s6, 2")
    e(f"s_add_u32 s6, s6, s{S_WAVE}"); e("s_sub_u32 s6, s6, 4")
    e("s_lshl_b32 s7, s6, 8"); e("s_add_u32 s8, s8, s7")
    e(f"s_mul_i32 s59, s6, {2*120*256}"); e("s_lshl_b32 s9, s9, 8"); e("s_add_u32 s59, s59, s9"); e(f"s_add_u32 s59, s59, {WS_SP}")
    e("v_bfe_u32 v9, v0, 3, 1"); e(f"v_mul_u32_u24 v9, {120*256}, v9"); e("v_and_b32 v10, 7, v0"); e("v_lshl_add_u32 v9, v10, 5, v9")
    e("v_lshl_add_u32 v121, v2, 4, v9")
    if tlb:
        lt = g.newlab("Ltl"); lt2 = g.newlab("Ltl")
        e(f"s_cmp_lg_u32 s{S_WAVE}, 4"); e(f"s_cbranch_scc1 {lt}")
        e("s_mov_b64 exec, 1")
        e(f"buffer_load_dword v19, off, s[40:43], s8{NT}")
        e("s_cmp_ge_u32 s2, 128"); e(f"s_cbranch_scc1 {lt2}")
        mapA(57)
        e("s_lshr_b32 s56, s57, 5"); e("s_lshl_b32 s56, s56, 24"); e("s_and_b32 s7, s57, 31"); e("s_lshl_b32 s7, s7, 15"); e("s_add_u32 s56, s56, s7")
        e(f"s_add_u32 s56, s56, {61440*256}")
        g.srd(44, 18, 67108864); g.srd(60, 20, 67108864)
        e(f"buffer_load_dword v19, off, s[44:47], s56{NT}")
        e(f"buffer_load_dword v19, off, s[60:63], s56{NT}")
        g.label(lt2)
        e("s_mov_b64 exec, -1")
        g.label(lt)
    masks(g); consts(g)
    e("v_mov_b32 v12, 0x3f803f80"); e("v_mov_b32 v9, 0"); e("v_mov_b32 v10, 0"); e("v_mov_b32 v11, 0x3a800000")
    if tlb:
        lt = g.newlab("Ltw"); lt2 = g.newlab("Ltw"); lt3 = g.newlab("Ltw")
        e(f"s_cmp_lg_u32 s{S_WAVE}, 4"); e(f"s_cbranch_scc1 {lt}")
        e("s_cmp_ge_u32 s2, 128"); e(f"s_cbranch_scc1 {lt3}")
        e("s_waitcnt vmcnt(3)"); e(f"s_branch {lt2}")
        g.label(lt3)
        e("s_waitcnt vmcnt(1)"); e(f"s_branch {lt2}")
        g.label(lt)
        e("s_waitcnt vmcnt(0)")
        g.label(lt2)
    else: e("s_waitcnt vmcnt(1)")
    g.stamp(1)
    layernorm(g, 112, 110)
    e(f"ds_write_b128 v122, v[24:27] offset:{L_XN}")
    e("s_waitcnt lgkmcnt(0)" + ("" if tlb else " vmcnt(0)"))
    g.stamp(6)
    e("s_barrier")
    make_tag(g)
    e("s_cmp_ge_u32 s2, 128"); e("s_cbranch_scc1 L_YB2")
    mapA(5)
    att_pre()
    e("s_branch L_att")
    def ystream(k0, W1, N1, W2, gate):
        n2 = 0
        for k in range(k0, 16):
            if gate and k == max(N1, k0): e("s_barrier")
            W = W1 if k < N1 else W2
            if k >= W: e(f"s_waitcnt vmcnt({W-1})")
            yload(k)
            if k >= W: tr(k + 1 - W)
        if gate and max(N1, k0) >= 16: e("s_barrier")
        if trace:
            for k in range(W - 1, -1, -1): e(f"s_waitcnt vmcnt({k})"); tr(16 - k)
    g.label("L_YA2")
    e("s_setprio 0")
    role("AY"); ystream(NPRE, WYA, N1A, W2A, GA)
    e("s_branch L_YL3")
    g.label("L_YB2")
    e("s_setprio 0")
    e("s_barrier")
    g.stamp(2)
    role("BY"); ystream(0, WYB, N1B, W2B, GB)
    g.label("L_YL3")
    g.stamp(3)
    e("v_and_b32 v120, 48, v0"); e("v_lshlrev_b32 v120, 2, v120")
    lds_spin(g, L_CNT + 12, 4)
    g.stamp(4)
    for i in range(4):
        e(f"ds_read_b128 v[{V_XX+4*i}:{V_XX+4*i+3}], v120 offset:{L_OO + 16*i}")
    e("s_waitcnt lgkmcnt(3)")
    gemv_step(g, 0, V_XX)
    for i in range(16):
        if i < 15: gemv_step(g, i + 1, V_XX + i + 1)
        e(f"s_waitcnt vmcnt({15-i})" + (" lgkmcnt(0)" if i == 2 else ""))
        gemv_mfma(g, i, V_W + 4 * i, i == 0)
    g.nop(7)
    e("s_mov_b32 exec_hi, 0")
    tagput(g, V_ACC)
    if not dbg & 16: e(f"buffer_store_dwordx4 v[{V_ACC}:{V_ACC+3}], v121, {WS}, s59 offen {ST}")
    e("s_mov_b64 exec, -1")
    g.stamp(9)
    e("s_branch L_fin")

    g.label("L_C")
    if cpf:
        e("s_getpc_b64 s[60:61]")
        g.label("L_pc")
        e(f"s_sub_u32 s60, s60, L_pc-{NAME}_kernel"); e("s_subb_u32 s61, s61, 0")
        e(f"s_lshl_b32 s6, s{S_WAVE}, 11"); e("v_lshl_add_u32 v9, v0, 5, s6")
        e(f"v_min_u32 v9, L_fail-{NAME}_kernel, v9")
        e("global_load_dword v10, v9, s[60:61]")
    e("s_waitcnt lgkmcnt(0)")
    ws_srd(); epoch()
    if dbg & 256: e("s_branch L_fin")
    consts(g)
    mapC(5)
    e(f"s_lshl_b32 s6, s{S_WAVE}, 4"); e(f"s_mul_i32 s7, s{S_WAVE}, 14"); e("s_add_u32 s7, s7, 8")
    e(f"s_cmp_lt_u32 s{S_WAVE}, 4"); e("s_cselect_b32 s6, s6, s7")
    e("s_cselect_b32 s57, 0, 512")
    e(f"s_cselect_b32 s58, s{S_MSK}, 0")
    e("s_lshl_b32 s6, s6, 8"); e(f"s_mul_i32 s8, s5, {120*256}"); e("s_add_u32 s8, s8, s6"); e(f"s_add_u32 s8, s8, {WS_SP}")
    e("v_lshlrev_b32 v1, 4, v0")
    e("v_and_b32 v122, s57, v1"); e("v_sub_u32 v122, v1, v122")
    e(f"v_mov_b32 v123, s{S_MSK}"); e("s_mov_b32 exec_lo, 0"); e("v_mov_b32 v123, s58"); e("s_mov_b32 exec_lo, -1")
    g.srd(48, 16, 2048); g.srd(44, 34, 2048)
    e("v_lshl_add_u32 v121, v3, 2, v2")
    e("s_lshl_b32 s9, s5, 7"); e("v_lshlrev_b32 v125, 1, v121")
    e("buffer_load_ushort v126, v125, s[48:51], s9 offen")
    e("s_waitcnt vmcnt(0)")
    make_tag(g)
    e("s_barrier")
    e(f"s_cmp_lg_u32 s{S_WAVE}, 1"); e("s_cbranch_scc1 L_C1")
    e("s_mov_b32 s6, 1"); e("s_atomic_add s6, s[36:37], 0")
    e("s_cmp_lg_u32 s5, 0"); e("s_cbranch_scc1 L_C1")
    lp = g.newlab("Le")
    e(f"s_mov_b32 s7, {SPIN}")
    g.label(lp)
    e("s_load_dword s6, s[36:37], 0 glc")
    e("s_sub_u32 s7, s7, 1"); e("s_cbranch_scc1 L_fail")
    e("s_waitcnt lgkmcnt(0)")
    e("s_cmp_lt_u32 s6, 16"); e(f"s_cbranch_scc1 {lp}")
    g.label("L_C1")
    if dbg & 1024: e("s_branch L_fin")
    if cwait and not dbg & 8:
        lpw = g.newlab("Lcw")
        e(f"s_lshl_b32 s6, s5, 3"); e(f"s_add_u32 s6, s6, s{S_WAVE}"); e("s_lshl_b32 s6, s6, 12"); e(f"s_add_u32 s6, s6, {WS_OP + 12}")
        e(f"s_mov_b32 s7, {SPIN}")
        g.label(lpw)
        e("s_sleep 8")
        e(f"buffer_load_dword v9, off, {WS}, s6 {LD}")
        e("s_sub_u32 s7, s7, 1"); e("s_cbranch_scc1 L_fail")
        e("s_waitcnt vmcnt(0)")
        e(f"v_cmp_ne_u32 vcc, s{S_T[0]}, v9"); e(f"s_cbranch_vccnz {lpw}")
    if cw2:
        lpw = g.newlab("Lcw")
        e(f"s_mov_b32 s7, {SPIN}")
        e("s_mov_b64 exec, 1")
        g.label(lpw)
        e("s_sleep 1")
        e(f"buffer_load_dwordx4 v[24:27], v1, {WS}, s8 offen {LD}")
        e("s_sub_u32 s7, s7, 1"); e("s_cbranch_scc1 L_fail")
        e("s_waitcnt vmcnt(0)")
        tagchk1(g, 24, "vcc"); e(f"s_cbranch_vccnz {lpw}")
        e("s_mov_b64 exec, -1")
    if cdel:
        lpd = g.newlab("Lcd"); e(f"s_mov_b32 s7, {cdel}"); g.label(lpd); e("s_sleep 16"); e("s_sub_u32 s7, s7, 1"); e("s_cmp_lg_u32 s7, 0"); e(f"s_cbranch_scc1 {lpd}")
    e("v_mul_u32_u24 v121, 48, v0"); e(f"s_lshl_b32 s6, s{S_WAVE}, 2"); e("v_add_u32 v120, s6, v121"); e("v_lshlrev_b32 v126, 16, v126")
    def c_load(i):
        e(f"buffer_load_dwordx4 v[{24+4*i}:{27+4*i}], {'v1' if i < 3 else 'v122'}, {WS}, s8 offen offset:{1024*i} {LD}")
    mpoll(g, 4, c_load, lambda i, dst: tagchk1(g, 24 + 4 * i, dst), 16, noretry=bool(dbg & 8), backoff=cbo)
    if diag: e("s_mov_b32 s90, s7")
    g.stamp(5)
    for r in range(12): e(f"v_and_b32 v{24+r}, s{S_MSK}, v{24+r}")
    for r in range(12, 16): e(f"v_and_b32 v{24+r}, v123, v{24+r}")
    for st in (8, 4):
        for r in range(0, st, 2): e(f"v_pk_add_f32 v[{24+r}:{25+r}], v[{24+r}:{25+r}], v[{24+st+r}:{25+st+r}]")
    g.nop(2)
    e("v_permlane32_swap_b32 v24, v26"); e("v_permlane32_swap_b32 v25, v27"); g.nop(1)
    e("v_add_f32 v24, v24, v26"); e("v_add_f32 v25, v25, v27"); g.nop(2)
    e("v_permlane16_swap_b32 v24, v25"); g.nop(1)
    e("v_add_f32 v24, v24, v25")
    e(f"ds_write_b32 v120, v24 offset:{L_XN}")
    e("s_waitcnt lgkmcnt(0)")
    e("s_barrier")
    e(f"s_cmp_lg_u32 s{S_WAVE}, 0"); e("s_cbranch_scc1 L_C3")
    e(f"ds_read_b128 v[28:31], v121 offset:{L_XN + 16}"); e(f"ds_read_b128 v[24:27], v121 offset:{L_XN}")
    e("s_waitcnt lgkmcnt(1)")
    e("v_add_f32 v28, v28, v29"); e("v_add_f32 v30, v30, v31"); e("v_add_f32 v28, v28, v30")
    e("v_cvt_pk_bf16_f32 v28, v28, v28"); e("v_lshlrev_b32 v28, 16, v28")
    e("v_mul_f32 v10, 0xbfb8aa3b, v28"); e("v_exp_f32 v10, v10")
    e("s_waitcnt lgkmcnt(0)")
    e("v_add_f32 v24, v24, v25"); e("v_add_f32 v10, 1.0, v10"); e("v_rcp_f32 v10, v10")
    e("v_add_f32 v26, v26, v27"); e("v_add_f32 v24, v24, v26")
    e("v_mul_f32 v10, v28, v10")
    e("v_cvt_pk_bf16_f32 v10, v10, v24")
    e("v_and_b32 v24, 0xffff0000, v10"); e("v_lshlrev_b32 v10, 16, v10")
    e("v_mul_f32 v10, v24, v10")
    e("v_cvt_pk_bf16_f32 v10, v10, v10"); e("v_lshlrev_b32 v10, 16, v10")
    e("v_add_f32 v10, v126, v10")
    e("v_cvt_pk_bf16_f32 v10, v10, v10")
    if ost < 4: e("buffer_store_short v10, v125, s[44:47], s9 offen" + ["", " sc1", " nt", " sc0 sc1"][ost])
    if pad:
        g.label("L_p2")
        e("s_memrealtime s[92:93]"); e("s_waitcnt lgkmcnt(0)"); e("s_sub_u32 s92, s92, s94"); e("s_cmp_lt_u32 s92, 5000"); e("s_cbranch_scc1 L_p2")
    g.stamp(9)
    if not diag and not probe: e("s_endpgm")
    g.label("L_C3")
    e(f"s_cmp_lg_u32 s{S_WAVE}, 1"); e("s_cbranch_scc1 L_fin")
    e("s_cmp_lg_u32 s5, 0"); e("s_cbranch_scc1 L_fin")
    e("s_mov_b64 exec, 1")
    e(f"v_mov_b32 v10, s{S_T[0]}")
    e(f"buffer_store_dword v10, off, {WS}, 0 offset:{WS_E} sc1")
    e("s_mov_b64 exec, -1")
    g.label("L_fin")
    if probe:
        def until(lab, base, t):
            g.label(lab); e("s_sleep 4"); e("s_memrealtime s[92:93]"); e("s_waitcnt lgkmcnt(0)"); e(f"s_sub_u32 s92, s92, {base}"); e(f"s_cmp_lt_u32 s92, {t}"); e(f"s_cbranch_scc1 {lab}")
        e("s_waitcnt vmcnt(0)")
        if pidx == 10: g.stamp(10)
        until("L_q0", "s64", 1600)
        e(f"s_cmp_lg_u32 s{S_WAVE}, 0"); e("s_cbranch_scc1 L_q1")
        e("s_not_b32 s6, s64"); e("s_atomic_umax s6, s[36:37], 128")
        g.label("L_q1")
        e(f"s_cmp_lt_u32 s2, {pw0}"); e("s_cbranch_scc1 L_q2"); e(f"s_cmp_ge_u32 s2, {pw1}"); e("s_cbranch_scc1 L_q2")
        e(f"s_cmp_lt_u32 s{S_WAVE}, {pv0}"); e("s_cbranch_scc1 L_q2"); e(f"s_cmp_ge_u32 s{S_WAVE}, {pv1}"); e("s_cbranch_scc1 L_q2")
        e(f"s_mov_b32 s6, s{64+2*pidx}"); e("s_atomic_umax s6, s[36:37], 192")
        g.label("L_q2")
        e("s_cmp_lg_u32 s2, 255"); e("s_cbranch_scc1 L_end"); e(f"s_cmp_lg_u32 s{S_WAVE}, 0"); e("s_cbranch_scc1 L_end")
        until("L_q3", "s64", 6000)
        e("s_load_dword s8, s[36:37], 128 glc"); e("s_load_dword s9, s[36:37], 192 glc"); e("s_waitcnt lgkmcnt(0)")
        e("s_not_b32 s8, s8"); e("s_sub_u32 s9, s9, s8"); e("s_min_u32 s9, s9, 3000"); e("s_mul_i32 s9, s9, 10"); e("s_add_u32 s9, s9, 7000")
        g.label("L_q4"); e("s_memrealtime s[92:93]"); e("s_waitcnt lgkmcnt(0)"); e("s_sub_u32 s92, s92, s8"); e("s_cmp_lt_u32 s92, s9"); e("s_cbranch_scc1 L_q4")
    if diag:
        e("s_waitcnt vmcnt(0)")
        g.stamp(10)
        e("s_getreg_b32 s92, hwreg(HW_REG_XCC_ID)")
        e("s_waitcnt lgkmcnt(0)")
        e("s_lshl_b32 s6, s2, 3"); e(f"s_add_u32 s6, s6, s{S_WAVE}"); e("s_lshl_b32 s6, s6, 6"); e(f"s_add_u32 s6, s6, {WS_DIAG}")
        if trace:
            e("s_mov_b64 exec, -1"); e("s_lshl_b32 s7, s6, 2"); e(f"s_sub_u32 s7, s7, {3*WS_DIAG - 0x40000}"); e("v_lshlrev_b32 v1, 2, v0")
            e(f"buffer_store_dword v128, v1, {WS}, s7 offen")
        e("s_mov_b64 exec, 1"); e("v_mov_b32 v1, 0")
        for i in range(11):
            e(f"v_mov_b32 v2, s{64+2*i}"); e(f"buffer_store_dword v2, v1, {WS}, s6 offen offset:{4*i}")
        for i, sr in enumerate((90, 91, 92)):
            e(f"v_mov_b32 v2, s{sr}"); e(f"buffer_store_dword v2, v1, {WS}, s6 offen offset:{44+4*i}")
    g.label("L_end")
    e("s_endpgm")
    g.label("L_fail")
    e("s_endpgm")
    g.L += ['.section .rodata,"a"', ".p2align 6", f".amdhsa_kernel {NAME}_kernel",
            f"  .amdhsa_next_free_vgpr {136 if trace else 128}", "  .amdhsa_next_free_sgpr 96", f"  .amdhsa_accum_offset {136 if trace else 128}",
            "  .amdhsa_group_segment_fixed_size 0", "  .amdhsa_kernarg_size 96", "  .amdhsa_user_sgpr_count 2",
            "  .amdhsa_user_sgpr_kernarg_segment_ptr 1", "  .amdhsa_system_sgpr_workgroup_id_x 1",
            ".end_amdhsa_kernel"]
    out = "\n".join(x for x in g.L if x is not None) + "\n"
    if not diag and not probe: out = out.replace("  s_branch L_fin\n", "  s_endpgm\n")
    return out

F = [("AX:st",0,128,0,4,0),("wq",0,128,0,4,3),("pubq",0,128,0,4,4),("K",0,128,0,4,1),("gotq",0,128,0,8,2),("bq",0,128,0,4,5),("pubo",0,128,0,8,7),("ack",0,128,0,4,6),("goto",0,128,0,4,8),("oo",0,128,0,4,9),
     ("AY:ln",0,128,4,8,6),("iss",0,128,4,8,3),("flag",0,128,4,8,4),("pub",0,128,4,8,9),("ack",0,128,4,8,10),
     ("BX:xn",128,240,0,4,2),("gu",128,240,0,4,3),("ack",128,240,0,4,4),("goth",128,240,0,4,5),("hh",128,240,0,4,9),
     ("BY:go",128,240,4,8,2),("iss",128,240,4,8,3),("flag",128,240,4,8,4),("pub",128,240,4,8,9),("ack",128,240,4,8,10),
     ("C:got",240,256,0,8,5),("out",240,256,0,1,9),("end",0,256,0,8,10)]
POLLS = [("q", 0, 128, 0, 8, 11), ("o", 0, 128, 0, 4, 12), ("h", 128, 240, 0, 4, 11), ("fin", 240, 256, 0, 8, 11)]

def parse(cfg):
    kw = {}
    for t in cfg.split(","):
        if not t: continue
        k, v = t.split("=")
        kw[k] = v if k in ("pad", "NT", "WBS", "probe") else int(v)
    return kw

if __name__ == "__main__":
    open(sys.argv[1], "w").write(gen(**parse(sys.argv[2] if len(sys.argv) > 2 else "")))

def valid(c):
    return c.get("npe", 0) <= c.get("NPRE", 4) <= 8 and c.get("WA", 8) <= 14
```

```python
import sys
NAME = "recurrent_scan__sliding_block_cached__glu_gated_glu__decode"
HEADER = open("cdna_kernels/" + NAME + ".s.ref").read().split("; @launch")[0]
NEWDIAG = 1

WS_E  = 0x0
WS_QP = 0x1000
WS_GP = 0x21000
WS_OP = 0x60000
WS_SP = 0xE8000
WS_USED = 0x160000
WS_DIAG = 0x1000000
L_CNT = 0
L_M   = 64
L_OO  = 512
L_RED = 2048
L_Q   = 4096
L_XN  = 8192
L_P   = 8192
L_K   = 12288
L_V   = 45056
LDS_BYTES = 77824
SPIN = 200000

class G:
    def __init__(s, diag):
        s.L = []; s.diag = diag; s.lab = 0
    def e(s, t): s.L.append("  " + t)
    def label(s, n): s.L.append(n + ":")
    def newlab(s, p="L"):
        s.lab += 1; return f"{p}_{s.lab}"
    def nop(s, n):
        while n > 0:
            k = min(n, 16); s.e(f"s_nop {k-1}"); n -= k
    def stamp(s, i):
        if s.diag:
            s.e("s_memrealtime s[100:101]"); s.e("s_waitcnt lgkmcnt(0)"); s.e(f"v_writelane_b32 v128, s100, {i}")
    def note(s, i, sreg):
        if s.diag: s.e(f"v_writelane_b32 v128, s{sreg}, {i}")
    def srd(s, d, lo, size):
        s.e(f"s_mov_b32 s{d}, s{lo}"); s.e(f"s_mov_b32 s{d+1}, s{lo+1}")
        s.e(f"s_mov_b32 s{d+2}, {size:#x}"); s.e(f"s_mov_b32 s{d+3}, 0x20000")

S_WAVE = 4
S_T = [10, 11, 12, 13]
S_SELA = 14; S_SELB = 15
S_MSK = 3
WS = "s[36:39]"; WSP = "s[36:37]"
SLOTS = [16, 48, 64, 80]
V_M = 4; V_FF = 8; V_TMP = 12; V_ACC = 20; V_XX = 24; V_ACC1 = 48; V_W = 56

def tagput(g, r):
    for i in range(4): g.e(f"v_add_u32 v{r+i}, 0x80, v{r+i}")
    for i in range(4): g.e(f"v_bfi_b32 v{r+i}, v{V_FF}, s{S_T[i]}, v{r+i}")

def wave_sum(g, v, sdst, fill=()):
    fill = list(fill)
    def pad(n):
        for _ in range(n):
            if fill: g.e(fill.pop(0))
            else: g.nop(1)
    for ror in (8, 4, 2, 1):
        pad(2); g.e(f"v_add_f32_dpp v{v}, v{v}, v{v} row_ror:{ror} row_mask:0xf bank_mask:0xf")
    pad(2); g.e(f"v_add_f32_dpp v{v}, v{v}, v{v} row_bcast:15 row_mask:0xa bank_mask:0xf")
    pad(2); g.e(f"v_add_f32_dpp v{v}, v{v}, v{v} row_bcast:31 row_mask:0xc bank_mask:0xf")
    pad(1); g.e(f"v_readlane_b32 s{sdst}, v{v}, 63")
    pad(2)
    for f in fill: g.e(f)

def xreduce(g, op, regs, tmps, steps=(16, 32)):
    for st in steps:
        for r, t in zip(regs, tmps): g.e(f"v_mov_b32 v{t}, v{r}")
        if len(regs) < 3: g.nop(3 - len(regs))
        for r, t in zip(regs, tmps): g.e(f"v_permlane{st}_swap_b32 v{t}, v{r}")
        if len(regs) < 2: g.nop(1)
        for r, t in zip(regs, tmps): g.e(f"{op} v{r}, v{t}, v{r}")

def layernorm(g, xr, xm):
    U = 28
    for i in range(8): g.e(f"v_dot2c_f32_bf16 v{9 + (i & 1)}, v12, v{xr+i}")
    unp = []
    for i in range(8):
        unp += [f"v_lshlrev_b32 v{U+2*i}, 16, v{xr+i}", f"v_and_b32 v{U+2*i+1}, 0xffff0000, v{xr+i}"]
    for _ in range(3): g.e(unp.pop(0))
    g.e("v_add_f32 v9, v9, v10")
    wave_sum(g, 9, 6, unp)
    g.e("v_mul_f32 v2, s6, v11"); g.e("v_mul_f32 v3, s6, v11")
    for i in range(0, 16, 2):
        g.e(f"v_pk_add_f32 v[{U+i}:{U+i+1}], v[{U+i}:{U+i+1}], v[2:3] neg_lo:[0,1] neg_hi:[0,1]")
    for i in range(0, 16, 2):
        a = 44 + 2 * ((i >> 1) & 1)
        g.e(f"v_pk_fma_f32 v[{a}:{a+1}], v[{U+i}:{U+i+1}], v[{U+i}:{U+i+1}], v[{a}:{a+1}]")
    g.e("v_pk_add_f32 v[44:45], v[44:45], v[46:47]")
    g.e("v_add_f32 v9, v44, v45")
    fill = [f"v_lshlrev_b32 v24, 16, v{xm}", f"v_and_b32 v25, 0xffff0000, v{xm}", f"v_lshlrev_b32 v26, 16, v{xm+1}", f"v_and_b32 v27, 0xffff0000, v{xm+1}",
            "v_cvt_pk_bf16_f32 v3, v3, v3", "v_lshlrev_b32 v3, 16, v3"] + [f"v_sub_f32 v{24+i}, v{24+i}, v3" for i in range(4)] + \
           ["v_cvt_pk_bf16_f32 v10, v24, v25", "v_cvt_pk_bf16_f32 v2, v26, v27", "v_lshlrev_b32 v24, 16, v10", "v_and_b32 v25, 0xffff0000, v10", "v_lshlrev_b32 v26, 16, v2"]
    wave_sum(g, 9, 6, fill)
    g.e("v_mul_f32 v9, s6, v11")
    g.e("v_cvt_pk_bf16_f32 v9, v9, v9"); g.e("v_lshlrev_b32 v9, 16, v9")
    g.e("v_add_f32 v9, 0x3727c5ac, v9")
    g.e("v_cvt_pk_bf16_f32 v9, v9, v9"); g.e("v_lshlrev_b32 v9, 16, v9")
    g.e("v_sqrt_f32 v9, v9")
    g.e("v_and_b32 v27, 0xffff0000, v2")
    g.e("v_cvt_pk_bf16_f32 v9, v9, v9"); g.e("v_lshlrev_b32 v9, 16, v9")
    g.e("v_rcp_f32 v9, v9"); g.nop(1)
    for i in range(4): g.e(f"v_mul_f32 v{24+i}, v{24+i}, v9")
    for i in range(4): g.e(f"v_cvt_pk_bf16_f32 v{24+i}, v{24+i}, v{24+i}")

def sel_half(g, m, h):
    t = V_TMP + 4 * (m & 1)
    for r in (2 * h, 2 * h + 1): g.e(f"v_and_b32 v{t+r}, v{V_XX+m}, v{V_M+r}")
def gemv_mfma(g, i, w):
    t = V_TMP + 4 * ((i >> 1) & 1); a = V_ACC1 if i & 1 else V_ACC
    c = "0" if i < 2 else f"v[{a}:{a+3}]"
    g.e(f"v_mfma_f32_16x16x32_bf16 v[{a}:{a+3}], v[{t}:{t+3}], v[{w}:{w+3}], {c}")
def gemv_pre(g, i, n):
    m = (i >> 1) + 1
    if 2 * m < n: sel_half(g, m, i & 1)
def gemv_fin(g, pad=8):
    g.nop(pad)
    for r in range(4): g.e(f"v_permlane32_swap_b32 v{V_ACC1+r}, v{V_XX+r}")
    g.e("s_mov_b32 exec_hi, 0")
    for r in (0, 2): g.e(f"v_pk_add_f32 v[{V_ACC+r}:{V_ACC+r+1}], v[{V_ACC+r}:{V_ACC+r+1}], v[{V_XX+r}:{V_XX+r+1}]")

def mpoll(g, n, load, check, sbase, first=None, noretry=False, backoff=0, sfix=None):
    e = g.e
    lp = g.newlab("Lm"); chk = g.newlab("Lmc"); again = g.newlab("Lma")
    M = lambda i: f"s[{sbase+2*i}:{sbase+2*i+1}]"
    for i in range(n): load(i)
    if first: first()
    else: e("s_waitcnt vmcnt(0)")
    e(f"s_mov_b32 s7, {SPIN}")
    e(f"s_branch {chk}")
    g.label(again)
    e("s_sub_u32 s7, s7, 1"); e("s_cbranch_scc1 L_fail")
    if sfix:
        spl, regs, bases, stride, pre, lim = sfix
        for i in range(n):
            e(f"s_bcnt1_i32_b64 s6, {M(i)}"); e(f"s_cmp_gt_u32 s6, {4*lim}"); e(f"s_cbranch_scc1 {lp}")
        sl = 0
        for i in range(n):
            for k in range(spl):
                src = M(i) if k == 0 else "s[40:41]"
                R = SLOTS[sl]; ln = 96 + sl
                sk = g.newlab("Lss")
                e(f"s_ff1_i32_b64 s{ln}, {src}")
                e(f"s_and_b32 s{ln}, s{ln}, -4")
                if k < spl - 1:
                    e(f"s_bfm_b64 s[42:43], 4, s{ln}"); e(f"s_andn2_b64 s[40:41], {src}, s[42:43]")
                e(f"s_cmp_lt_i32 s{ln}, 0"); e(f"s_cbranch_scc1 {sk}")
                e(f"s_mul_i32 s6, s{ln}, {stride // 4}"); e(f"s_add_u32 s6, s6, s{bases[i]}")
                e(f"s_load_dwordx16 s[{R}:{R+15}], {WSP}, s6 glc")
                g.label(sk)
                sl += 1
        e("s_waitcnt lgkmcnt(0)")
        sl = 0
        for i in range(n):
            for k in range(spl):
                R = SLOTS[sl]; ln = 96 + sl
                sk = g.newlab("Lsi")
                e(f"s_cmp_lt_i32 s{ln}, 0"); e(f"s_cbranch_scc1 {sk}")
                pre(R); e(f"s_cbranch_scc1 {sk}")
                for q in range(4):
                    e(f"s_lshl_b64 exec, 1, s{ln}" if q == 0 else "s_lshl_b64 exec, exec, 1")
                    e(f"v_mov_b64 v[{regs[i]}:{regs[i]+1}], s[{R+4*q}:{R+4*q+1}]"); e(f"v_mov_b64 v[{regs[i]+2}:{regs[i]+3}], s[{R+4*q+2}:{R+4*q+3}]")
                g.label(sk)
                sl += 1
        e("s_mov_b64 exec, -1")
        if g.diag: e("s_sub_u32 s7, s7, 99")
        e(f"s_branch {chk}")
    g.label(lp)
    if backoff: e(f"s_sleep {backoff}")
    for i in range(n):
        e(f"s_mov_b64 exec, {M(i)}")
        if n > 1:
            sk = g.newlab("Lms"); e(f"s_cbranch_execz {sk}"); load(i); g.label(sk)
        else: load(i)
    e("s_mov_b64 exec, -1")
    e("s_waitcnt vmcnt(0)")
    g.label(chk)
    for i in range(n): check(i, M(i))
    if n == 1:
        e(f"s_cmp_lg_u64 {M(0)}, 0")
    else:
        e(f"s_or_b64 vcc, {M(0)}, {M(1)}")
        for i in range(2, n): e(f"s_or_b64 vcc, vcc, {M(i)}")
    if not noretry: e(f"s_cbranch_scc1 {again}")

def tagchk1(g, r, dst):
    g.e(f"v_perm_b32 v9, v{r+1}, v{r}, s{S_SELA}")
    g.e(f"v_perm_b32 v10, v{r+3}, v{r+2}, s{S_SELB}")
    g.e(f"v_or_b32 v9, v9, v10")
    g.e(f"v_cmp_ne_u32 {dst}, s{S_T[0]}, v9")

def make_tag(g):
    g.e(f"v_readfirstlane_b32 s{S_T[0]}, v124")
    g.nop(1)
    g.e(f"s_add_u32 s{S_T[0]}, s{S_T[0]}, 0x9e3779b9")
    for i in range(1, 4): g.e(f"s_lshr_b32 s{S_T[i]}, s{S_T[0]}, {8*i}")

def masks(g):
    e = g.e
    e("v_and_b32 v9, 1, v0"); e("v_lshlrev_b32 v9, 4, v9"); e("v_mov_b32 v10, 0xffff"); e("v_lshlrev_b32 v10, v9, v10")
    e("v_bfe_u32 v9, v0, 1, 2")
    for r in range(4):
        e(f"v_cmp_eq_u32 vcc, {r}, v9"); g.nop(2); e(f"v_cndmask_b32 v{V_M+r}, 0, v10, vcc")
def consts(g):
    e = g.e
    e(f"v_mov_b32 v{V_FF}, 0xff")
    e(f"s_mov_b32 s{S_SELA}, 0x0c0c0400"); e(f"s_mov_b32 s{S_SELB}, 0x04000c0c"); e(f"s_mov_b32 s{S_MSK}, 0xffffff00")

def gen(diag=False, WA=8, WB1=5, WB2=8, WBsw=14, WYA=6, WYB=6, HB=3, NT=" nt", dbg=0, ackw=0,
        PREA=6, PREB=4, QW=4, NPRE=4, npe=4, cpf=1, cbo=0, obo=0, hbo=0,
        N1A=16, W2A=8, GA=0, N1B=16, W2B=8, GB=0, oslp=20, hslp=24, cwait=1, trace=0, pair=0, rotg=2,
        sfo=1, sfh=1, limo=2, limh=4, sfc=0, limc=1, nost=0, OS=4224, GS=14464, nv=0, nm=0, np_=0, heads=1, ost=3):
    NQ = NPRE - npe - nv - nm - np_; assert NQ >= 0 and NPRE <= 12
    global TR
    TR = {}; cur = [None]
    g = G(diag); e = g.e
    def role(n): cur[0] = n; TR.setdefault(n, [])
    def tr(landed):
        if not trace: return
        i = len(TR[cur[0]]); TR[cur[0]].append(landed); g.stamp(16 + i)
    ST = "sc1"; LD = "sc1"
    wssize = WS_DIAG + 0x100000 if diag else WS_USED
    g.L.append(HEADER.rstrip("\n"))
    g.L.append(f"; @launch grid=(256,1,1) block=(512,1,1) lds={LDS_BYTES}")
    g.L.append('.amdgcn_target "amdgcn-amd-amdhsa--gfx950"')
    g.L += [".text", f".globl {NAME}_kernel", ".p2align 8", f".type {NAME}_kernel,@function", f"{NAME}_kernel:"]
    def mapA(dst):
        e(f"s_and_b32 s{dst}, s2, 7"); e(f"s_lshl_b32 s{dst}, s{dst}, 4"); e("s_lshr_b32 s6, s2, 3"); e(f"s_add_u32 s{dst}, s{dst}, s6")
    def mapAq(dst, a):
        e(f"s_add_u32 s{dst}, s{a}, 32"); e(f"s_and_b32 s{dst}, s{dst}, 127")
    def mapAo(dst):
        if pair & 1:
            e(f"s_and_b32 s{dst}, s2, 7"); e(f"s_xor_b32 s{dst}, s{dst}, 4"); e(f"s_lshl_b32 s{dst}, s{dst}, 4"); e("s_lshr_b32 s6, s2, 3"); e(f"s_add_u32 s{dst}, s{dst}, s6")
        else:
            e("s_bfe_u32 s6, s2, 0x10002"); e(f"s_lshl_b32 s{dst}, s6, 1"); e(f"s_add_u32 s{dst}, s{dst}, s2"); e(f"s_add_u32 s{dst}, s{dst}, 1")
            e(f"s_and_b32 s{dst}, s{dst}, 3"); e(f"s_lshl_b32 s{dst}, s{dst}, 4"); e("s_lshr_b32 s7, s2, 3"); e(f"s_add_u32 s{dst}, s{dst}, s7")
            e(f"s_lshl_b32 s{dst}, s{dst}, 1"); e(f"s_add_u32 s{dst}, s{dst}, s6")
    def mapB(dst):
        e("s_sub_u32 s6, s2, 128"); e(f"s_and_b32 s{dst}, s6, 7"); e(f"s_mul_i32 s{dst}, s{dst}, 14"); e("s_lshr_b32 s6, s6, 3"); e(f"s_add_u32 s{dst}, s{dst}, s6")
    JT = [1, 2, 3, 0, 3, 0, 1, 2]
    JTAB = sum(j << (4 * x) for x, j in enumerate(JT))
    def mapBd(dst):
        if pair & 2:
            e(f"s_and_b32 s{dst}, s2, 7"); e(f"s_xor_b32 s{dst}, s{dst}, 4"); e(f"s_mul_i32 s{dst}, s{dst}, 14"); e("s_sub_u32 s6, s2, 128"); e("s_lshr_b32 s6, s6, 3"); e(f"s_add_u32 s{dst}, s{dst}, s6")
        else:
            e("s_and_b32 s6, s2, 7"); e("s_lshl_b32 s6, s6, 2"); e(f"s_lshr_b32 s{dst}, {JTAB:#x}, s6"); e(f"s_and_b32 s{dst}, s{dst}, 3")
            e(f"s_mul_i32 s{dst}, s{dst}, 14"); e("s_sub_u32 s7, s2, 128"); e("s_lshr_b32 s7, s7, 3"); e(f"s_add_u32 s{dst}, s{dst}, s7")
            e(f"s_lshl_b32 s{dst}, s{dst}, 1"); e("s_bfe_u32 s6, s2, 0x10002"); e(f"s_add_u32 s{dst}, s{dst}, s6")
    def mapC(dst):
        e(f"s_and_b32 s{dst}, s2, 7"); e(f"s_xor_b32 s{dst}, s{dst}, 4"); e(f"s_lshl_b32 s{dst}, s{dst}, 1"); e("s_bfe_u32 s6, s2, 0x10003"); e(f"s_add_u32 s{dst}, s{dst}, s6")
    def ws_srd():
        e("s_mov_b32 s36, s38"); e("s_mov_b32 s37, s39"); e(f"s_mov_b32 s38, {wssize:#x}"); e("s_mov_b32 s39, 0x20000")
    def epoch():
        e(f"buffer_load_dword v124, off, {WS}, 0 offset:{WS_E} sc1")
    def oo_addr(dst, isA):
        e("v_and_b32 v9, 3, v0")
        if isA:
            e("v_lshlrev_b32 v9, 3, v9"); e("v_and_b32 v10, 48, v0"); e("v_lshl_add_u32 v9, v10, 2, v9")
            e(f"s_and_b32 s6, s{S_WAVE}, 1"); e("s_lshl_b32 s6, s6, 5"); e(f"s_and_b32 s7, s{S_WAVE}, 2"); e("s_lshl_b32 s7, s7, 1"); e("s_add_u32 s6, s6, s7")
        else:
            e("v_lshlrev_b32 v9, 2, v9"); e("v_and_b32 v10, 16, v0"); e("v_lshl_add_u32 v9, v10, 3, v9"); e("v_and_b32 v10, 32, v0"); e("v_lshl_add_u32 v9, v10, 1, v9")
            e(f"s_lshl_b32 s6, s{S_WAVE}, 4")
        e(f"v_add_u32 v{dst}, s6, v9")

    if diag: e("s_memrealtime s[98:99]")
    e("s_cmp_ge_u32 s2, 256"); e("s_cbranch_scc1 L_end")
    e("s_load_dwordx16 s[16:31], s[0:1], 0"); e("s_load_dwordx8 s[32:39], s[0:1], 64")
    e("v_lshrrev_b32 v1, 6, v0"); e("v_and_b32 v0, 63, v0")
    e(f"v_readfirstlane_b32 s{S_WAVE}, v1")
    e("s_mov_b32 s43, 0x20000")
    e("v_lshrrev_b32 v2, 4, v0"); e("v_and_b32 v3, 15, v0")
    e("s_cmp_ge_u32 s2, 240"); e("s_cbranch_scc1 L_C")
    e(f"s_cmp_lt_u32 s{S_WAVE}, 4"); e("s_cbranch_scc1 L_X")

    e("s_setprio 3")
    e("v_lshlrev_b32 v1, 5, v0")
    e(f"s_lshl_b32 s9, s{S_WAVE}, 9"); e("s_sub_u32 s9, s9, 2048"); e("v_lshlrev_b32 v9, 3, v0")
    e("s_mov_b32 s42, 2048")
    e("s_waitcnt lgkmcnt(0)")
    e("s_mov_b32 s40, s16"); e("s_mov_b32 s41, s17")
    e("buffer_load_dwordx4 v[112:115], v1, s[40:43], 0 offen")
    e("buffer_load_dwordx4 v[116:119], v1, s[40:43], 0 offen offset:16")
    e("buffer_load_dwordx2 v[110:111], v9, s[40:43], s9 offen")
    ws_srd(); epoch()
    e("s_branch L_Y")

    g.label("L_X")
    e("s_cmp_ge_u32 s2, 128"); e("s_cbranch_scc1 L_BX")
    mapA(5); mapAq(59, 5)
    e("v_lshlrev_b32 v1, 17, v2"); e("v_lshl_add_u32 v1, v3, 4, v1")
    e("s_and_b32 s6, s59, 7"); e("s_lshl_b32 s6, s6, 1"); e(f"s_lshr_b32 s7, s{S_WAVE}, 1"); e("s_add_u32 s6, s6, s7")
    e("s_lshr_b32 s57, s59, 3"); e("s_lshl_b32 s57, s57, 1"); e(f"s_and_b32 s7, s{S_WAVE}, 1"); e("s_add_u32 s57, s57, s7")
    e("s_lshl_b32 s8, s6, 19"); e("s_lshl_b32 s7, s57, 8"); e("s_add_u32 s8, s8, s7")
    e("s_lshl_b32 s9, s6, 8")
    e("s_mov_b32 s42, 0x800000")
    e("s_waitcnt lgkmcnt(0)")
    e("s_mov_b32 s40, s22"); e("s_mov_b32 s41, s23")
    def issue_A(k):
        if k < 16:
            e(f"buffer_load_dwordx4 v[{V_W+4*k}:{V_W+4*k+3}], v1, s[40:43], s8 offen{NT}")
            if k < 15: e(f"s_add_u32 s8, s8, {8*8192}" if k % 2 == 0 else f"s_sub_u32 s8, s8, {7*8192}")
        else:
            isK = k < 24
            e(f"s_add_u32 m0, s50, s{58 if isK else 51}")
            e("s_add_u32 s49, s50, s56")
            e(f"buffer_load_dwordx4 v{121 if isK else 122}, {'s[44:47]' if isK else 's[60:63]'}, s49 offen{NT} lds")
            if k < 31: e("s_add_u32 s50, s50, 4096"); e("s_and_b32 s50, s50, 0x7000")
    for k in range(WA): issue_A(k)
    g.label("L_AX2")
    ws_srd(); epoch()
    e("s_setprio 3")
    g.note(0, 98)
    e("v_lshrrev_b32 v9, 3, v0"); e("v_lshl_add_u32 v120, v9, 5, s9")
    masks(g); consts(g)
    g.srd(44, 18, 67108864); g.srd(60, 20, 67108864)
    e("s_lshr_b32 s56, s5, 5"); e(f"s_mul_i32 s50, s56, {rotg*4096}"); e("s_and_b32 s50, s50, 0x7000")
    e("s_lshl_b32 s56, s56, 24"); e("s_and_b32 s7, s5, 31"); e("s_lshl_b32 s7, s7, 15"); e("s_add_u32 s56, s56, s7")
    e(f"s_lshl_b32 s7, s{S_WAVE}, 10"); e("s_add_u32 s56, s56, s7"); e(f"s_add_u32 s56, s56, {61440*256}")
    e(f"s_add_u32 s58, s7, {L_K}"); e(f"s_add_u32 s51, s7, {L_V}")
    e(f"s_lshl_b32 s7, s{S_WAVE}, 2"); e("v_add_u32 v9, s7, v2")
    e("v_xor_b32 v10, v9, v3"); e("v_lshlrev_b32 v10, 4, v10"); e("v_lshl_add_u32 v121, v2, 8, v10")
    e("v_and_b32 v9, 7, v9"); e("v_lshlrev_b32 v10, 1, v9"); e("v_xor_b32 v10, v10, v3"); e("v_lshlrev_b32 v10, 4, v10")
    e("v_lshl_add_u32 v122, v2, 8, v10")
    e("s_lshr_b32 s6, s57, 3"); e("s_lshl_b32 s6, s6, 15"); e("s_and_b32 s57, s57, 7"); e("s_lshl_b32 s57, s57, 9"); e("s_add_u32 s57, s57, s6")
    e("s_and_b32 s6, s59, 7"); e("s_lshl_b32 s6, s6, 12"); e("s_add_u32 s57, s57, s6"); e(f"s_add_u32 s57, s57, {WS_QP}")
    e("v_lshlrev_b32 v125, 4, v0")
    e(f"s_lshl_b32 s6, s{S_WAVE}, 9"); e("v_add_u32 v126, s6, v125"); e("v_xor_b32 v127, 0x400, v126")
    def pos(k): return k if k < WA else k + 1
    nis = WA
    PRE = min(32, WA + PREA)
    role("AX")
    while nis < PRE:
        e(f"s_waitcnt vmcnt({WA-1})"); issue_A(nis); nis += 1; tr(nis - WA)
    e("s_barrier")
    for i in range(2):
        e(f"ds_read_b128 v[{V_XX+4*i}:{V_XX+4*i+3}], v120 offset:{L_XN + 16*i}")
    e("s_waitcnt lgkmcnt(1)")
    sel_half(g, 0, 0); sel_half(g, 0, 1)
    for i in range(16):
        if i == 4: e("s_waitcnt lgkmcnt(0)")
        gemv_pre(g, i, 16)
        e(f"s_waitcnt vmcnt({pos(nis-1) - pos(i)})")
        if nis < i + 1 + WA and nis < 32:
            issue_A(nis); nis += 1
        gemv_mfma(g, i, V_W + 4 * i)
        if i + 1 > PRE - WA: tr(i + 1)
        if i == 14: make_tag(g)
    g.stamp(3)
    e(f"s_and_b32 s6, s{S_WAVE}, 1"); e("s_lshl_b32 s6, s6, 2"); e("v_mov_b32 v9, s6"); e("v_mov_b32 v10, 1")
    gemv_fin(g, 4)
    e(f"ds_write_b128 v126, v[{V_ACC}:{V_ACC+3}] offset:{L_RED}")
    e("s_mov_b32 exec_lo, 1")
    e(f"ds_add_rtn_u32 v10, v9, v10 offset:{L_CNT}")
    e("s_mov_b32 exec_lo, -1")
    e(f"ds_read_b128 v[24:27], v127 offset:{L_RED}")
    e("s_waitcnt lgkmcnt(1)")
    e("v_readfirstlane_b32 s6, v10")
    skip = g.newlab("Lnl")
    e("s_cmp_eq_u32 s6, 0"); e(f"s_cbranch_scc1 {skip}")
    e("s_waitcnt lgkmcnt(0)")
    for r in range(0, 4, 2): e(f"v_pk_add_f32 v[{20+r}:{21+r}], v[{20+r}:{21+r}], v[{24+r}:{25+r}]")
    tagput(g, V_ACC)
    if not dbg & 16 and not nost & 1: e(f"buffer_store_dwordx4 v[{V_ACC}:{V_ACC+3}], v125, {WS}, s57 offen {ST}")
    g.label(skip)
    e("s_mov_b64 exec, -1")
    while nis < 32:
        e(f"s_waitcnt vmcnt({WA-1})"); issue_A(nis); nis += 1; tr(nis - WA)

    def att_pre():
        e("v_lshrrev_b32 v2, 4, v0"); e("v_and_b32 v3, 15, v0")
        e("v_xor_b32 v10, v2, v3"); e("v_lshlrev_b32 v10, 4, v10"); e("v_lshl_add_u32 v1, v3, 8, v10")
        e(f"s_lshl_b32 s6, s{S_WAVE}, 12")
        for s in range(4):
            e(f"v_xor_b32 v10, {64*s}, v1"); e(f"v_add_u32 v{43+4*s}, s6, v10")
        e("v_lshrrev_b32 v1, 2, v0"); e("v_and_b32 v9, 7, v1"); e(f"v_xor_b32 v9, s{S_WAVE}, v9"); e("v_lshlrev_b32 v9, 5, v9")
        e("v_and_b32 v10, 3, v0"); e("v_lshl_add_u32 v9, v10, 3, v9"); e("v_lshl_add_u32 v9, v1, 8, v9"); e(f"v_add_u32 v122, {L_V}, v9")
        e("v_and_b32 v1, 7, v0"); e("v_mul_u32_u24 v123, 272, v1"); e("v_lshl_add_u32 v123, v2, 4, v123")
        e("v_lshlrev_b32 v124, 2, v3")
        e(f"s_lshr_b32 s6, s{S_WAVE}, 1"); e("s_lshl_b32 s6, s6, 10"); e(f"s_and_b32 s7, s{S_WAVE}, 1"); e("s_lshl_b32 s7, s7, 3"); e("s_add_u32 s6, s6, s7")
        e("v_lshlrev_b32 v125, 4, v0"); e("v_add_u32 v126, s6, v125")
        e("v_lshlrev_b32 v127, 4, v3"); e("v_lshl_add_u32 v127, v2, 7, v127")
        e(f"s_mul_i32 s58, s5, {OS}"); e(f"s_lshl_b32 s7, s{S_WAVE}, 9"); e("s_add_u32 s58, s58, s7"); e(f"s_add_u32 s58, s58, {WS_OP}")
        e("v_mov_b32 v12, 0x3f803f80"); e("v_mov_b32 v13, v12"); e("v_mov_b32 v14, v12"); e("v_mov_b32 v15, v12")
        e("s_lshr_b32 s9, s5, 5"); e("s_lshl_b32 s9, s9, 15"); e("s_add_u32 s9, s9, s7"); e(f"s_add_u32 s9, s9, {WS_QP}")
        e("s_add_u32 s56, s9, 8192")
        e("v_lshrrev_b32 v9, 5, v0"); e("v_and_b32 v10, 31, v0"); e("v_lshlrev_b32 v16, 12, v9"); e("v_lshl_add_u32 v16, v10, 4, v16")
        e("v_add_u32 v17, 16384, v16")
        e(f"s_mul_i32 s6, s{S_WAVE}, 272"); e("v_lshlrev_b32 v18, 4, v3"); e("v_lshl_add_u32 v18, v9, 2, v18"); e("v_and_b32 v10, 1, v2")
        e("v_lshl_add_u32 v18, v10, 3, v18"); e("v_add_u32 v18, s6, v18")
    att_pre()
    if trace:
        for k in range(WA - 1, min(8, QW) - 1, -1): e(f"s_waitcnt vmcnt({k})"); tr(32 - k)
    e(f"s_waitcnt vmcnt({min(8, QW)}) lgkmcnt(0)")
    g.label("L_att")
    e("s_barrier")
    g.stamp(1)
    def yload(k):
        e(f"buffer_load_dwordx4 v[{V_W+4*k}:{V_W+4*k+3}], v120, s[40:43], s8 offen{NT}")
        if k < 15: e("s_add_u32 s8, s8, 8192" if k % 4 != 3 else "s_add_u32 s8, s8, s57")
    ny = [0]
    def yissue(n):
        if not n: return
        lx = g.newlab("Lxp")
        e(f"s_cmp_lt_u32 s{S_WAVE}, 4"); e(f"s_cbranch_scc1 {lx}")
        for k in range(ny[0], ny[0] + n): yload(k)
        ny[0] += n
        g.label(lx)
    nq = 0 if dbg & 1 else 4
    def q_load(i):
        if nq: e(f"buffer_load_dwordx4 v[{24+4*i}:{27+4*i}], v{16 + (i >> 1)}, {WS}, {'s56' if i & 1 else 's9'} offen {LD}")
    def q_first():
        for s in range(4): e(f"ds_read_b128 v[{40+4*s}:{43+4*s}], v{43+4*s} offset:{L_K}")
        lx = g.newlab("Lxp"); ly = g.newlab("Lxq")
        e(f"s_cmp_lt_u32 s{S_WAVE}, 4"); e(f"s_cbranch_scc1 {lx}")
        for k in range(npe): yload(k)
        ny[0] = npe
        e(f"s_branch {ly}")
        g.label(lx)
        e(f"s_waitcnt vmcnt({nq})")
        g.label(ly)
        e("s_barrier")
        for sg in range(4):
            for u in range(2):
                e(f"ds_read_b64_tr_b16 v[{104+4*sg+2*u}:{105+4*sg+2*u}], v122 offset:{8192*sg + 4096*u}")
        yissue(nv)
        lx = g.newlab("Lxr")
        e(f"s_waitcnt vmcnt({npe + nv})")
        e(f"s_cmp_ge_u32 s{S_WAVE}, 4"); e(f"s_cbranch_scc1 {lx}")
        e("s_waitcnt vmcnt(0)")
        g.label(lx)
    mpoll(g, 4, q_load, lambda i, dst: tagchk1(g, 24 + 4 * i, dst), 16, first=q_first, noretry=bool(dbg & 33))
    g.note(11, 7)
    g.stamp(2)
    for r in range(16): e(f"v_and_b32 v{24+r}, s{S_MSK}, v{24+r}")
    for st in (8, 4):
        for r in range(0, st, 2): e(f"v_pk_add_f32 v[{24+r}:{25+r}], v[{24+r}:{25+r}], v[{24+st+r}:{25+st+r}]")
    g.nop(2)
    e("v_permlane32_swap_b32 v24, v26"); e("v_permlane32_swap_b32 v25, v27"); g.nop(1)
    e("v_pk_add_f32 v[24:25], v[24:25], v[26:27]")
    e("v_cvt_pk_bf16_f32 v24, v24, v25")
    e(f"ds_write_b32 v18, v24 offset:{L_Q}")
    yissue(NQ)
    e("s_waitcnt lgkmcnt(0)")
    e("s_barrier")
    g.stamp(5)
    for s in range(4):
        e(f"ds_read_b128 v[{24+4*s}:{27+4*s}], v123 offset:{L_Q + 64*s}")
    e("s_mov_b32 s6, 0x3db504f3")
    e("s_mov_b32 s7, 0x3fb8aa3b")
    for s in range(4):
        e(f"s_waitcnt lgkmcnt({3 - s})")
        c = "0" if s == 0 else "v[20:23]"
        e(f"v_mfma_f32_16x16x32_bf16 v[20:23], v[{40+4*s}:{43+4*s}], v[{24+4*s}:{27+4*s}], {c}")
    g.nop(8)
    e("v_max3_f32 v11, v20, v21, v22"); e("v_cvt_pk_bf16_f32 v9, v20, v21"); e("v_max_f32 v11, v11, v23")
    e(f"ds_max_f32 v124, v11 offset:{L_M}")
    e("v_cvt_pk_bf16_f32 v10, v22, v23")
    e("v_lshlrev_b32 v20, 16, v9"); e("v_and_b32 v21, 0xffff0000, v9"); e("v_lshlrev_b32 v22, 16, v10"); e("v_and_b32 v23, 0xffff0000, v10")
    for i in range(4): e(f"v_mul_f32 v{20+i}, s6, v{20+i}")
    yissue(nm)
    e("s_waitcnt lgkmcnt(0)")
    e("s_barrier")
    e(f"ds_read_b32 v11, v124 offset:{L_M}")
    e("v_cvt_pk_bf16_f32 v9, v20, v21"); e("v_cvt_pk_bf16_f32 v10, v22, v23")
    e("v_lshlrev_b32 v20, 16, v9"); e("v_and_b32 v21, 0xffff0000, v9"); e("v_lshlrev_b32 v22, 16, v10"); e("v_and_b32 v23, 0xffff0000, v10")
    e("s_waitcnt lgkmcnt(0)")
    e("v_cvt_pk_bf16_f32 v11, v11, v11"); e("v_lshlrev_b32 v11, 16, v11"); e("v_mul_f32 v11, s6, v11")
    e("v_cvt_pk_bf16_f32 v11, v11, v11"); e("v_lshlrev_b32 v11, 16, v11")
    e("v_mul_f32 v11, s7, v11")
    for i in range(4): e(f"v_fma_f32 v{20+i}, v{20+i}, s7, -v11")
    for i in range(4): e(f"v_exp_f32 v{20+i}, v{20+i}")
    e("v_cvt_pk_bf16_f32 v20, v20, v21"); e("v_cvt_pk_bf16_f32 v21, v22, v23")
    e(f"ds_write_b64 v126, v[20:21] offset:{L_P}")
    yissue(np_)
    e("s_waitcnt lgkmcnt(0)")
    e("s_barrier")
    for sg in range(4):
        e(f"ds_read_b128 v[{40+4*sg}:{43+4*sg}], v125 offset:{L_P + 1024*sg}")
    e(f"v_mov_b32 v23, s{S_T[0]}")
    for sg in range(4):
        e(f"s_waitcnt lgkmcnt({3 - sg})")
        e(f"v_mfma_f32_16x16x32_bf16 v[24:27], v[12:15], v[{40+4*sg}:{43+4*sg}], " + ("0" if sg == 0 else "v[24:27]"))
        e(f"v_mfma_f32_16x16x32_bf16 v[16:19], v[{104+4*sg}:{107+4*sg}], v[{40+4*sg}:{43+4*sg}], " + ("0" if sg == 0 else "v[16:19]"))
    e("s_mov_b32 exec_lo, 0x00ff00ff"); e("s_mov_b32 exec_hi, 0x00ff00ff")
    g.nop(5)
    e("v_rcp_f32 v9, v24"); e("v_log_f32 v10, v24")
    for r in range(4): e(f"v_mul_f32 v{16+r}, v9, v{16+r}")
    e("v_add_f32 v22, v11, v10")
    e("v_cvt_pk_bf16_f32 v20, v16, v17"); e("v_cvt_pk_bf16_f32 v21, v18, v19")
    if not dbg & 16 and not nost & 2: e(f"buffer_store_dwordx4 v[20:23], v127, {WS}, s58 offen {ST}")
    e("s_mov_b64 exec, -1")
    g.stamp(7)
    e(f"s_cmp_ge_u32 s{S_WAVE}, 4"); e("s_cbranch_scc1 L_YA2")
    mapAo(5)
    e("s_lshr_b32 s8, s5, 5"); e(f"s_mul_i32 s8, s8, {32*OS}"); e("s_bfe_u32 s6, s5, 0x30002"); e("s_lshl_b32 s6, s6, 9"); e("s_add_u32 s8, s8, s6")
    e("s_bfe_u32 s6, s5, 0x10001"); e("s_lshl_b32 s6, s6, 6"); e("s_add_u32 s8, s8, s6"); e(f"s_lshl_b32 s6, s{S_WAVE}, 7"); e("s_add_u32 s8, s8, s6")
    e(f"s_add_u32 s8, s8, {WS_OP}"); e(f"s_add_u32 s9, s8, {16*OS}")
    e("v_lshrrev_b32 v125, 2, v0"); e(f"v_mul_u32_u24 v125, {OS}, v125"); e("v_and_b32 v9, 3, v0"); e("v_lshl_add_u32 v125, v9, 4, v125")
    oo_addr(2, True)
    if ackw & 1: e("s_waitcnt vmcnt(0)")
    if oslp: e(f"s_sleep {oslp}")
    g.stamp(6)
    def o_load(i):
        if not dbg & 2: e(f"buffer_load_dwordx4 v[{24+4*i}:{27+4*i}], v125, {WS}, s{8+i} offen {LD}")
    def o_check(i, dst): e(f"v_cmp_ne_u32 {dst}, s{S_T[0]}, v{27+4*i}")
    def gate_first(): e("s_barrier"); e("s_waitcnt vmcnt(0)")
    mpoll(g, 2, o_load, o_check, 44, first=gate_first if GA == 1 else None, noretry=bool(dbg & 34), backoff=obo,
          sfix=(2, [24, 28], [8, 9], OS, lambda R: e(f"s_cmp_lg_u32 s{R+15}, s{S_T[0]}"), limo) if sfo else None)
    if GA == 2: e("s_barrier")
    g.note(12, 7)
    g.stamp(8)
    e("v_max_f32 v16, v26, v30")
    e("v_lshlrev_b32 v32, 16, v24"); e("v_and_b32 v33, 0xffff0000, v24")
    e("v_max_f32_dpp v16, v16, v16 row_ror:4 row_mask:0xf bank_mask:0xf")
    e("v_lshlrev_b32 v34, 16, v25"); e("v_and_b32 v35, 0xffff0000, v25")
    e("v_max_f32_dpp v16, v16, v16 row_ror:8 row_mask:0xf bank_mask:0xf")
    e("v_mov_b32 v9, v16")
    e("v_lshlrev_b32 v40, 16, v28"); e("v_and_b32 v41, 0xffff0000, v28")
    e("v_permlane16_swap_b32 v9, v16")
    g.nop(1)
    e("v_max_f32 v16, v9, v16")
    e("v_mov_b32 v9, v16")
    e("v_lshlrev_b32 v42, 16, v29"); e("v_and_b32 v43, 0xffff0000, v29")
    e("v_permlane32_swap_b32 v9, v16"); g.nop(1); e("v_max_f32 v16, v9, v16")
    e("v_sub_f32 v26, v26, v16"); e("v_sub_f32 v30, v30, v16")
    e("v_exp_f32 v26, v26"); e("v_exp_f32 v30, v30"); g.nop(1)
    e("v_add_f32 v36, v26, v30")
    for r in range(4): e(f"v_mul_f32 v{32+r}, v26, v{32+r}")
    for r in range(4): e(f"v_fmac_f32 v{32+r}, v30, v{40+r}")
    e("v_mov_b32 v37, v36"); g.nop(1)
    e("v_permlane32_swap_b32 v32, v34"); e("v_permlane32_swap_b32 v33, v35"); e("v_permlane32_swap_b32 v37, v36")
    e("v_add_f32 v32, v32, v34"); e("v_add_f32 v33, v33, v35"); e("v_add_f32 v36, v36, v37")
    e("v_mov_b32 v37, v36"); g.nop(1)
    e("v_permlane16_swap_b32 v32, v33"); e("v_permlane16_swap_b32 v37, v36"); g.nop(1)
    e("v_add_f32 v32, v32, v33"); e("v_add_f32 v36, v36, v37")
    for ror in (4, 8):
        g.nop(1)
        for r in (32, 36): e(f"v_add_f32_dpp v{r}, v{r}, v{r} row_ror:{ror} row_mask:0xf bank_mask:0xf")
    e("v_rcp_f32 v36, v36"); g.nop(1)
    e("v_mul_f32 v32, v36, v32")
    g.label("L_oo")
    e("v_cvt_pk_bf16_f32 v32, v32, v32")
    e(f"ds_write_b32 v2, v32 offset:{L_OO}")
    e("s_waitcnt lgkmcnt(0)")
    e("s_barrier")
    g.stamp(9)
    e("s_branch L_fin")

    g.label("L_BX")
    mapB(5)
    e(f"s_mov_b32 s6, {32*7168}"); e("v_mul_lo_u32 v1, v2, s6"); e("v_lshl_add_u32 v1, v3, 4, v1")
    e("s_bfe_u32 s9, s5, 0x30001")
    e(f"s_mul_i32 s8, s9, {128*7168}"); e("s_lshr_b32 s7, s5, 4"); e("s_lshl_b32 s7, s7, 2"); e(f"s_add_u32 s7, s7, s{S_WAVE}")
    e("s_lshl_b32 s56, s7, 9")
    e("s_lshl_b32 s7, s7, 8"); e("s_add_u32 s8, s8, s7")
    e("s_mov_b32 s42, 7340032")
    e("s_and_b32 s6, s5, 1"); e("s_cmp_eq_u32 s6, 0")
    e("s_waitcnt lgkmcnt(0)")
    e("s_cselect_b32 s40, s28, s30"); e("s_cselect_b32 s41, s29, s31")
    def issue_B(k):
        r = V_W + 4 * (k & 15)
        e(f"buffer_load_dwordx4 v[{r}:{r+3}], v1, s[40:43], s8 offen{NT}")
        if k < 31: e(f"s_add_u32 s8, s8, {16*7168}" if k % 2 == 0 else f"s_sub_u32 s8, s8, {15*7168}")
    for k in range(WB1): issue_B(k)
    g.label("L_BX2")
    ws_srd(); epoch()
    e("s_setprio 3")
    g.note(0, 98)
    e("s_lshl_b32 s7, s9, 9"); e("v_lshrrev_b32 v9, 3, v0"); e("v_lshl_add_u32 v120, v9, 6, s7")
    masks(g); consts(g)
    e("s_lshl_b32 s6, s6, 3"); e("s_add_u32 s6, s6, s9"); e(f"s_mul_i32 s6, s6, {GS}"); e("s_add_u32 s56, s56, s6"); e(f"s_add_u32 s56, s56, {WS_GP}")
    e("v_lshlrev_b32 v121, 4, v0")
    e("v_lshrrev_b32 v122, 2, v0"); e(f"v_mul_u32_u24 v122, {GS}, v122"); e("v_and_b32 v9, 3, v0"); e("v_lshl_add_u32 v122, v9, 4, v122")
    mapBd(9)
    e("s_bfe_u32 s6, s9, 0x10001"); e("s_lshl_b32 s6, s6, 7"); e("s_lshr_b32 s9, s9, 2"); e("s_lshl_b32 s9, s9, 9"); e("s_add_u32 s9, s9, s6")
    e(f"s_and_b32 s6, s{S_WAVE}, 2"); e("s_lshl_b32 s6, s6, 7"); e("s_add_u32 s9, s9, s6"); e(f"s_and_b32 s6, s{S_WAVE}, 1"); e("s_lshl_b32 s6, s6, 6"); e("s_add_u32 s9, s9, s6")
    e(f"s_add_u32 s9, s9, {WS_GP}")
    oo_addr(2, False)
    def posb(k): return k if k < WB1 else k + 1
    nis = WB1
    PRE = min(15, WB1 + PREB)
    role("BX")
    while nis < PRE:
        e(f"s_waitcnt vmcnt({WB1-1})"); issue_B(nis); nis += 1; tr(nis - WB1)
    e("s_barrier")
    for i in range(4):
        e(f"ds_read_b128 v[{V_XX+4*i}:{V_XX+4*i+3}], v120 offset:{L_XN + 16*i}")
    e("s_waitcnt lgkmcnt(3)")
    sel_half(g, 0, 0); sel_half(g, 0, 1)
    b2done = False
    for i in range(32):
        if i == 4: e("s_waitcnt lgkmcnt(0)")
        gemv_pre(g, i, 32)
        e(f"s_waitcnt vmcnt({posb(nis-1) - posb(i)})")
        W = WB1 if i < WBsw else WB2
        while nis < 32 and nis < i + 1 + W:
            issue_B(nis); nis += 1
        if nis == 32 and not b2done and 31 - i <= HB:
            e("s_barrier"); b2done = True
        gemv_mfma(g, i, V_W + 4 * (i & 15))
        if i + 1 > PRE - WB1: tr(i + 1)
        if i == 20: make_tag(g)
    g.stamp(3)
    gemv_fin(g)
    tagput(g, V_ACC)
    if not dbg & 16 and not nost & 4: e(f"buffer_store_dwordx4 v[20:23], v121, {WS}, s56 offen {ST}")
    e("s_mov_b64 exec, -1")
    if not b2done: e("s_barrier")
    if ackw & 2: e("s_waitcnt vmcnt(0)")
    if hslp: e(f"s_sleep {hslp}")
    g.stamp(6)
    def h_load(i):
        if not dbg & 4: e(f"buffer_load_dwordx4 v[28:31], v122, {WS}, s9 offen {LD}")
    def bytepre(R):
        e(f"s_xor_b32 s6, s{R+12}, s{S_T[0]}"); e("s_and_b32 s6, s6, 0xff")
    mpoll(g, 1, h_load, lambda i, dst: tagchk1(g, 28, dst), 44, first=gate_first if GB == 1 else None, noretry=bool(dbg & 36), backoff=hbo,
          sfix=(4, [28], [9], GS, bytepre, limh) if sfh else None)
    if GB == 2: e("s_barrier")
    g.note(11, 7)
    g.stamp(5)
    for r in range(4): e(f"v_and_b32 v{28+r}, s{S_MSK}, v{28+r}")
    g.nop(1)
    e("v_permlane16_swap_b32 v28, v30"); e("v_permlane16_swap_b32 v29, v31"); g.nop(1)
    e("v_add_f32 v28, v28, v30"); e("v_add_f32 v29, v29, v31")
    for ror in (4, 8):
        g.nop(1)
        for r in (28, 29): e(f"v_add_f32_dpp v{r}, v{r}, v{r} row_ror:{ror} row_mask:0xf bank_mask:0xf")
    g.nop(2)
    e("v_permlane32_swap_b32 v28, v29")
    g.nop(1)
    e("v_cvt_pk_bf16_f32 v28, v28, v29")
    e("v_lshlrev_b32 v32, 16, v28"); e("v_mul_f32 v32, 0xbfb8aa3b, v32"); e("v_exp_f32 v32, v32")
    e("v_and_b32 v29, 0xffff0000, v28")
    e("v_add_f32 v32, 1.0, v32"); e("v_rcp_f32 v32, v32"); g.nop(1)
    e("v_cvt_pk_bf16_f32 v32, v32, v32"); e("v_lshlrev_b32 v32, 16, v32")
    e("v_mul_f32 v32, v32, v29")
    e("s_branch L_oo")

    g.label("L_Y")
    g.note(0, 98)
    e("s_lshl_b32 s9, s9, 1"); e("v_lshl_add_u32 v122, v0, 4, s9")
    e("v_mov_b32 v9, 0"); e("v_mov_b32 v44, 0"); e("v_mov_b32 v45, 0"); e("v_mov_b32 v46, 0"); e("v_mov_b32 v47, 0")
    e(f"ds_write_b128 v9, v[44:47] offset:{L_CNT}")
    e("v_lshlrev_b32 v10, 2, v3"); e("v_mov_b32 v11, 0xff800000"); e(f"ds_write_b32 v10, v11 offset:{L_M}")
    e("v_lshlrev_b32 v120, 11, v2"); e("v_lshl_add_u32 v120, v3, 4, v120")
    e("v_bfe_u32 v121, v0, 3, 1"); e(f"v_mul_u32_u24 v121, {120*256}, v121"); e("v_and_b32 v10, 7, v0"); e("v_lshl_add_u32 v121, v10, 4, v121")
    e("v_lshl_add_u32 v121, v2, 7, v121")
    e("v_mov_b32 v12, 0x3f803f80"); e("v_mov_b32 v10, 0"); e("v_mov_b32 v11, 0x3a800000")
    e("s_waitcnt vmcnt(1)")
    layernorm(g, 112, 110)
    e(f"ds_write_b128 v122, v[24:27] offset:{L_XN}")
    e("s_waitcnt lgkmcnt(0) vmcnt(0)")
    g.stamp(6)
    e("s_barrier")
    make_tag(g)
    masks(g); consts(g)
    def ysetup(pbase):
        e("s_lshr_b32 s9, s5, 1")
        if pbase == 0:
            e("s_lshr_b32 s8, s5, 5"); e("s_lshl_b32 s8, s8, 21"); e("s_bfe_u32 s6, s5, 0x10001"); e("s_lshl_b32 s6, s6, 20"); e("s_add_u32 s8, s8, s6")
            e("s_bfe_u32 s6, s5, 0x30002"); e("s_lshl_b32 s6, s6, 15"); e("s_add_u32 s8, s8, s6"); e(f"s_mov_b32 s57, {116*2048}")
        else:
            e("s_lshl_b32 s8, s9, 17"); e("s_movk_i32 s57, 8192")
        e("s_and_b32 s6, s5, 1"); e("s_lshl_b32 s6, s6, 2")
        e(f"s_add_u32 s6, s6, s{S_WAVE}"); e("s_sub_u32 s6, s6, 4")
        e("s_lshl_b32 s7, s6, 8"); e("s_add_u32 s8, s8, s7")
        e(f"s_mul_i32 s59, s6, {2*120*256}"); e("s_lshl_b32 s9, s9, 8"); e("s_add_u32 s59, s59, s9"); e(f"s_add_u32 s59, s59, {WS_SP + pbase*256}")
    e("s_cmp_ge_u32 s2, 128"); e("s_cbranch_scc1 L_YB2")
    mapAo(5); ysetup(0)
    e("s_mov_b32 s40, s24"); e("s_mov_b32 s41, s25"); e("s_mov_b32 s42, 0x800000")
    mapA(5)
    att_pre()
    e("s_branch L_att")
    def ystream(k0, W1, N1, W2, gate):
        for k in range(k0, 16):
            if gate and k == max(N1, k0): e("s_barrier")
            W = W1 if k < N1 else W2
            if k >= W: e(f"s_waitcnt vmcnt({W-1})")
            yload(k)
            if k >= W: tr(k + 1 - W)
        if gate and max(N1, k0) >= 16: e("s_barrier")
        if trace:
            for k in range(min(W, 16) - 1, -1, -1): e(f"s_waitcnt vmcnt({k})"); tr(16 - k)
    g.label("L_YB2")
    mapBd(5); ysetup(64)
    e("s_mov_b32 s40, s32"); e("s_mov_b32 s41, s33"); e("s_mov_b32 s42, 7340032")
    e("s_setprio 0")
    e("s_barrier")
    g.stamp(2)
    role("BY"); ystream(0, WYB, N1B, W2B, GB)
    e("s_branch L_YL3")
    g.label("L_YA2")
    e("s_setprio 0")
    role("AY"); ystream(NPRE, WYA, N1A, W2A, GA)
    g.label("L_YL3")
    g.stamp(3)
    e("v_and_b32 v9, 56, v0"); e("v_lshlrev_b32 v9, 2, v9")
    e("s_barrier")
    g.stamp(4)
    for i in range(2):
        e(f"ds_read_b128 v[{V_XX+4*i}:{V_XX+4*i+3}], v9 offset:{L_OO + 16*i}")
    e("s_waitcnt lgkmcnt(1)")
    sel_half(g, 0, 0); sel_half(g, 0, 1)
    for i in range(16):
        gemv_pre(g, i, 16)
        e(f"s_waitcnt vmcnt({15-i})" + (" lgkmcnt(0)" if i == 4 else ""))
        gemv_mfma(g, i, V_W + 4 * i)
    gemv_fin(g)
    tagput(g, V_ACC)
    if not dbg & 16 and not nost & 8: e(f"buffer_store_dwordx4 v[{V_ACC}:{V_ACC+3}], v121, {WS}, s59 offen {ST}")
    e("s_mov_b64 exec, -1")
    g.stamp(9)
    e("s_branch L_fin")

    g.label("L_C")
    if cpf:
        e("s_getpc_b64 s[60:61]")
        g.label("L_pc")
        e(f"s_sub_u32 s60, s60, L_pc-{NAME}_kernel"); e("s_subb_u32 s61, s61, 0")
        e(f"s_lshl_b32 s6, s{S_WAVE}, 11"); e("v_lshl_add_u32 v9, v0, 5, s6")
        e(f"v_min_u32 v9, L_fail-{NAME}_kernel, v9")
        e("global_load_dword v10, v9, s[60:61]")
    g.label("L_C0")
    e("s_waitcnt lgkmcnt(0)")
    e("s_mov_b32 s62, s36"); e("s_mov_b32 s63, s37")
    ws_srd(); epoch()
    g.note(0, 98)
    if dbg & 256: e("s_branch L_fin")
    consts(g)
    mapC(5)
    e(f"s_lshl_b32 s6, s{S_WAVE}, 4"); e(f"s_mul_i32 s7, s{S_WAVE}, 14"); e("s_add_u32 s7, s7, 8")
    e(f"s_cmp_lt_u32 s{S_WAVE}, 4"); e("s_cselect_b32 s6, s6, s7")
    e("s_cselect_b32 s23, -1, 0")
    e("s_lshl_b32 s6, s6, 8"); e(f"s_mul_i32 s8, s5, {120*256}"); e("s_add_u32 s8, s8, s6"); e(f"s_add_u32 s8, s8, {WS_SP}")
    e("v_lshlrev_b32 v1, 4, v0")
    g.srd(48, 16, 2048); g.srd(44, 34, 2048)
    e("v_and_b32 v9, 7, v0"); e("v_lshl_add_u32 v121, v9, 3, v2"); e("v_bfe_u32 v9, v0, 3, 1"); e("v_lshl_add_u32 v121, v9, 2, v121")
    e("s_lshl_b32 s9, s5, 7"); e("v_lshlrev_b32 v125, 1, v0")
    e("buffer_load_ushort v126, v125, s[48:51], s9 offen")
    e("s_waitcnt vmcnt(0)")
    make_tag(g)
    e("s_barrier")
    e(f"s_cmp_lg_u32 s{S_WAVE}, 1"); e("s_cbranch_scc1 L_C1")
    e("s_mov_b32 s6, 1"); e("s_atomic_add s6, s[62:63], 0")
    e("s_cmp_lg_u32 s5, 0"); e("s_cbranch_scc1 L_C1")
    lp = g.newlab("Le")
    e(f"s_mov_b32 s7, {SPIN}")
    g.label(lp)
    e("s_load_dword s6, s[62:63], 0 glc")
    e("s_sub_u32 s7, s7, 1"); e("s_cbranch_scc1 L_fail")
    e("s_waitcnt lgkmcnt(0)")
    e("s_cmp_lt_u32 s6, 16"); e(f"s_cbranch_scc1 {lp}")
    g.label("L_C1")
    e("v_mul_u32_u24 v120, 48, v121"); e(f"s_lshl_b32 s6, s{S_WAVE}, 2"); e("v_add_u32 v120, s6, v120"); e("v_mul_u32_u24 v121, 48, v0"); e("v_lshlrev_b32 v126, 16, v126")
    if cwait and not dbg & 8:
        lpw = g.newlab("Lcw")
        e(f"s_lshl_b32 s6, s5, 3"); e(f"s_add_u32 s6, s6, s{S_WAVE}"); e(f"s_mul_i32 s6, s6, {OS}"); e(f"s_add_u32 s6, s6, {WS_OP + 12}")
        e(f"s_mov_b32 s7, {SPIN}")
        g.label(lpw)
        e("s_sleep 8")
        e(f"s_load_dword s56, {WSP}, s6 glc")
        e("s_sub_u32 s7, s7, 1"); e("s_cbranch_scc1 L_fail")
        e("s_waitcnt lgkmcnt(0)")
        e(f"s_cmp_lg_u32 s56, s{S_T[0]}"); e(f"s_cbranch_scc1 {lpw}")
    for i in range(7): e(f"s_mov_b32 s{16+i}, -1")
    for r in range(4): e(f"v_mov_b32 v{36+r}, 0")
    lp = g.newlab("Lcp")
    e(f"s_mov_b32 s7, {SPIN}")
    g.label(lp)
    if cbo: e(f"s_sleep {cbo}")
    for i in range(4):
        sk = g.newlab("Lcs")
        e(f"s_mov_b64 exec, s[{16+2*i}:{17+2*i}]"); e(f"s_cbranch_execz {sk}")
        e(f"buffer_load_dwordx4 v[{40+4*i}:{43+4*i}], v1, {WS}, s8 offen offset:{1024*i} {LD}")
        g.label(sk)
    e("s_sub_u32 s7, s7, 1"); e("s_cbranch_scc1 L_fail")
    e("s_waitcnt vmcnt(0)")
    for i in range(4):
        sk = g.newlab("Lcc")
        e(f"s_mov_b64 exec, s[{16+2*i}:{17+2*i}]"); e(f"s_cbranch_execz {sk}")
        tagchk1(g, 40 + 4 * i, f"s[{16+2*i}:{17+2*i}]")
        for r in range(4): e(f"v_and_b32 v{24+4*i+r}, s{S_MSK}, v{40+4*i+r}")
        g.label(sk)
    e("s_or_b64 vcc, s[16:17], s[18:19]"); e("s_or_b64 s[24:25], s[20:21], s[22:23]"); e("s_or_b64 vcc, vcc, s[24:25]")
    if not dbg & 8: e(f"s_cbranch_scc1 {lp}")
    e("s_mov_b64 exec, -1")
    g.note(11, 7)
    g.stamp(5)
    for st in (8, 4):
        for r in range(0, st, 2): e(f"v_pk_add_f32 v[{24+r}:{25+r}], v[{24+r}:{25+r}], v[{24+st+r}:{25+st+r}]")
    g.nop(2)
    e("v_permlane32_swap_b32 v24, v26"); e("v_permlane32_swap_b32 v25, v27"); g.nop(1)
    e("v_add_f32 v24, v24, v26"); e("v_add_f32 v25, v25, v27"); g.nop(2)
    e("v_permlane16_swap_b32 v24, v25"); g.nop(1)
    e("v_add_f32 v24, v24, v25")
    e(f"ds_write_b32 v120, v24 offset:{L_XN}")
    e("s_waitcnt lgkmcnt(0)")
    e("s_barrier")
    e(f"s_cmp_lg_u32 s{S_WAVE}, 0"); e("s_cbranch_scc1 L_C3")
    e(f"ds_read_b128 v[28:31], v121 offset:{L_XN + 16}"); e(f"ds_read_b128 v[24:27], v121 offset:{L_XN}")
    e("s_waitcnt lgkmcnt(1)")
    e("v_add_f32 v28, v28, v29"); e("v_add_f32 v30, v30, v31"); e("v_add_f32 v28, v28, v30")
    e("v_cvt_pk_bf16_f32 v28, v28, v28"); e("v_lshlrev_b32 v28, 16, v28")
    e("v_mul_f32 v10, 0xbfb8aa3b, v28"); e("v_exp_f32 v10, v10")
    e("s_waitcnt lgkmcnt(0)")
    e("v_add_f32 v24, v24, v25"); e("v_add_f32 v10, 1.0, v10"); e("v_rcp_f32 v10, v10")
    e("v_add_f32 v26, v26, v27"); e("v_add_f32 v24, v24, v26")
    e("v_mul_f32 v10, v28, v10")
    e("v_cvt_pk_bf16_f32 v10, v10, v24")
    e("v_and_b32 v24, 0xffff0000, v10"); e("v_lshlrev_b32 v10, 16, v10")
    e("v_mul_f32 v10, v24, v10")
    e("v_cvt_pk_bf16_f32 v10, v10, v10"); e("v_lshlrev_b32 v10, 16, v10")
    e("v_add_f32 v10, v126, v10")
    pol = ["", " sc1", " nt", " sc0 sc1"][ost & 3]
    if ost & 4:
        g.nop(2)
        e("v_mov_b32_dpp v11, v10 quad_perm:[1,1,3,3] row_mask:0xf bank_mask:0xf")
        e("s_mov_b32 exec_lo, 0x55555555"); e("s_mov_b32 exec_hi, 0x55555555")
        e("v_cvt_pk_bf16_f32 v10, v10, v11")
        e("buffer_store_dword v10, v125, s[44:47], s9 offen" + pol)
        e("s_mov_b64 exec, -1")
    else:
        e("v_cvt_pk_bf16_f32 v10, v10, v10")
        e("buffer_store_short v10, v125, s[44:47], s9 offen" + pol)
    g.stamp(9)
    if not diag: e("s_endpgm")
    g.label("L_C3")
    e(f"s_cmp_lg_u32 s{S_WAVE}, 1"); e("s_cbranch_scc1 L_fin")
    e("s_cmp_lg_u32 s5, 0"); e("s_cbranch_scc1 L_fin")
    e("s_mov_b64 exec, 1")
    e(f"v_mov_b32 v10, s{S_T[0]}")
    e(f"buffer_store_dword v10, off, {WS}, 0 offset:{WS_E} sc1")
    e("s_mov_b64 exec, -1")
    g.label("L_fin")
    if diag:
        e("s_waitcnt vmcnt(0)")
        g.stamp(10)
        e("s_lshl_b32 s6, s2, 3"); e(f"s_add_u32 s6, s6, s{S_WAVE}"); e("s_lshl_b32 s6, s6, 8"); e(f"s_add_u32 s6, s6, {WS_DIAG}")
        e("v_lshlrev_b32 v1, 2, v0")
        e(f"buffer_store_dword v128, v1, {WS}, s6 offen")
    g.label("L_end")
    e("s_endpgm")
    g.label("L_fail")
    e("s_endpgm")
    nv = 136 if diag else 128
    g.L += ['.section .rodata,"a"', ".p2align 6", f".amdhsa_kernel {NAME}_kernel",
            f"  .amdhsa_next_free_vgpr {nv}", "  .amdhsa_next_free_sgpr 102", f"  .amdhsa_accum_offset {nv}",
            "  .amdhsa_group_segment_fixed_size 0", "  .amdhsa_kernarg_size 96", "  .amdhsa_user_sgpr_count 2",
            "  .amdhsa_user_sgpr_kernarg_segment_ptr 1", "  .amdhsa_system_sgpr_workgroup_id_x 1",
            ".end_amdhsa_kernel"]
    if heads:
        L = g.L
        def cut(a, b):
            i = L.index(a); j = L.index(b); blk = L[i:j]; del L[i:j]; return blk
        bh = cut("L_BX:", "L_BX2:") + ["  s_branch L_BX2"]
        i = L.index("L_AX2:"); L[i:i] = ["  s_branch L_AX2"] + bh
        ch = cut("L_C:", "L_C0:") + ["  s_branch L_C0"]
        i = L.index("L_X:"); L[i:i] = ch
    out = "\n".join(x for x in g.L if x is not None) + "\n"
    if not diag: out = out.replace("  s_branch L_fin\n", "  s_endpgm\n")
    return out

F = [("AX:st",0,128,0,4,0),("wq",0,128,0,4,3),("ba",0,128,0,4,1),("gotq",0,128,0,8,2),("bq",0,128,0,4,5),("pubo",0,128,0,8,7),("gath",0,128,0,4,6),("goto",0,128,0,4,8),
     ("AY:ln",0,128,4,8,6),("iss",0,128,4,8,3),("bo",0,128,4,8,4),("pub",0,128,4,8,9),("ack",0,128,4,8,10),
     ("BX:gu",128,240,0,4,3),("gath",128,240,0,4,6),("goth",128,240,0,4,5),
     ("BY:go",128,240,4,8,2),("iss",128,240,4,8,3),("bo",128,240,4,8,4),("pub",128,240,4,8,9),("ack",128,240,4,8,10),
     ("C:got",240,256,0,8,5),("out",240,256,0,1,9),("end",0,256,0,8,10)]
POLLS = [("q", 0, 128, 0, 8, 11), ("o", 0, 128, 0, 4, 12), ("h", 128, 240, 0, 4, 11), ("fin", 240, 256, 0, 8, 11)]

def valid(c):
    return c.get("npe", 4) + c.get("nv", 0) + c.get("nm", 0) + c.get("np_", 0) <= c.get("NPRE", 4) <= 12 and c.get("WA", 8) <= 14

def parse(cfg):
    kw = {}
    for t in cfg.split(","):
        if not t: continue
        k, v = t.split("=")
        kw[k] = v if k in ("NT",) else int(v)
    return kw

if __name__ == "__main__":
    open(sys.argv[1], "w").write(gen(**parse(sys.argv[2] if len(sys.argv) > 2 else "")))
```

```python
import sys
NAME = "recurrent_scan__sliding_block_cached__glu_gated_glu__decode"
HEADER = open("cdna_kernels/" + NAME + ".s.ref").read().split("; @launch")[0]
NEWDIAG = 1

WS_E  = 0x0
WS_QP = 0x1000
WS_GP = 0x21000
WS_OP = 0x60000
WS_SP = 0xE8000
WS_USED = 0x168000
WS_DIAG = 0x1000000
L_CNT = 0
L_M   = 64
L_OO  = 512
L_RED = 2048
L_Q   = 4096
L_XN  = 8192
L_P   = 8192
L_K   = 12288
L_V   = 45056
LDS_BYTES = 77824
SPIN = 200000

class G:
    def __init__(s, diag):
        s.L = []; s.diag = diag; s.lab = 0
    def e(s, t): s.L.append("  " + t)
    def label(s, n): s.L.append(n + ":")
    def newlab(s, p="L"):
        s.lab += 1; return f"{p}_{s.lab}"
    def nop(s, n):
        while n > 0:
            k = min(n, 16); s.e(f"s_nop {k-1}"); n -= k
    def stamp(s, i):
        if s.diag:
            s.e("s_memrealtime s[100:101]"); s.e("s_waitcnt lgkmcnt(0)"); s.e(f"v_writelane_b32 v128, s100, {i}")
    def note(s, i, sreg):
        if s.diag: s.e(f"v_writelane_b32 v128, s{sreg}, {i}")
    def srd(s, d, lo, size):
        s.e(f"s_mov_b32 s{d}, s{lo}"); s.e(f"s_mov_b32 s{d+1}, s{lo+1}")
        s.e(f"s_mov_b32 s{d+2}, {size:#x}"); s.e(f"s_mov_b32 s{d+3}, 0x20000")

S_WAVE = 4
S_T = [10, 11, 12, 13]
S_SELA = 14; S_SELB = 15
S_MSK = 3
WS = "s[36:39]"; WSP = "s[36:37]"
SLOTS = [16, 48, 64, 80]
V_M = 4; V_FF = 8; V_TMP = 12; V_ACC = 20; V_XX = 24; V_ACC1 = 48; V_W = 56

def tagput(g, r):
    for i in range(4): g.e(f"v_add_u32 v{r+i}, 0x80, v{r+i}")
    for i in range(4): g.e(f"v_bfi_b32 v{r+i}, v{V_FF}, s{S_T[i]}, v{r+i}")

def wave_sum(g, v, sdst, fill=()):
    fill = list(fill)
    def pad(n):
        for _ in range(n):
            if fill: g.e(fill.pop(0))
            else: g.nop(1)
    for ror in (8, 4, 2, 1):
        pad(2); g.e(f"v_add_f32_dpp v{v}, v{v}, v{v} row_ror:{ror} row_mask:0xf bank_mask:0xf")
    pad(2); g.e(f"v_add_f32_dpp v{v}, v{v}, v{v} row_bcast:15 row_mask:0xa bank_mask:0xf")
    pad(2); g.e(f"v_add_f32_dpp v{v}, v{v}, v{v} row_bcast:31 row_mask:0xc bank_mask:0xf")
    pad(1); g.e(f"v_readlane_b32 s{sdst}, v{v}, 63")
    pad(2)
    for f in fill: g.e(f)

def xreduce(g, op, regs, tmps, steps=(16, 32)):
    for st in steps:
        for r, t in zip(regs, tmps): g.e(f"v_mov_b32 v{t}, v{r}")
        if len(regs) < 3: g.nop(3 - len(regs))
        for r, t in zip(regs, tmps): g.e(f"v_permlane{st}_swap_b32 v{t}, v{r}")
        if len(regs) < 2: g.nop(1)
        for r, t in zip(regs, tmps): g.e(f"{op} v{r}, v{t}, v{r}")

def layernorm(g, xr, xm):
    U = 28
    for i in range(8): g.e(f"v_dot2c_f32_bf16 v{9 + (i & 1)}, v12, v{xr+i}")
    unp = []
    for i in range(8):
        unp += [f"v_lshlrev_b32 v{U+2*i}, 16, v{xr+i}", f"v_and_b32 v{U+2*i+1}, 0xffff0000, v{xr+i}"]
    for _ in range(3): g.e(unp.pop(0))
    g.e("v_add_f32 v9, v9, v10")
    wave_sum(g, 9, 6, unp)
    g.e("v_mul_f32 v2, s6, v11"); g.e("v_mul_f32 v3, s6, v11")
    for i in range(0, 16, 2):
        g.e(f"v_pk_add_f32 v[{U+i}:{U+i+1}], v[{U+i}:{U+i+1}], v[2:3] neg_lo:[0,1] neg_hi:[0,1]")
    for i in range(0, 16, 2):
        a = 44 + 2 * ((i >> 1) & 1)
        g.e(f"v_pk_fma_f32 v[{a}:{a+1}], v[{U+i}:{U+i+1}], v[{U+i}:{U+i+1}], v[{a}:{a+1}]")
    g.e("v_pk_add_f32 v[44:45], v[44:45], v[46:47]")
    g.e("v_add_f32 v9, v44, v45")
    fill = [f"v_lshlrev_b32 v24, 16, v{xm}", f"v_and_b32 v25, 0xffff0000, v{xm}", f"v_lshlrev_b32 v26, 16, v{xm+1}", f"v_and_b32 v27, 0xffff0000, v{xm+1}",
            "v_cvt_pk_bf16_f32 v3, v3, v3", "v_lshlrev_b32 v3, 16, v3"] + [f"v_sub_f32 v{24+i}, v{24+i}, v3" for i in range(4)] + \
           ["v_cvt_pk_bf16_f32 v10, v24, v25", "v_cvt_pk_bf16_f32 v2, v26, v27", "v_lshlrev_b32 v24, 16, v10", "v_and_b32 v25, 0xffff0000, v10", "v_lshlrev_b32 v26, 16, v2"]
    wave_sum(g, 9, 6, fill)
    g.e("v_mul_f32 v9, s6, v11")
    g.e("v_cvt_pk_bf16_f32 v9, v9, v9"); g.e("v_lshlrev_b32 v9, 16, v9")
    g.e("v_add_f32 v9, 0x3727c5ac, v9")
    g.e("v_cvt_pk_bf16_f32 v9, v9, v9"); g.e("v_lshlrev_b32 v9, 16, v9")
    g.e("v_sqrt_f32 v9, v9")
    g.e("v_and_b32 v27, 0xffff0000, v2")
    g.e("v_cvt_pk_bf16_f32 v9, v9, v9"); g.e("v_lshlrev_b32 v9, 16, v9")
    g.e("v_rcp_f32 v9, v9"); g.nop(1)
    for i in range(4): g.e(f"v_mul_f32 v{24+i}, v{24+i}, v9")
    for i in range(4): g.e(f"v_cvt_pk_bf16_f32 v{24+i}, v{24+i}, v{24+i}")

def sel_half(g, m, h):
    t = V_TMP + 4 * (m & 1)
    for r in (2 * h, 2 * h + 1): g.e(f"v_and_b32 v{t+r}, v{V_XX+m}, v{V_M+r}")
def gemv_mfma(g, i, w):
    t = V_TMP + 4 * ((i >> 1) & 1); a = V_ACC1 if i & 1 else V_ACC
    c = "0" if i < 2 else f"v[{a}:{a+3}]"
    g.e(f"v_mfma_f32_16x16x32_bf16 v[{a}:{a+3}], v[{t}:{t+3}], v[{w}:{w+3}], {c}")
def gemv_pre(g, i, n):
    m = (i >> 1) + 1
    if 2 * m < n: sel_half(g, m, i & 1)
def gemv_fin(g, pad=8):
    g.nop(pad)
    for r in range(4): g.e(f"v_permlane32_swap_b32 v{V_ACC1+r}, v{V_XX+r}")
    g.e("s_mov_b32 exec_hi, 0")
    for r in (0, 2): g.e(f"v_pk_add_f32 v[{V_ACC+r}:{V_ACC+r+1}], v[{V_ACC+r}:{V_ACC+r+1}], v[{V_XX+r}:{V_XX+r+1}]")

def mpoll(g, n, load, check, sbase, first=None, noretry=False, backoff=0, sfix=None):
    e = g.e
    lp = g.newlab("Lm"); chk = g.newlab("Lmc"); again = g.newlab("Lma")
    M = lambda i: f"s[{sbase+2*i}:{sbase+2*i+1}]"
    for i in range(n): load(i)
    if first: first()
    else: e("s_waitcnt vmcnt(0)")
    e(f"s_mov_b32 s7, {SPIN}")
    e(f"s_branch {chk}")
    g.label(again)
    e("s_sub_u32 s7, s7, 1"); e("s_cbranch_scc1 L_fail")
    if sfix:
        spl, regs, bases, stride, pre, lim = sfix
        for i in range(n):
            e(f"s_bcnt1_i32_b64 s6, {M(i)}"); e(f"s_cmp_gt_u32 s6, {4*lim}"); e(f"s_cbranch_scc1 {lp}")
        sl = 0
        for i in range(n):
            for k in range(spl):
                src = M(i) if k == 0 else "s[40:41]"
                R = SLOTS[sl]; ln = 96 + sl
                sk = g.newlab("Lss")
                e(f"s_ff1_i32_b64 s{ln}, {src}")
                e(f"s_and_b32 s{ln}, s{ln}, -4")
                if k < spl - 1:
                    e(f"s_bfm_b64 s[42:43], 4, s{ln}"); e(f"s_andn2_b64 s[40:41], {src}, s[42:43]")
                e(f"s_cmp_lt_i32 s{ln}, 0"); e(f"s_cbranch_scc1 {sk}")
                e(f"s_mul_i32 s6, s{ln}, {stride // 4}"); e(f"s_add_u32 s6, s6, s{bases[i]}")
                e(f"s_load_dwordx16 s[{R}:{R+15}], {WSP}, s6 glc")
                g.label(sk)
                sl += 1
        e("s_waitcnt lgkmcnt(0)")
        sl = 0
        for i in range(n):
            for k in range(spl):
                R = SLOTS[sl]; ln = 96 + sl
                sk = g.newlab("Lsi")
                e(f"s_cmp_lt_i32 s{ln}, 0"); e(f"s_cbranch_scc1 {sk}")
                pre(R); e(f"s_cbranch_scc1 {sk}")
                for q in range(4):
                    e(f"s_lshl_b64 exec, 1, s{ln}" if q == 0 else "s_lshl_b64 exec, exec, 1")
                    e(f"v_mov_b64 v[{regs[i]}:{regs[i]+1}], s[{R+4*q}:{R+4*q+1}]"); e(f"v_mov_b64 v[{regs[i]+2}:{regs[i]+3}], s[{R+4*q+2}:{R+4*q+3}]")
                g.label(sk)
                sl += 1
        e("s_mov_b64 exec, -1")
        if g.diag: e("s_sub_u32 s7, s7, 99")
        e(f"s_branch {chk}")
    g.label(lp)
    if backoff: e(f"s_sleep {backoff}")
    for i in range(n):
        e(f"s_mov_b64 exec, {M(i)}")
        if n > 1:
            sk = g.newlab("Lms"); e(f"s_cbranch_execz {sk}"); load(i); g.label(sk)
        else: load(i)
    e("s_mov_b64 exec, -1")
    e("s_waitcnt vmcnt(0)")
    g.label(chk)
    for i in range(n): check(i, M(i))
    if n == 1:
        e(f"s_cmp_lg_u64 {M(0)}, 0")
    else:
        e(f"s_or_b64 vcc, {M(0)}, {M(1)}")
        for i in range(2, n): e(f"s_or_b64 vcc, vcc, {M(i)}")
    if not noretry: e(f"s_cbranch_scc1 {again}")

def tagchk1(g, r, dst):
    g.e(f"v_perm_b32 v9, v{r+1}, v{r}, s{S_SELA}")
    g.e(f"v_perm_b32 v10, v{r+3}, v{r+2}, s{S_SELB}")
    g.e(f"v_or_b32 v9, v9, v10")
    g.e(f"v_cmp_ne_u32 {dst}, s{S_T[0]}, v9")

def make_tag(g):
    g.e(f"v_readfirstlane_b32 s{S_T[0]}, v124")
    g.nop(1)
    g.e(f"s_add_u32 s{S_T[0]}, s{S_T[0]}, 0x9e3779b9")
    for i in range(1, 4): g.e(f"s_lshr_b32 s{S_T[i]}, s{S_T[0]}, {8*i}")

def masks(g):
    e = g.e
    e("v_and_b32 v9, 1, v0"); e("v_lshlrev_b32 v9, 4, v9"); e("v_mov_b32 v10, 0xffff"); e("v_lshlrev_b32 v10, v9, v10")
    e("v_bfe_u32 v9, v0, 1, 2")
    for r in range(4):
        e(f"v_cmp_eq_u32 vcc, {r}, v9"); g.nop(2); e(f"v_cndmask_b32 v{V_M+r}, 0, v10, vcc")
def consts(g):
    e = g.e
    e(f"v_mov_b32 v{V_FF}, 0xff")
    e(f"s_mov_b32 s{S_SELA}, 0x0c0c0400"); e(f"s_mov_b32 s{S_SELB}, 0x04000c0c"); e(f"s_mov_b32 s{S_MSK}, 0xffffff00")

def gen(diag=False, WA=8, WB1=5, WB2=8, WBsw=14, WYA=6, WYB=6, HB=3, NT=" nt", dbg=0, ackw=0,
        PREA=6, PREB=4, QW=4, NPRE=4, npe=4, cpf=1, cbo=0, obo=0, hbo=0,
        N1A=16, W2A=8, GA=0, N1B=16, W2B=8, GB=0, oslp=20, hslp=24, cwait=1, trace=0, pair=0, rotg=2,
        sfo=1, sfh=1, limo=2, limh=4, sfc=0, limc=1, nost=0, OS=4224, GS=14464, nv=0, nm=0, np_=0, heads=1, ost=3, slay=0, rrole=0, sfr=0, limr=4, rbo=0, rslp=0, pw=0, pwd=0, WB3=0, WBsw3=99, WA2=0, JV=4, vb=2, rack=0, probe=0, grid=256):
    KE = QW <= JV
    WA2 = WA2 or WA
    RS = 7680 if slay == 0 else 64; PS = 64 if slay == 0 else 4224
    NQ = NPRE - npe - nv - nm - np_; assert NQ >= 0 and NPRE <= 12
    global TR
    TR = {}; cur = [None]
    g = G(diag); e = g.e
    def role(n): cur[0] = n; TR.setdefault(n, [])
    def tr(landed):
        if not trace: return
        i = len(TR[cur[0]]); TR[cur[0]].append(landed); g.stamp(16 + i)
    ST = "sc1"; LD = "sc1"
    wssize = WS_DIAG + 0x100000 if diag else WS_USED
    g.L.append(HEADER.rstrip("\n"))
    g.L.append(f"; @launch grid=({grid},1,1) block=(512,1,1) lds={LDS_BYTES}")
    g.L.append('.amdgcn_target "amdgcn-amd-amdhsa--gfx950"')
    g.L += [".text", f".globl {NAME}_kernel", ".p2align 8", f".type {NAME}_kernel,@function", f"{NAME}_kernel:"]
    def mapA(dst):
        e(f"s_and_b32 s{dst}, s2, 7"); e(f"s_lshl_b32 s{dst}, s{dst}, 4"); e("s_lshr_b32 s6, s2, 3"); e(f"s_add_u32 s{dst}, s{dst}, s6")
    def mapAq(dst, a):
        e(f"s_add_u32 s{dst}, s{a}, 32"); e(f"s_and_b32 s{dst}, s{dst}, 127")
    def mapAo(dst):
        if pair & 1:
            e(f"s_and_b32 s{dst}, s2, 7"); e(f"s_xor_b32 s{dst}, s{dst}, 4"); e(f"s_lshl_b32 s{dst}, s{dst}, 4"); e("s_lshr_b32 s6, s2, 3"); e(f"s_add_u32 s{dst}, s{dst}, s6")
        else:
            e("s_bfe_u32 s6, s2, 0x10002"); e(f"s_lshl_b32 s{dst}, s6, 1"); e(f"s_add_u32 s{dst}, s{dst}, s2"); e(f"s_add_u32 s{dst}, s{dst}, 1")
            e(f"s_and_b32 s{dst}, s{dst}, 3"); e(f"s_lshl_b32 s{dst}, s{dst}, 4"); e("s_lshr_b32 s7, s2, 3"); e(f"s_add_u32 s{dst}, s{dst}, s7")
            e(f"s_lshl_b32 s{dst}, s{dst}, 1"); e(f"s_add_u32 s{dst}, s{dst}, s6")
    def mapB(dst):
        e("s_sub_u32 s6, s2, 128"); e(f"s_and_b32 s{dst}, s6, 7"); e(f"s_mul_i32 s{dst}, s{dst}, 14"); e("s_lshr_b32 s6, s6, 3"); e(f"s_add_u32 s{dst}, s{dst}, s6")
    JT = [1, 2, 3, 0, 3, 0, 1, 2]
    JTAB = sum(j << (4 * x) for x, j in enumerate(JT))
    def mapBd(dst):
        if pair & 2:
            e(f"s_and_b32 s{dst}, s2, 7"); e(f"s_xor_b32 s{dst}, s{dst}, 4"); e(f"s_mul_i32 s{dst}, s{dst}, 14"); e("s_sub_u32 s6, s2, 128"); e("s_lshr_b32 s6, s6, 3"); e(f"s_add_u32 s{dst}, s{dst}, s6")
        else:
            e("s_and_b32 s6, s2, 7"); e("s_lshl_b32 s6, s6, 2"); e(f"s_lshr_b32 s{dst}, {JTAB:#x}, s6"); e(f"s_and_b32 s{dst}, s{dst}, 3")
            e(f"s_mul_i32 s{dst}, s{dst}, 14"); e("s_sub_u32 s7, s2, 128"); e("s_lshr_b32 s7, s7, 3"); e(f"s_add_u32 s{dst}, s{dst}, s7")
            e(f"s_lshl_b32 s{dst}, s{dst}, 1"); e("s_bfe_u32 s6, s2, 0x10002"); e(f"s_add_u32 s{dst}, s{dst}, s6")
    def mapC(dst):
        e(f"s_and_b32 s{dst}, s2, 7"); e(f"s_xor_b32 s{dst}, s{dst}, 4"); e(f"s_lshl_b32 s{dst}, s{dst}, 1"); e("s_bfe_u32 s6, s2, 0x10003"); e(f"s_add_u32 s{dst}, s{dst}, s6")
    def ws_srd():
        e("s_mov_b32 s36, s38"); e("s_mov_b32 s37, s39"); e(f"s_mov_b32 s38, {wssize:#x}"); e("s_mov_b32 s39, 0x20000")
    def epoch():
        e(f"buffer_load_dword v124, off, {WS}, 0 offset:{WS_E} sc1")
    def oo_addr(dst, isA):
        e("v_and_b32 v9, 3, v0")
        if isA:
            e("v_lshlrev_b32 v9, 3, v9"); e("v_and_b32 v10, 48, v0"); e("v_lshl_add_u32 v9, v10, 2, v9")
            e(f"s_and_b32 s6, s{S_WAVE}, 1"); e("s_lshl_b32 s6, s6, 5"); e(f"s_and_b32 s7, s{S_WAVE}, 2"); e("s_lshl_b32 s7, s7, 1"); e("s_add_u32 s6, s6, s7")
        else:
            e("v_lshlrev_b32 v9, 2, v9"); e("v_and_b32 v10, 16, v0"); e("v_lshl_add_u32 v9, v10, 3, v9"); e("v_and_b32 v10, 32, v0"); e("v_lshl_add_u32 v9, v10, 1, v9")
            e(f"s_lshl_b32 s6, s{S_WAVE}, 4")
        e(f"v_add_u32 v{dst}, s6, v9")

    if diag or probe: e("s_memrealtime s[98:99]")
    if probe: e("s_mov_b32 s96, 0")
    e(f"s_cmp_ge_u32 s2, {grid}"); e("s_cbranch_scc1 L_end")
    e("s_load_dwordx16 s[16:31], s[0:1], 0"); e("s_load_dwordx8 s[32:39], s[0:1], 64")
    e("v_lshrrev_b32 v1, 6, v0"); e("v_and_b32 v0, 63, v0")
    e(f"v_readfirstlane_b32 s{S_WAVE}, v1")
    e("s_mov_b32 s43, 0x20000")
    e("v_lshrrev_b32 v2, 4, v0"); e("v_and_b32 v3, 15, v0")
    if grid > 240: e("s_cmp_ge_u32 s2, 240"); e("s_cbranch_scc1 L_C")
    e(f"s_cmp_lt_u32 s{S_WAVE}, 4"); e("s_cbranch_scc1 L_X")

    e("s_setprio 3")
    e("v_lshlrev_b32 v1, 5, v0")
    e(f"s_lshl_b32 s9, s{S_WAVE}, 9"); e("s_sub_u32 s9, s9, 2048"); e("v_lshlrev_b32 v9, 3, v0")
    e("s_mov_b32 s42, 2048")
    e("s_waitcnt lgkmcnt(0)")
    e("s_mov_b32 s40, s16"); e("s_mov_b32 s41, s17")
    e("buffer_load_dwordx4 v[112:115], v1, s[40:43], 0 offen")
    e("buffer_load_dwordx4 v[116:119], v1, s[40:43], 0 offen offset:16")
    e("buffer_load_dwordx2 v[110:111], v9, s[40:43], s9 offen")
    ws_srd(); epoch()
    e("s_branch L_Y")

    g.label("L_X")
    e("s_cmp_ge_u32 s2, 128"); e("s_cbranch_scc1 L_BX")
    mapA(5); mapAq(59, 5)
    e("v_lshlrev_b32 v1, 17, v2"); e("v_lshl_add_u32 v1, v3, 4, v1")
    e("s_and_b32 s6, s59, 7"); e("s_lshl_b32 s6, s6, 1"); e(f"s_lshr_b32 s7, s{S_WAVE}, 1"); e("s_add_u32 s6, s6, s7")
    e("s_lshr_b32 s57, s59, 3"); e("s_lshl_b32 s57, s57, 1"); e(f"s_and_b32 s7, s{S_WAVE}, 1"); e("s_add_u32 s57, s57, s7")
    e("s_lshl_b32 s8, s6, 19"); e("s_lshl_b32 s7, s57, 8"); e("s_add_u32 s8, s8, s7")
    e("s_lshl_b32 s9, s6, 8")
    e("s_mov_b32 s42, 0x800000")
    e("s_waitcnt lgkmcnt(0)")
    e("s_mov_b32 s40, s22"); e("s_mov_b32 s41, s23")
    def issue_A(k):
        if k < 16:
            e(f"buffer_load_dwordx4 v[{V_W+4*k}:{V_W+4*k+3}], v1, s[40:43], s8 offen{NT}")
            if k < 15: e(f"s_add_u32 s8, s8, {8*8192}" if k % 2 == 0 else f"s_sub_u32 s8, s8, {7*8192}")
        else:
            isK = k < 24; late = k >= 24 + JV
            e(f"s_add_u32 m0, s50, s{58 if isK else 51}")
            e(f"s_add_u32 s49, s50, s{52 if late else 56}")
            e(f"buffer_load_dwordx4 v{121 if isK or late else 122}, {'s[44:47]' if isK else 's[60:63]'}, s49 offen{NT} lds")
            if k < 31: e("s_add_u32 s50, s50, 4096"); e("s_and_b32 s50, s50, 0x7000")
    for k in range(WA): issue_A(k)
    g.label("L_AX2")
    ws_srd(); epoch()
    e("s_setprio 3")
    g.note(0, 98)
    e("v_lshrrev_b32 v9, 3, v0"); e("v_lshl_add_u32 v120, v9, 5, s9")
    masks(g); consts(g)
    g.srd(44, 18, 67108864); g.srd(60, 20, 67108864)
    e("s_lshr_b32 s56, s5, 5"); e(f"s_mul_i32 s50, s56, {rotg*4096}"); e("s_and_b32 s50, s50, 0x7000")
    e("s_lshl_b32 s56, s56, 24"); e("s_and_b32 s7, s5, 31"); e("s_lshl_b32 s7, s7, 15"); e("s_add_u32 s56, s56, s7")
    e(f"s_lshl_b32 s7, s{S_WAVE}, 10"); e("s_add_u32 s56, s56, s7"); e(f"s_add_u32 s56, s56, {61440*256}")
    e(f"s_add_u32 s58, s7, {L_K}"); e(f"s_add_u32 s51, s7, {L_V}")
    e(f"s_lshl_b32 s7, s{S_WAVE}, 2"); e("v_add_u32 v9, s7, v2")
    e("v_xor_b32 v10, v9, v3"); e("v_lshlrev_b32 v10, 4, v10"); e("v_lshl_add_u32 v121, v2, 8, v10")
    e("v_and_b32 v9, 7, v9"); e("v_lshlrev_b32 v10, 1, v9"); e("v_xor_b32 v10, v10, v3"); e("v_lshlrev_b32 v10, 4, v10")
    e("v_lshl_add_u32 v122, v2, 8, v10")
    e("s_lshr_b32 s6, s57, 3"); e("s_lshl_b32 s6, s6, 15"); e("s_and_b32 s57, s57, 7"); e("s_lshl_b32 s57, s57, 9"); e("s_add_u32 s57, s57, s6")
    e("s_and_b32 s6, s59, 7"); e("s_lshl_b32 s6, s6, 12"); e("s_add_u32 s57, s57, s6"); e(f"s_add_u32 s57, s57, {WS_QP}")
    e("v_lshlrev_b32 v125, 4, v0")
    e(f"s_lshl_b32 s6, s{S_WAVE}, 9"); e("v_add_u32 v126, s6, v125"); e("v_xor_b32 v127, 0x400, v126")
    def pos(k): return k if k < WA else k + 1
    nis = WA
    PRE = min(32, WA + PREA)
    role("AX")
    while nis < PRE:
        e(f"s_waitcnt vmcnt({WA-1})"); issue_A(nis); nis += 1; tr(nis - WA)
    e("s_barrier")
    for i in range(2):
        e(f"ds_read_b128 v[{V_XX+4*i}:{V_XX+4*i+3}], v120 offset:{L_XN + 16*i}")
    e("s_waitcnt lgkmcnt(1)")
    sel_half(g, 0, 0); sel_half(g, 0, 1)
    for i in range(16):
        if i == 4: e("s_waitcnt lgkmcnt(0)")
        gemv_pre(g, i, 16)
        e(f"s_waitcnt vmcnt({pos(nis-1) - pos(i)})")
        while nis < i + 1 + (WA if nis < 16 else WA2) and nis < 24 + JV:
            issue_A(nis); nis += 1
        gemv_mfma(g, i, V_W + 4 * i)
        if i + 1 > PRE - WA: tr(i + 1)
        if i == 14: make_tag(g)
    g.stamp(3)
    e(f"s_and_b32 s6, s{S_WAVE}, 1"); e("s_lshl_b32 s6, s6, 2"); e("v_mov_b32 v9, s6"); e("v_mov_b32 v10, 1")
    gemv_fin(g, 4)
    e(f"ds_write_b128 v126, v[{V_ACC}:{V_ACC+3}] offset:{L_RED}")
    e("s_mov_b32 exec_lo, 1")
    e(f"ds_add_rtn_u32 v10, v9, v10 offset:{L_CNT}")
    e("s_mov_b32 exec_lo, -1")
    e(f"ds_read_b128 v[24:27], v127 offset:{L_RED}")
    e("s_waitcnt lgkmcnt(1)")
    e("v_readfirstlane_b32 s6, v10")
    skip = g.newlab("Lnl")
    e("s_cmp_eq_u32 s6, 0"); e(f"s_cbranch_scc1 {skip}")
    e("s_waitcnt lgkmcnt(0)")
    for r in range(0, 4, 2): e(f"v_pk_add_f32 v[{20+r}:{21+r}], v[{20+r}:{21+r}], v[{24+r}:{25+r}]")
    tagput(g, V_ACC)
    if not dbg & 16 and not nost & 1: e(f"buffer_store_dwordx4 v[{V_ACC}:{V_ACC+3}], v125, {WS}, s57 offen {ST}")
    g.label(skip)
    e("s_mov_b64 exec, -1")
    while nis < 24 + JV:
        e(f"s_waitcnt vmcnt({WA2-1})"); issue_A(nis); nis += 1; tr(nis - WA2)
    e("v_mov_b32 v121, v122"); e("s_mov_b32 s52, s56")

    def att_pre():
        e("v_lshrrev_b32 v2, 4, v0"); e("v_and_b32 v3, 15, v0")
        e("v_xor_b32 v10, v2, v3"); e("v_lshlrev_b32 v10, 4, v10"); e("v_lshl_add_u32 v1, v3, 8, v10")
        e(f"s_lshl_b32 s6, s{S_WAVE}, 12")
        for s in range(4):
            e(f"v_xor_b32 v10, {64*s}, v1"); e(f"v_add_u32 v{43+4*s}, s6, v10")
        e("v_lshrrev_b32 v1, 2, v0"); e("v_and_b32 v9, 7, v1"); e(f"v_xor_b32 v9, s{S_WAVE}, v9"); e("v_lshlrev_b32 v9, 5, v9")
        e("v_and_b32 v10, 3, v0"); e("v_lshl_add_u32 v9, v10, 3, v9"); e("v_lshl_add_u32 v9, v1, 8, v9"); e(f"v_add_u32 v122, {L_V}, v9")
        e("v_and_b32 v1, 7, v0"); e("v_mul_u32_u24 v123, 272, v1"); e("v_lshl_add_u32 v123, v2, 4, v123")
        e("v_lshlrev_b32 v124, 2, v3")
        e(f"s_lshr_b32 s6, s{S_WAVE}, 1"); e("s_lshl_b32 s6, s6, 10"); e(f"s_and_b32 s7, s{S_WAVE}, 1"); e("s_lshl_b32 s7, s7, 3"); e("s_add_u32 s6, s6, s7")
        e("v_lshlrev_b32 v125, 4, v0"); e("v_add_u32 v126, s6, v125")
        e("v_lshlrev_b32 v127, 4, v3"); e("v_lshl_add_u32 v127, v2, 7, v127")
        e(f"s_mul_i32 s58, s5, {OS}"); e(f"s_lshl_b32 s7, s{S_WAVE}, 9"); e("s_add_u32 s58, s58, s7"); e(f"s_add_u32 s58, s58, {WS_OP}")
        e("v_mov_b32 v12, 0x3f803f80"); e("v_mov_b32 v13, v12"); e("v_mov_b32 v14, v12"); e("v_mov_b32 v15, v12")
        e("s_lshr_b32 s9, s5, 5"); e("s_lshl_b32 s9, s9, 15"); e("s_add_u32 s9, s9, s7"); e(f"s_add_u32 s9, s9, {WS_QP}")
        e("s_add_u32 s56, s9, 8192")
        e("v_lshrrev_b32 v9, 5, v0"); e("v_and_b32 v10, 31, v0"); e("v_lshlrev_b32 v16, 12, v9"); e("v_lshl_add_u32 v16, v10, 4, v16")
        e("v_add_u32 v17, 16384, v16")
        e(f"s_mul_i32 s6, s{S_WAVE}, 272"); e("v_lshlrev_b32 v18, 4, v3"); e("v_lshl_add_u32 v18, v9, 2, v18"); e("v_and_b32 v10, 1, v2")
        e("v_lshl_add_u32 v18, v10, 3, v18"); e("v_add_u32 v18, s6, v18")
    att_pre()
    if trace:
        for k in range(WA2 - 1, QW - 1, -1): e(f"s_waitcnt vmcnt({k})"); tr(24 + JV - k)
    e(f"s_waitcnt vmcnt({QW}) lgkmcnt(0)")
    g.label("L_att")
    e("s_barrier")
    g.stamp(1)
    def yload(k):
        e(f"buffer_load_dwordx4 v[{V_W+4*k}:{V_W+4*k+3}], v120, s[40:43], s8 offen{NT}")
        if k < 15: e("s_add_u32 s8, s8, 8192" if k % 4 != 3 else "s_add_u32 s8, s8, s57")
    ny = [0]
    def yissue(n):
        if not n: return
        lx = g.newlab("Lxp")
        e(f"s_cmp_lt_u32 s{S_WAVE}, 4"); e(f"s_cbranch_scc1 {lx}")
        for k in range(ny[0], ny[0] + n): yload(k)
        ny[0] += n
        g.label(lx)
    nq = 0 if dbg & 1 else 4
    def q_load(i):
        if nq: e(f"buffer_load_dwordx4 v[{24+4*i}:{27+4*i}], v{16 + (i >> 1)}, {WS}, {'s56' if i & 1 else 's9'} offen {LD}")
    def k_reads():
        for s in range(4): e(f"ds_read_b128 v[{40+4*s}:{43+4*s}], v{43+4*s} offset:{L_K}")
    def v_reads():
        for sg in range(4):
            for u in range(2):
                e(f"ds_read_b64_tr_b16 v[{104+4*sg+2*u}:{105+4*sg+2*u}], v122 offset:{8192*sg + 4096*u}")
    def v_wait():
        lx = g.newlab("Lxv")
        e(f"s_cmp_ge_u32 s{S_WAVE}, 4"); e(f"s_cbranch_scc1 {lx}")
        e("s_waitcnt vmcnt(0)")
        g.label(lx)
    def q_first():
        e("s_barrier")
        lx = g.newlab("Lxp"); ly = g.newlab("Lxq")
        e(f"s_cmp_lt_u32 s{S_WAVE}, 4"); e(f"s_cbranch_scc1 {lx}")
        for k in range(npe): yload(k)
        ny[0] = npe
        if KE: k_reads()
        e(f"s_waitcnt vmcnt({npe})")
        e(f"s_branch {ly}")
        g.label(lx)
        for k in range(24 + JV, 32): issue_A(k)
        if KE: k_reads()
        e(f"s_waitcnt vmcnt({8 - JV})")
        g.label(ly)
        yissue(nv)
    mpoll(g, 4, q_load, lambda i, dst: tagchk1(g, 24 + 4 * i, dst), 16, first=q_first, noretry=bool(dbg & 33))
    g.note(11, 7)
    g.stamp(2)
    for r in range(16): e(f"v_and_b32 v{24+r}, s{S_MSK}, v{24+r}")
    for st in (8, 4):
        for r in range(0, st, 2): e(f"v_pk_add_f32 v[{24+r}:{25+r}], v[{24+r}:{25+r}], v[{24+st+r}:{25+st+r}]")
    g.nop(2)
    e("v_permlane32_swap_b32 v24, v26"); e("v_permlane32_swap_b32 v25, v27"); g.nop(1)
    e("v_pk_add_f32 v[24:25], v[24:25], v[26:27]")
    e("v_cvt_pk_bf16_f32 v24, v24, v25")
    e(f"ds_write_b32 v18, v24 offset:{L_Q}")
    yissue(NQ)
    e("s_waitcnt lgkmcnt(0)")
    e("s_barrier")
    g.stamp(5)
    if not KE: k_reads()
    for s in range(4):
        e(f"ds_read_b128 v[{24+4*s}:{27+4*s}], v123 offset:{L_Q + 64*s}")
    e("s_mov_b32 s6, 0x3db504f3")
    e("s_mov_b32 s7, 0x3fb8aa3b")
    for s in range(4):
        e(f"s_waitcnt lgkmcnt({3 - s})")
        c = "0" if s == 0 else "v[20:23]"
        e(f"v_mfma_f32_16x16x32_bf16 v[20:23], v[{40+4*s}:{43+4*s}], v[{24+4*s}:{27+4*s}], {c}")
    g.nop(8)
    e("v_max3_f32 v11, v20, v21, v22"); e("v_cvt_pk_bf16_f32 v9, v20, v21"); e("v_max_f32 v11, v11, v23")
    e(f"ds_max_f32 v124, v11 offset:{L_M}")
    e("v_cvt_pk_bf16_f32 v10, v22, v23")
    e("v_lshlrev_b32 v20, 16, v9"); e("v_and_b32 v21, 0xffff0000, v9"); e("v_lshlrev_b32 v22, 16, v10"); e("v_and_b32 v23, 0xffff0000, v10")
    for i in range(4): e(f"v_mul_f32 v{20+i}, s6, v{20+i}")
    yissue(nm)
    if vb == 1: v_wait()
    e("s_waitcnt lgkmcnt(0)")
    e("s_barrier")
    e(f"ds_read_b32 v11, v124 offset:{L_M}")
    if vb == 1: v_reads()
    e("v_cvt_pk_bf16_f32 v9, v20, v21"); e("v_cvt_pk_bf16_f32 v10, v22, v23")
    e("v_lshlrev_b32 v20, 16, v9"); e("v_and_b32 v21, 0xffff0000, v9"); e("v_lshlrev_b32 v22, 16, v10"); e("v_and_b32 v23, 0xffff0000, v10")
    e(f"s_waitcnt lgkmcnt({8 if vb == 1 else 0})")
    e("v_cvt_pk_bf16_f32 v11, v11, v11"); e("v_lshlrev_b32 v11, 16, v11"); e("v_mul_f32 v11, s6, v11")
    e("v_cvt_pk_bf16_f32 v11, v11, v11"); e("v_lshlrev_b32 v11, 16, v11")
    e("v_mul_f32 v11, s7, v11")
    for i in range(4): e(f"v_fma_f32 v{20+i}, v{20+i}, s7, -v11")
    for i in range(4): e(f"v_exp_f32 v{20+i}, v{20+i}")
    e("v_cvt_pk_bf16_f32 v20, v20, v21"); e("v_cvt_pk_bf16_f32 v21, v22, v23")
    e(f"ds_write_b64 v126, v[20:21] offset:{L_P}")
    yissue(np_)
    g.stamp(13)
    if vb == 2: v_wait()
    e("s_waitcnt lgkmcnt(0)")
    e("s_barrier")
    g.stamp(14)
    for sg in range(4):
        e(f"ds_read_b128 v[{40+4*sg}:{43+4*sg}], v125 offset:{L_P + 1024*sg}")
        if vb == 2:
            for u in range(2):
                e(f"ds_read_b64_tr_b16 v[{104+4*sg+2*u}:{105+4*sg+2*u}], v122 offset:{8192*sg + 4096*u}")
    e(f"v_mov_b32 v23, s{S_T[0]}")
    for sg in range(4):
        e(f"s_waitcnt lgkmcnt({(3 - sg) * (3 if vb == 2 else 1)})")
        e(f"v_mfma_f32_16x16x32_bf16 v[24:27], v[12:15], v[{40+4*sg}:{43+4*sg}], " + ("0" if sg == 0 else "v[24:27]"))
        e(f"v_mfma_f32_16x16x32_bf16 v[16:19], v[{104+4*sg}:{107+4*sg}], v[{40+4*sg}:{43+4*sg}], " + ("0" if sg == 0 else "v[16:19]"))
    e("s_mov_b32 exec_lo, 0x00ff00ff"); e("s_mov_b32 exec_hi, 0x00ff00ff")
    g.nop(5)
    e("v_rcp_f32 v9, v24"); e("v_log_f32 v10, v24")
    for r in range(4): e(f"v_mul_f32 v{16+r}, v9, v{16+r}")
    e("v_add_f32 v22, v11, v10")
    e("v_cvt_pk_bf16_f32 v20, v16, v17"); e("v_cvt_pk_bf16_f32 v21, v18, v19")
    if not dbg & 16 and not nost & 2: e(f"buffer_store_dwordx4 v[20:23], v127, {WS}, s58 offen {ST}")
    e("s_mov_b64 exec, -1")
    g.stamp(7)
    e(f"s_cmp_ge_u32 s{S_WAVE}, 4"); e("s_cbranch_scc1 L_YA2")
    mapAo(5)
    e("s_lshr_b32 s8, s5, 5"); e(f"s_mul_i32 s8, s8, {32*OS}"); e("s_bfe_u32 s6, s5, 0x30002"); e("s_lshl_b32 s6, s6, 9"); e("s_add_u32 s8, s8, s6")
    e("s_bfe_u32 s6, s5, 0x10001"); e("s_lshl_b32 s6, s6, 6"); e("s_add_u32 s8, s8, s6"); e(f"s_lshl_b32 s6, s{S_WAVE}, 7"); e("s_add_u32 s8, s8, s6")
    e(f"s_add_u32 s8, s8, {WS_OP}"); e(f"s_add_u32 s9, s8, {16*OS}")
    e("v_lshrrev_b32 v125, 2, v0"); e(f"v_mul_u32_u24 v125, {OS}, v125"); e("v_and_b32 v9, 3, v0"); e("v_lshl_add_u32 v125, v9, 4, v125")
    oo_addr(2, True)
    if ackw & 1: e("s_waitcnt vmcnt(0)")
    if oslp: e(f"s_sleep {oslp}")
    g.stamp(6)
    def o_load(i):
        if not dbg & 2: e(f"buffer_load_dwordx4 v[{24+4*i}:{27+4*i}], v125, {WS}, s{8+i} offen {LD}")
    def o_check(i, dst): e(f"v_cmp_ne_u32 {dst}, s{S_T[0]}, v{27+4*i}")
    def gate_first(): e("s_barrier"); e("s_waitcnt vmcnt(0)")
    mpoll(g, 2, o_load, o_check, 44, first=gate_first if GA == 1 else None, noretry=bool(dbg & 34), backoff=obo,
          sfix=(2, [24, 28], [8, 9], OS, lambda R: e(f"s_cmp_lg_u32 s{R+15}, s{S_T[0]}"), limo) if sfo else None)
    if GA == 2: e("s_barrier")
    g.note(12, 7)
    g.stamp(8)
    e("v_max_f32 v16, v26, v30")
    e("v_lshlrev_b32 v32, 16, v24"); e("v_and_b32 v33, 0xffff0000, v24")
    e("v_max_f32_dpp v16, v16, v16 row_ror:4 row_mask:0xf bank_mask:0xf")
    e("v_lshlrev_b32 v34, 16, v25"); e("v_and_b32 v35, 0xffff0000, v25")
    e("v_max_f32_dpp v16, v16, v16 row_ror:8 row_mask:0xf bank_mask:0xf")
    e("v_mov_b32 v9, v16")
    e("v_lshlrev_b32 v40, 16, v28"); e("v_and_b32 v41, 0xffff0000, v28")
    e("v_permlane16_swap_b32 v9, v16")
    g.nop(1)
    e("v_max_f32 v16, v9, v16")
    e("v_mov_b32 v9, v16")
    e("v_lshlrev_b32 v42, 16, v29"); e("v_and_b32 v43, 0xffff0000, v29")
    e("v_permlane32_swap_b32 v9, v16"); g.nop(1); e("v_max_f32 v16, v9, v16")
    e("v_sub_f32 v26, v26, v16"); e("v_sub_f32 v30, v30, v16")
    e("v_exp_f32 v26, v26"); e("v_exp_f32 v30, v30"); g.nop(1)
    e("v_add_f32 v36, v26, v30")
    for r in range(4): e(f"v_mul_f32 v{32+r}, v26, v{32+r}")
    for r in range(4): e(f"v_fmac_f32 v{32+r}, v30, v{40+r}")
    e("v_mov_b32 v37, v36"); g.nop(1)
    e("v_permlane32_swap_b32 v32, v34"); e("v_permlane32_swap_b32 v33, v35"); e("v_permlane32_swap_b32 v37, v36")
    e("v_add_f32 v32, v32, v34"); e("v_add_f32 v33, v33, v35"); e("v_add_f32 v36, v36, v37")
    e("v_mov_b32 v37, v36"); g.nop(1)
    e("v_permlane16_swap_b32 v32, v33"); e("v_permlane16_swap_b32 v37, v36"); g.nop(1)
    e("v_add_f32 v32, v32, v33"); e("v_add_f32 v36, v36, v37")
    for ror in (4, 8):
        g.nop(1)
        for r in (32, 36): e(f"v_add_f32_dpp v{r}, v{r}, v{r} row_ror:{ror} row_mask:0xf bank_mask:0xf")
    e("v_rcp_f32 v36, v36"); g.nop(1)
    e("v_mul_f32 v32, v36, v32")
    g.label("L_oo")
    e("v_cvt_pk_bf16_f32 v32, v32, v32")
    e(f"ds_write_b32 v2, v32 offset:{L_OO}")
    e("s_waitcnt lgkmcnt(0)")
    e("s_barrier")
    g.stamp(9)
    e("s_branch L_R")

    g.label("L_BX")
    mapB(5)
    e(f"s_mov_b32 s6, {32*7168}"); e("v_mul_lo_u32 v1, v2, s6"); e("v_lshl_add_u32 v1, v3, 4, v1")
    e("s_bfe_u32 s9, s5, 0x30001")
    e(f"s_mul_i32 s8, s9, {128*7168}"); e("s_lshr_b32 s7, s5, 4"); e("s_lshl_b32 s7, s7, 2"); e(f"s_add_u32 s7, s7, s{S_WAVE}")
    e("s_lshl_b32 s56, s7, 9")
    e("s_lshl_b32 s7, s7, 8"); e("s_add_u32 s8, s8, s7")
    e("s_mov_b32 s42, 7340032")
    e("s_and_b32 s6, s5, 1"); e("s_cmp_eq_u32 s6, 0")
    e("s_waitcnt lgkmcnt(0)")
    e("s_cselect_b32 s40, s28, s30"); e("s_cselect_b32 s41, s29, s31")
    def issue_B(k):
        r = V_W + 4 * (k & 15)
        e(f"buffer_load_dwordx4 v[{r}:{r+3}], v1, s[40:43], s8 offen{NT}")
        if k < 31: e(f"s_add_u32 s8, s8, {16*7168}" if k % 2 == 0 else f"s_sub_u32 s8, s8, {15*7168}")
    for k in range(WB1): issue_B(k)
    g.label("L_BX2")
    ws_srd(); epoch()
    e("s_setprio 3")
    g.note(0, 98)
    e("s_lshl_b32 s7, s9, 9"); e("v_lshrrev_b32 v9, 3, v0"); e("v_lshl_add_u32 v120, v9, 6, s7")
    masks(g); consts(g)
    e("s_lshl_b32 s6, s6, 3"); e("s_add_u32 s6, s6, s9"); e(f"s_mul_i32 s6, s6, {GS}"); e("s_add_u32 s56, s56, s6"); e(f"s_add_u32 s56, s56, {WS_GP}")
    e("v_lshlrev_b32 v121, 4, v0")
    e("v_lshrrev_b32 v122, 2, v0"); e(f"v_mul_u32_u24 v122, {GS}, v122"); e("v_and_b32 v9, 3, v0"); e("v_lshl_add_u32 v122, v9, 4, v122")
    mapBd(9)
    e("s_bfe_u32 s6, s9, 0x10001"); e("s_lshl_b32 s6, s6, 7"); e("s_lshr_b32 s9, s9, 2"); e("s_lshl_b32 s9, s9, 9"); e("s_add_u32 s9, s9, s6")
    e(f"s_and_b32 s6, s{S_WAVE}, 2"); e("s_lshl_b32 s6, s6, 7"); e("s_add_u32 s9, s9, s6"); e(f"s_and_b32 s6, s{S_WAVE}, 1"); e("s_lshl_b32 s6, s6, 6"); e("s_add_u32 s9, s9, s6")
    e(f"s_add_u32 s9, s9, {WS_GP}")
    oo_addr(2, False)
    def posb(k): return k if k < WB1 else k + 1
    nis = WB1
    PRE = min(15, WB1 + PREB)
    role("BX")
    while nis < PRE:
        e(f"s_waitcnt vmcnt({WB1-1})"); issue_B(nis); nis += 1; tr(nis - WB1)
    e("s_barrier")
    for i in range(4):
        e(f"ds_read_b128 v[{V_XX+4*i}:{V_XX+4*i+3}], v120 offset:{L_XN + 16*i}")
    e("s_waitcnt lgkmcnt(3)")
    sel_half(g, 0, 0); sel_half(g, 0, 1)
    b2done = False
    for i in range(32):
        if i == 4: e("s_waitcnt lgkmcnt(0)")
        gemv_pre(g, i, 32)
        e(f"s_waitcnt vmcnt({posb(nis-1) - posb(i)})")
        W = WB1 if i < WBsw else (WB2 if i < WBsw3 else WB3)
        while nis < 32 and nis < i + 1 + W:
            issue_B(nis); nis += 1
        if nis == 32 and not b2done and 31 - i <= HB:
            e("s_barrier"); b2done = True
        gemv_mfma(g, i, V_W + 4 * (i & 15))
        if i + 1 > PRE - WB1: tr(i + 1)
        if i == 20: make_tag(g)
    g.stamp(3)
    gemv_fin(g)
    tagput(g, V_ACC)
    if not dbg & 16 and not nost & 4: e(f"buffer_store_dwordx4 v[20:23], v121, {WS}, s56 offen {ST}")
    e("s_mov_b64 exec, -1")
    if not b2done: e("s_barrier")
    if ackw & 2: e("s_waitcnt vmcnt(0)")
    if hslp: e(f"s_sleep {hslp}")
    g.stamp(6)
    def h_load(i):
        if not dbg & 4: e(f"buffer_load_dwordx4 v[28:31], v122, {WS}, s9 offen {LD}")
    def bytepre(R):
        e(f"s_xor_b32 s6, s{R+12}, s{S_T[0]}"); e("s_and_b32 s6, s6, 0xff")
    mpoll(g, 1, h_load, lambda i, dst: tagchk1(g, 28, dst), 44, first=gate_first if GB == 1 else None, noretry=bool(dbg & 36), backoff=hbo,
          sfix=(4, [28], [9], GS, bytepre, limh) if sfh else None)
    if GB == 2: e("s_barrier")
    g.note(11, 7)
    g.stamp(5)
    for r in range(4): e(f"v_and_b32 v{28+r}, s{S_MSK}, v{28+r}")
    g.nop(1)
    e("v_permlane16_swap_b32 v28, v30"); e("v_permlane16_swap_b32 v29, v31"); g.nop(1)
    e("v_add_f32 v28, v28, v30"); e("v_add_f32 v29, v29, v31")
    for ror in (4, 8):
        g.nop(1)
        for r in (28, 29): e(f"v_add_f32_dpp v{r}, v{r}, v{r} row_ror:{ror} row_mask:0xf bank_mask:0xf")
    g.nop(2)
    e("v_permlane32_swap_b32 v28, v29")
    g.nop(1)
    e("v_cvt_pk_bf16_f32 v28, v28, v29")
    e("v_lshlrev_b32 v32, 16, v28"); e("v_mul_f32 v32, 0xbfb8aa3b, v32"); e("v_exp_f32 v32, v32")
    e("v_and_b32 v29, 0xffff0000, v28")
    e("v_add_f32 v32, 1.0, v32"); e("v_rcp_f32 v32, v32"); g.nop(1)
    e("v_cvt_pk_bf16_f32 v32, v32, v32"); e("v_lshlrev_b32 v32, 16, v32")
    e("v_mul_f32 v32, v32, v29")
    e("s_branch L_oo")

    g.label("L_Y")
    g.note(0, 98)
    e("s_lshl_b32 s9, s9, 1"); e("v_lshl_add_u32 v122, v0, 4, s9")
    e("v_mov_b32 v9, 0"); e("v_mov_b32 v44, 0"); e("v_mov_b32 v45, 0"); e("v_mov_b32 v46, 0"); e("v_mov_b32 v47, 0")
    e(f"ds_write_b128 v9, v[44:47] offset:{L_CNT}")
    e("v_lshlrev_b32 v10, 2, v3"); e("v_mov_b32 v11, 0xff800000"); e(f"ds_write_b32 v10, v11 offset:{L_M}")
    e("v_lshlrev_b32 v120, 11, v2"); e("v_lshl_add_u32 v120, v3, 4, v120")
    e("v_lshrrev_b32 v121, 2, v0"); e(f"v_mul_u32_u24 v121, {RS}, v121"); e("v_and_b32 v10, 3, v0"); e("v_lshl_add_u32 v121, v10, 4, v121")
    e("v_mov_b32 v12, 0x3f803f80"); e("v_mov_b32 v10, 0"); e("v_mov_b32 v11, 0x3a800000")
    e("s_waitcnt vmcnt(1)")
    layernorm(g, 112, 110)
    e(f"ds_write_b128 v122, v[24:27] offset:{L_XN}")
    e("s_waitcnt lgkmcnt(0) vmcnt(0)")
    g.stamp(6)
    e("s_barrier")
    make_tag(g)
    masks(g); consts(g)
    def ysetup(pbase):
        e("s_lshr_b32 s9, s5, 1")
        if pbase == 0:
            e("s_lshr_b32 s8, s5, 5"); e("s_lshl_b32 s8, s8, 21"); e("s_bfe_u32 s6, s5, 0x10001"); e("s_lshl_b32 s6, s6, 20"); e("s_add_u32 s8, s8, s6")
            e("s_bfe_u32 s6, s5, 0x30002"); e("s_lshl_b32 s6, s6, 15"); e("s_add_u32 s8, s8, s6"); e(f"s_mov_b32 s57, {116*2048}")
        else:
            e("s_lshl_b32 s8, s9, 17"); e("s_movk_i32 s57, 8192")
        e("s_and_b32 s6, s5, 1"); e("s_lshl_b32 s6, s6, 2")
        e(f"s_add_u32 s6, s6, s{S_WAVE}"); e("s_sub_u32 s6, s6, 4")
        e("s_lshl_b32 s7, s6, 8"); e("s_add_u32 s8, s8, s7")
        e(f"s_mul_i32 s59, s6, {8*RS}"); e(f"s_mul_i32 s9, s9, {PS}"); e("s_add_u32 s59, s59, s9"); e(f"s_add_u32 s59, s59, {WS_SP + pbase*PS}")
    e("s_cmp_ge_u32 s2, 128"); e("s_cbranch_scc1 L_YB2")
    mapAo(5); ysetup(0)
    e("s_mov_b32 s40, s24"); e("s_mov_b32 s41, s25"); e("s_mov_b32 s42, 0x800000")
    mapA(5)
    att_pre()
    e("s_branch L_att")
    def ystream(k0, W1, N1, W2, gate):
        for k in range(k0, 16):
            if gate and k == max(N1, k0): e("s_barrier")
            W = W1 if k < N1 else W2
            if k >= W: e(f"s_waitcnt vmcnt({W-1})")
            yload(k)
            if k >= W: tr(k + 1 - W)
        if gate and max(N1, k0) >= 16: e("s_barrier")
        if trace:
            for k in range(min(W, 16) - 1, -1, -1): e(f"s_waitcnt vmcnt({k})"); tr(16 - k)
    g.label("L_YB2")
    mapBd(5); ysetup(64)
    e("s_mov_b32 s40, s32"); e("s_mov_b32 s41, s33"); e("s_mov_b32 s42, 7340032")
    e("s_setprio 0")
    e("s_barrier")
    g.stamp(2)
    role("BY"); ystream(0, WYB, N1B, W2B, GB)
    e("s_branch L_YL3")
    g.label("L_YA2")
    e("s_setprio 0")
    role("AY"); ystream(NPRE, WYA, N1A, W2A, GA)
    g.label("L_YL3")
    g.stamp(3)
    e("v_and_b32 v9, 56, v0"); e("v_lshlrev_b32 v9, 2, v9")
    e("s_barrier")
    g.stamp(4)
    for i in range(2):
        e(f"ds_read_b128 v[{V_XX+4*i}:{V_XX+4*i+3}], v9 offset:{L_OO + 16*i}")
    e("s_waitcnt lgkmcnt(1)")
    sel_half(g, 0, 0); sel_half(g, 0, 1)
    for i in range(16):
        gemv_pre(g, i, 16)
        e(f"s_waitcnt vmcnt({15-i})" + (" lgkmcnt(0)" if i == 4 else ""))
        gemv_mfma(g, i, V_W + 4 * i)
    gemv_fin(g)
    tagput(g, V_ACC)
    if not dbg & 16 and not nost & 8: e(f"buffer_store_dwordx4 v[{V_ACC}:{V_ACC+3}], v121, {WS}, s59 offen {ST}")
    e("s_mov_b64 exec, -1")
    g.stamp(9)

    g.label("L_R")
    lo = 0 if rrole == 0 else 128
    e(f"s_sub_u32 s6, s2, {lo}"); e("s_cmp_ge_u32 s6, 64"); e("s_cbranch_scc1 L_fin")
    if dbg & 256: e("s_branch L_fin")
    e("s_setprio 3")
    e("s_lshr_b32 s7, s6, 3"); e("s_and_b32 s5, s6, 7"); e("s_xor_b32 s5, s5, 4"); e("s_lshl_b32 s5, s5, 3"); e("s_add_u32 s5, s5, s7")
    e(f"s_lshl_b32 s6, s{S_WAVE}, 4"); e(f"s_mul_i32 s7, s{S_WAVE}, 14"); e("s_add_u32 s7, s7, 8")
    e(f"s_cmp_lt_u32 s{S_WAVE}, 4"); e("s_cselect_b32 s6, s6, s7"); e("s_cselect_b32 s47, -1, 0x00ffffff")
    e(f"s_mul_i32 s6, s6, {PS}"); e(f"s_mul_i32 s9, s5, {RS}"); e("s_add_u32 s9, s9, s6"); e(f"s_add_u32 s9, s9, {WS_SP}")
    e("v_lshrrev_b32 v122, 2, v0"); e(f"v_mul_u32_u24 v122, {PS}, v122"); e("v_and_b32 v9, 3, v0"); e("v_lshl_add_u32 v122, v9, 4, v122")
    for r in range(4): e(f"v_and_b32 v{28+r}, s{S_T[r]}, v{V_FF}")
    e("v_lshrrev_b32 v10, 4, v0"); e("v_lshl_add_u32 v9, v9, 2, v10"); e("v_mul_u32_u24 v120, 48, v9"); e(f"s_lshl_b32 s6, s{S_WAVE}, 2"); e("v_add_u32 v120, s6, v120")
    e("v_and_b32 v9, 15, v0"); e("v_mul_u32_u24 v121, 48, v9")
    e("v_and_b32 v10, 12, v0"); e("v_add_u32 v125, v9, v10"); e("v_lshlrev_b32 v125, 1, v125")
    g.srd(32, 34, 2048)
    lw = g.newlab("Lrw")
    e(f"s_cmp_lg_u32 s{S_WAVE}, 0"); e(f"s_cbranch_scc1 {lw}")
    e("s_load_dwordx2 s[48:49], s[0:1], 0")
    e("s_lshr_b32 s8, s5, 3"); e("s_lshl_b32 s8, s8, 8"); e("s_and_b32 s6, s5, 3"); e("s_lshl_b32 s6, s6, 6"); e("s_add_u32 s8, s8, s6")
    e("s_and_b32 s6, s5, 4"); e("s_lshl_b32 s6, s6, 1"); e("s_add_u32 s8, s8, s6")
    e("s_mov_b32 s50, 2048"); e("s_mov_b32 s51, 0x20000")
    e("s_waitcnt lgkmcnt(0)")
    e("buffer_load_ushort v126, v125, s[48:51], s8 offen")
    g.label(lw)
    if rack: e("s_waitcnt vmcnt(0)")
    e("s_barrier")
    if rslp: e(f"s_sleep {rslp}")
    g.stamp(13)
    def r_load(i): e(f"buffer_load_dwordx4 v[28:31], v122, {WS}, s9 offen {LD}")
    def r_first(): e("s_mov_b32 exec_hi, -1"); e("s_waitcnt vmcnt(0)")
    e("s_mov_b32 exec_hi, s47")
    mpoll(g, 1, r_load, lambda i, dst: tagchk1(g, 28, dst), 44, first=r_first, noretry=bool(dbg & 8), backoff=rbo,
          sfix=(4, [28], [9], PS, bytepre, limr) if sfr else None)
    g.note(15, 7)
    g.stamp(14)
    for r in range(4): e(f"v_and_b32 v{28+r}, s{S_MSK}, v{28+r}")
    g.nop(1)
    e("v_permlane32_swap_b32 v28, v30"); e("v_permlane32_swap_b32 v29, v31"); g.nop(1)
    e("v_add_f32 v28, v28, v30"); e("v_add_f32 v29, v29, v31"); g.nop(2)
    e("v_permlane16_swap_b32 v28, v29"); g.nop(1)
    e("v_add_f32 v28, v28, v29")
    for ror in (4, 8):
        g.nop(2); e(f"v_add_f32_dpp v28, v28, v28 row_ror:{ror} row_mask:0xf bank_mask:0xf")
    e(f"ds_write_b32 v120, v28 offset:{L_RED}")
    e("s_waitcnt lgkmcnt(0)")
    e("s_barrier")
    e(f"s_cmp_lg_u32 s{S_WAVE}, 0"); e("s_cbranch_scc1 L_R3")
    e(f"ds_read_b128 v[28:31], v121 offset:{L_RED + 16}"); e(f"ds_read_b128 v[24:27], v121 offset:{L_RED}")
    e("v_lshlrev_b32 v126, 16, v126")
    e("s_waitcnt lgkmcnt(1)")
    e("v_add_f32 v28, v28, v29"); e("v_add_f32 v30, v30, v31"); e("v_add_f32 v28, v28, v30")
    e("v_cvt_pk_bf16_f32 v28, v28, v28"); e("v_lshlrev_b32 v28, 16, v28")
    e("v_mul_f32 v10, 0xbfb8aa3b, v28"); e("v_exp_f32 v10, v10")
    e("s_waitcnt lgkmcnt(0)")
    e("v_add_f32 v24, v24, v25"); e("v_add_f32 v10, 1.0, v10"); e("v_rcp_f32 v10, v10")
    e("v_add_f32 v26, v26, v27"); e("v_add_f32 v24, v24, v26")
    e("v_mul_f32 v10, v28, v10")
    e("v_cvt_pk_bf16_f32 v10, v10, v24")
    e("v_and_b32 v24, 0xffff0000, v10"); e("v_lshlrev_b32 v10, 16, v10")
    e("v_mul_f32 v10, v24, v10")
    e("v_cvt_pk_bf16_f32 v10, v10, v10"); e("v_lshlrev_b32 v10, 16, v10")
    e("v_add_f32 v10, v126, v10")
    pol = ["", " sc1", " nt", " sc0 sc1"][ost & 3]
    e("s_mov_b64 exec, 0xffff")
    e("v_cvt_pk_bf16_f32 v10, v10, v10")
    e("buffer_store_short v10, v125, s[32:35], s8 offen" + pol)
    e("s_mov_b64 exec, -1")
    g.stamp(4)
    if probe: e("s_waitcnt vmcnt(0)"); e("s_memrealtime s[96:97]")
    if not diag and not probe: e("s_endpgm")
    g.label("L_R3")
    e(f"s_cmp_lg_u32 s{S_WAVE}, 1"); e("s_cbranch_scc1 L_fin")
    e("s_cmp_lg_u32 s5, 0"); e("s_cbranch_scc1 L_fin")
    e("s_mov_b64 exec, 1")
    e(f"v_mov_b32 v10, s{S_T[0]}")
    e(f"buffer_store_dword v10, off, {WS}, 0 offset:{WS_E} sc1")
    e("s_mov_b64 exec, -1")
    e("s_branch L_fin")

    g.label("L_C")
    e("s_getpc_b64 s[60:61]")
    g.label("L_pc")
    e(f"s_sub_u32 s60, s60, L_pc-{NAME}_kernel"); e("s_subb_u32 s61, s61, 0")
    e(f"s_lshl_b32 s6, s{S_WAVE}, 11"); e("v_lshl_add_u32 v9, v0, 5, s6")
    e(f"v_min_u32 v9, L_fail-{NAME}_kernel, v9")
    if cpf: e("global_load_dword v10, v9, s[60:61]")
    g.label("L_C0")
    if diag or pw:
        e("s_waitcnt lgkmcnt(0)"); ws_srd(); g.note(0, 98)
    if pw:
        if pwd:
            lpd = g.newlab("Lcd"); e(f"s_mov_b32 s7, {pwd}"); g.label(lpd); e("s_sleep 16"); e("s_sub_u32 s7, s7, 1"); e("s_cmp_lg_u32 s7, 0"); e(f"s_cbranch_scc1 {lpd}")
        e("s_and_b32 s5, s2, 7"); e("s_lshl_b32 s5, s5, 1"); e("s_bfe_u32 s6, s2, 0x10003"); e("s_add_u32 s5, s5, s6")
        e(f"s_lshl_b32 s5, s5, 3"); e(f"s_add_u32 s5, s5, s{S_WAVE}")
        e("v_lshlrev_b32 v1, 6, v0")
        if pw & 1:
            e("s_mul_i32 s6, s5, 3840"); e(f"s_add_u32 s6, s6, {WS_SP}"); e(f"buffer_load_dword v10, v1, {WS}, s6 offen")
        if pw & 2:
            e(f"s_mul_i32 s6, s5, {OS}"); e(f"s_add_u32 s6, s6, {WS_OP}"); e(f"buffer_load_dword v11, v1, {WS}, s6 offen")
    g.label("L_fin")
    if probe:
        def until(lab, base, t):
            g.label(lab); e("s_sleep 4"); e("s_memrealtime s[92:93]"); e("s_waitcnt lgkmcnt(0)"); e(f"s_sub_u32 s92, s92, {base}"); e(f"s_cmp_lt_u32 s92, {t}"); e(f"s_cbranch_scc1 {lab}")
        e(f"s_cmp_lg_u32 s{S_WAVE}, 0"); e("s_cbranch_scc1 L_end")
        e("s_load_dwordx2 s[90:91], s[0:1], 80")
        until("L_q0", "s98", 1600)
        e("s_not_b32 s6, s98"); e("s_atomic_umax s6, s[90:91], 128")
        e("s_mov_b32 s6, s96"); e("s_atomic_umax s6, s[90:91], 192")
        e("s_cmp_lg_u32 s2, 0"); e("s_cbranch_scc1 L_end")
        until("L_q3", "s98", 4000)
        e("s_load_dword s8, s[90:91], 128 glc"); e("s_load_dword s9, s[90:91], 192 glc"); e("s_waitcnt lgkmcnt(0)")
        e("s_not_b32 s8, s8"); e("s_sub_u32 s9, s9, s8"); e("s_min_u32 s9, s9, 3000"); e("s_mul_i32 s9, s9, 10")
        g.label("L_q4"); e("s_memrealtime s[92:93]"); e("s_waitcnt lgkmcnt(0)"); e("s_sub_u32 s92, s92, s8"); e("s_cmp_lt_u32 s92, s9"); e("s_cbranch_scc1 L_q4")
    if diag:
        e("s_waitcnt vmcnt(0)")
        g.stamp(10)
        e("s_lshl_b32 s6, s2, 3"); e(f"s_add_u32 s6, s6, s{S_WAVE}"); e("s_lshl_b32 s6, s6, 8"); e(f"s_add_u32 s6, s6, {WS_DIAG}")
        e("v_lshlrev_b32 v1, 2, v0")
        e(f"buffer_store_dword v128, v1, {WS}, s6 offen")
    g.label("L_end")
    e("s_endpgm")
    g.label("L_fail")
    e("s_endpgm")
    nv = 136 if diag else 128
    g.L += ['.section .rodata,"a"', ".p2align 6", f".amdhsa_kernel {NAME}_kernel",
            f"  .amdhsa_next_free_vgpr {nv}", "  .amdhsa_next_free_sgpr 102", f"  .amdhsa_accum_offset {nv}",
            "  .amdhsa_group_segment_fixed_size 0", "  .amdhsa_kernarg_size 96", "  .amdhsa_user_sgpr_count 2",
            "  .amdhsa_user_sgpr_kernarg_segment_ptr 1", "  .amdhsa_system_sgpr_workgroup_id_x 1",
            ".end_amdhsa_kernel"]
    if heads:
        L = g.L
        def cut(a, b):
            i = L.index(a); j = L.index(b); blk = L[i:j]; del L[i:j]; return blk
        bh = cut("L_BX:", "L_BX2:") + ["  s_branch L_BX2"]
        i = L.index("L_AX2:"); L[i:i] = ["  s_branch L_AX2"] + bh
        ch = cut("L_C:", "L_C0:") + ["  s_branch L_C0"]
        i = L.index("L_X:")
        if grid > 240: L[i:i] = ch
    out = "\n".join(x for x in g.L if x is not None) + "\n"
    if not diag and not probe: out = out.replace("  s_branch L_fin\n", "  s_endpgm\n")
    return out

F = [("AX:st",0,128,0,4,0),("wq",0,128,0,4,3),("ba",0,128,0,4,1),("gotq",0,128,0,8,2),("bq",0,128,0,4,5),("sm",64,128,0,8,13),("bp",64,128,0,8,14),("pubo",0,128,0,8,7),("gath",0,128,0,4,6),("goto",0,128,0,4,8),
     ("AY:ln",0,128,4,8,6),("iss",0,128,4,8,3),("bo",0,128,4,8,4),("pub",0,128,4,8,9),
     ("BX:gu",128,240,0,4,3),("gath",128,240,0,4,6),("goth",128,240,0,4,5),
     ("BY:go",128,240,4,8,2),("iss",128,240,4,8,3),("bo",128,240,4,8,4),("pub",128,240,4,8,9),
     ("R:go",0,64,0,8,13),("got",0,64,0,8,14),("out",0,64,0,1,4),("end",0,240,0,8,10)]
POLLS = [("q", 0, 128, 0, 8, 11), ("o", 0, 128, 0, 4, 12), ("h", 128, 240, 0, 4, 11), ("fin", 0, 64, 0, 8, 15)]

def valid(c):
    return c.get("npe", 4) + c.get("nv", 0) + c.get("nm", 0) + c.get("np_", 0) <= c.get("NPRE", 4) <= 12 and c.get("WA", 8) <= 14

def parse(cfg):
    kw = {}
    for t in cfg.split(","):
        if not t: continue
        k, v = t.split("=")
        kw[k] = v if k in ("NT",) else int(v)
    return kw

if __name__ == "__main__":
    open(sys.argv[1], "w").write(gen(**parse(sys.argv[2] if len(sys.argv) > 2 else "")))
```

```python
import sys
NAME = "recurrent_scan__sliding_block_cached__glu_gated_glu__decode"
HEADER = open("cdna_kernels/" + NAME + ".s.ref").read().split("; @launch")[0]
NEWDIAG = 1

WS_E  = 0x0
WS_QP = 0x1000
WS_GP = 0x21000
WS_OP = 0x60000
WS_SP = 0xE8000
WS_USED = 0x168000
WS_DIAG = 0x1000000
L_CNT = 0
L_M   = 64
L_OO  = 512
L_RED = 2048
L_Q   = 4096
L_XN  = 8192
L_P   = 8192
L_K   = 12288
L_V   = 45056
LDS_BYTES = 77824
SPIN = 200000
SPIN_FINAL = 4000000

class G:
    def __init__(s, diag):
        s.L = []; s.tail = []; s.diag = diag; s.lab = 0
    def e(s, t): s.L.append("  " + t)
    def label(s, n): s.L.append(n + ":")
    def newlab(s, p="L"):
        s.lab += 1; return f"{p}_{s.lab}"
    def nop(s, n):
        while n > 0:
            k = min(n, 16); s.e(f"s_nop {k-1}"); n -= k
    def stamp(s, i):
        if s.diag:
            s.e("s_memrealtime s[100:101]"); s.e("s_waitcnt lgkmcnt(0)"); s.e(f"v_writelane_b32 v128, s100, {i}")
    def note(s, i, sreg):
        if s.diag: s.e(f"v_writelane_b32 v128, s{sreg}, {i}")
    def srd(s, d, lo, size):
        s.e(f"s_mov_b32 s{d}, s{lo}"); s.e(f"s_mov_b32 s{d+1}, s{lo+1}")
        s.e(f"s_mov_b32 s{d+2}, {size:#x}"); s.e(f"s_mov_b32 s{d+3}, 0x20000")

S_WAVE = 4
S_T = [10]
S_N = [11, 12, 13, 14]
WS = "s[36:39]"; WSP = "s[36:37]"
SLOTS = [16, 48, 64, 80]
V_M = 4; V_FF = 8; V_TMP = 12; V_ACC = 20; V_XX = 24; V_ACC1 = 48; V_W = 56

def tagput(g, r):
    for i in range(4): g.e(f"v_add_u32 v{r+i}, 8, v{r+i}")
    for i in range(4): g.e(f"v_bfi_b32 v{r+i}, 15, s{S_N[i]}, v{r+i}")

def wave_sum(g, v, sdst, fill=()):
    fill = list(fill)
    def pad(n):
        for _ in range(n):
            if fill: g.e(fill.pop(0))
            else: g.nop(1)
    for ror in (8, 4, 2, 1):
        pad(2); g.e(f"v_add_f32_dpp v{v}, v{v}, v{v} row_ror:{ror} row_mask:0xf bank_mask:0xf")
    pad(2); g.e(f"v_add_f32_dpp v{v}, v{v}, v{v} row_bcast:15 row_mask:0xa bank_mask:0xf")
    pad(2); g.e(f"v_add_f32_dpp v{v}, v{v}, v{v} row_bcast:31 row_mask:0xc bank_mask:0xf")
    pad(1); g.e(f"v_readlane_b32 s{sdst}, v{v}, 63")
    pad(2)
    for f in fill: g.e(f)

def xreduce(g, op, regs, tmps, steps=(16, 32)):
    for st in steps:
        for r, t in zip(regs, tmps): g.e(f"v_mov_b32 v{t}, v{r}")
        if len(regs) < 3: g.nop(3 - len(regs))
        for r, t in zip(regs, tmps): g.e(f"v_permlane{st}_swap_b32 v{t}, v{r}")
        if len(regs) < 2: g.nop(1)
        for r, t in zip(regs, tmps): g.e(f"{op} v{r}, v{t}, v{r}")

def layernorm(g, xr, xm):
    U = 28
    for i in range(8): g.e(f"v_dot2c_f32_bf16 v{9 + (i & 1)}, v12, v{xr+i}")
    unp = []
    for i in range(8):
        unp += [f"v_lshlrev_b32 v{U+2*i}, 16, v{xr+i}", f"v_and_b32 v{U+2*i+1}, 0xffff0000, v{xr+i}"]
    for _ in range(3): g.e(unp.pop(0))
    g.e("v_add_f32 v9, v9, v10")
    wave_sum(g, 9, 6, unp)
    g.e("v_mul_f32 v2, s6, v11"); g.e("v_mul_f32 v3, s6, v11")
    for i in range(0, 16, 2):
        g.e(f"v_pk_add_f32 v[{U+i}:{U+i+1}], v[{U+i}:{U+i+1}], v[2:3] neg_lo:[0,1] neg_hi:[0,1]")
    for i in range(0, 16, 2):
        a = 44 + 2 * ((i >> 1) & 1)
        g.e(f"v_pk_fma_f32 v[{a}:{a+1}], v[{U+i}:{U+i+1}], v[{U+i}:{U+i+1}], v[{a}:{a+1}]")
    g.e("v_pk_add_f32 v[44:45], v[44:45], v[46:47]")
    g.e("v_add_f32 v9, v44, v45")
    fill = [f"v_lshlrev_b32 v24, 16, v{xm}", f"v_and_b32 v25, 0xffff0000, v{xm}", f"v_lshlrev_b32 v26, 16, v{xm+1}", f"v_and_b32 v27, 0xffff0000, v{xm+1}",
            "v_cvt_pk_bf16_f32 v3, v3, v3", "v_lshlrev_b32 v3, 16, v3"] + [f"v_sub_f32 v{24+i}, v{24+i}, v3" for i in range(4)] + \
           ["v_cvt_pk_bf16_f32 v10, v24, v25", "v_cvt_pk_bf16_f32 v2, v26, v27", "v_lshlrev_b32 v24, 16, v10", "v_and_b32 v25, 0xffff0000, v10", "v_lshlrev_b32 v26, 16, v2"]
    wave_sum(g, 9, 6, fill)
    g.e("v_mul_f32 v9, s6, v11")
    g.e("v_cvt_pk_bf16_f32 v9, v9, v9"); g.e("v_lshlrev_b32 v9, 16, v9")
    g.e("v_add_f32 v9, 0x3727c5ac, v9")
    g.e("v_cvt_pk_bf16_f32 v9, v9, v9"); g.e("v_lshlrev_b32 v9, 16, v9")
    g.e("v_sqrt_f32 v9, v9")
    g.e("v_and_b32 v27, 0xffff0000, v2")
    g.e("v_cvt_pk_bf16_f32 v9, v9, v9"); g.e("v_lshlrev_b32 v9, 16, v9")
    g.e("v_rcp_f32 v9, v9"); g.nop(1)
    for i in range(4): g.e(f"v_mul_f32 v{24+i}, v{24+i}, v9")
    for i in range(4): g.e(f"v_cvt_pk_bf16_f32 v{24+i}, v{24+i}, v{24+i}")

def sel_half(g, m, h):
    t = V_TMP + 4 * (m & 1)
    for r in (2 * h, 2 * h + 1): g.e(f"v_and_b32 v{t+r}, v{V_XX+m}, v{V_M+r}")
def gemv_mfma(g, i, w):
    t = V_TMP + 4 * ((i >> 1) & 1); a = V_ACC1 if i & 1 else V_ACC
    c = "0" if i < 2 else f"v[{a}:{a+3}]"
    g.e(f"v_mfma_f32_16x16x32_bf16 v[{a}:{a+3}], v[{t}:{t+3}], v[{w}:{w+3}], {c}")
def gemv_pre(g, i, n):
    m = (i >> 1) + 1
    if 2 * m < n: sel_half(g, m, i & 1)
def gemv_fin(g, pad=8):
    g.nop(pad)
    for r in range(4): g.e(f"v_permlane32_swap_b32 v{V_ACC1+r}, v{V_XX+r}")
    g.e("s_mov_b32 exec_hi, 0")
    for r in (0, 2): g.e(f"v_pk_add_f32 v[{V_ACC+r}:{V_ACC+r+1}], v[{V_ACC+r}:{V_ACC+r+1}], v[{V_XX+r}:{V_XX+r+1}]")

def mpoll(g, n, load, check, sbase, first=None, noretry=False):
    e = g.e
    rt = g.newlab("Lrt"); lp = g.newlab("Lrl"); ok = g.newlab("Lok")
    M = lambda i: f"s[{sbase+2*i}:{sbase+2*i+1}]"
    def anymiss():
        if n == 1: e(f"s_cmp_lg_u64 {M(0)}, 0")
        else:
            e(f"s_or_b64 vcc, {M(0)}, {M(1)}")
            for i in range(2, n): e(f"s_or_b64 vcc, vcc, {M(i)}")
    for i in range(n): load(i)
    if g.diag: e(f"s_mov_b32 s7, {SPIN}")
    if first: first()
    else: e("s_waitcnt vmcnt(0)")
    for i in range(n): check(i, M(i))
    anymiss()
    if not noretry: e(f"s_cbranch_scc1 {rt}")
    g.label(ok)
    main = g.L; g.L = g.tail
    g.label(rt)
    e(f"s_mov_b32 s7, {SPIN}")
    g.label(lp)
    for i in range(n):
        e(f"s_wqm_b64 exec, {M(i)}")
        if n > 1:
            sk = g.newlab("Lms"); e(f"s_cbranch_execz {sk}"); load(i); g.label(sk)
        else: load(i)
    e("s_sub_u32 s7, s7, 1"); e("s_cbranch_scc1 L_fail")
    e("s_waitcnt vmcnt(0)")
    for i in range(n):
        if n > 1: e(f"s_wqm_b64 exec, {M(i)}")
        check(i, M(i))
    anymiss()
    e(f"s_cbranch_scc1 {lp}")
    e("s_mov_b64 exec, -1")
    e(f"s_branch {ok}")
    g.L = main

def ipoll(g, n, load, check, sbase, noretry=False):
    e = g.e
    lp = g.newlab("Lil")
    M = lambda i: f"s[{sbase+2*i}:{sbase+2*i+1}]"
    g.label(lp)
    for i in range(n):
        e(f"s_wqm_b64 exec, {M(i)}")
        if n > 1:
            sk = g.newlab("Lms"); e(f"s_cbranch_execz {sk}"); load(i); g.label(sk)
        else: load(i)
    e("s_sub_u32 s7, s7, 1"); e("s_cbranch_scc1 L_fail")
    e("s_waitcnt vmcnt(0)")
    for i in reversed(range(n)):
        if i < n - 1: e(f"s_wqm_b64 exec, {M(i)}")
        check(i, M(i))
    e("s_mov_b64 exec, -1")
    if n == 1: e(f"s_cmp_lg_u64 {M(0)}, 0")
    else: e(f"s_or_b64 vcc, {M(0)}, {M(1)}")
    if not noretry: e(f"s_cbranch_scc1 {lp}")

def tagchk1(g, r, dst):
    for i in range(4): g.e(f"v_xor_b32 v{r+i}, s{S_N[i]}, v{r+i}")
    g.e(f"v_or3_b32 v9, v{r}, v{r+1}, v{r+2}")
    g.e(f"v_bitop3_b32 v9, v9, v{r+3}, 15 bitop3:0xa8")
    g.e(f"v_cmp_ne_u32 {dst}, 0, v9")

def make_tag(g):
    g.e(f"v_readfirstlane_b32 s{S_T[0]}, v124")
    g.nop(1)
    g.e(f"s_add_u32 s{S_T[0]}, s{S_T[0]}, 0x9e3779b9")
    for i in range(4): g.e(f"s_bfe_u32 s{S_N[i]}, s{S_T[0]}, {0x40000 + 4*i:#x}")

def masks(g):
    e = g.e
    e("v_and_b32 v9, 1, v0"); e("v_lshlrev_b32 v9, 4, v9"); e("v_mov_b32 v10, 0xffff"); e("v_lshlrev_b32 v10, v9, v10")
    e("v_bfe_u32 v9, v0, 1, 2")
    for r in range(4):
        e(f"v_cmp_eq_u32 vcc, {r}, v9"); g.nop(2); e(f"v_cndmask_b32 v{V_M+r}, 0, v10, vcc")

def gen(diag=False, WA=8, WB1=5, WB2=8, WBsw=14, WYA=6, WYB=6, HB=3, NT=" nt", dbg=0, ackw=0,
        PREA=6, PREB=4, QW=4, NPRE=4, npe=4, cpf=1, cbo=0, obo=0, hbo=0,
        N1A=16, W2A=8, GA=0, N1B=16, W2B=8, GB=0, oslp=20, hslp=24, cwait=1, trace=0, pair=0, rotg=2,
        sfo=1, sfh=1, limo=2, limh=4, sfc=0, limc=1, nost=0, OS=4224, GS=14464, nv=0, nm=0, np_=0, heads=1, ost=3, slay=0, rrole=0, sfr=0, limr=4, rbo=0, rslp=0, pw=0, pwd=0, WB3=0, WBsw3=99, WA2=0, JV=4, vb=2, rack=0, probe=0, grid=256, final=0):
    global SPIN
    SPIN = SPIN_FINAL if final else 200000
    KE = QW <= JV
    WA2 = WA2 or WA
    RS = 7680 if slay == 0 else 64; PS = 64 if slay == 0 else 4224
    NQ = NPRE - npe - nv - nm - np_; assert NQ >= 0 and NPRE <= 12
    global TR
    TR = {}; cur = [None]
    g = G(diag); e = g.e
    def role(n): cur[0] = n; TR.setdefault(n, [])
    def tr(landed):
        if not trace: return
        i = len(TR[cur[0]]); TR[cur[0]].append(landed); g.stamp(16 + i)
    ST = "sc1"; LD = "sc1"
    wssize = WS_DIAG + 0x100000 if diag else WS_USED
    g.L.append(HEADER.rstrip("\n"))
    g.L.append(f"; @launch grid=({grid},1,1) block=(512,1,1) lds={LDS_BYTES}")
    g.L.append('.amdgcn_target "amdgcn-amd-amdhsa--gfx950"')
    g.L += [".text", f".globl {NAME}_kernel", ".p2align 8", f".type {NAME}_kernel,@function", f"{NAME}_kernel:"]
    def mapA(dst):
        e(f"s_and_b32 s{dst}, s2, 7"); e(f"s_lshl_b32 s{dst}, s{dst}, 4"); e("s_lshr_b32 s6, s2, 3"); e(f"s_add_u32 s{dst}, s{dst}, s6")
    def mapAq(dst, a):
        e(f"s_add_u32 s{dst}, s{a}, 32"); e(f"s_and_b32 s{dst}, s{dst}, 127")
    def mapAo(dst):
        if pair & 1:
            e(f"s_and_b32 s{dst}, s2, 7"); e(f"s_xor_b32 s{dst}, s{dst}, 4"); e(f"s_lshl_b32 s{dst}, s{dst}, 4"); e("s_lshr_b32 s6, s2, 3"); e(f"s_add_u32 s{dst}, s{dst}, s6")
        else:
            e("s_bfe_u32 s6, s2, 0x10002"); e(f"s_lshl_b32 s{dst}, s6, 1"); e(f"s_add_u32 s{dst}, s{dst}, s2"); e(f"s_add_u32 s{dst}, s{dst}, 1")
            e(f"s_and_b32 s{dst}, s{dst}, 3"); e(f"s_lshl_b32 s{dst}, s{dst}, 4"); e("s_lshr_b32 s7, s2, 3"); e(f"s_add_u32 s{dst}, s{dst}, s7")
            e(f"s_lshl_b32 s{dst}, s{dst}, 1"); e(f"s_add_u32 s{dst}, s{dst}, s6")
    def mapB(dst):
        e("s_sub_u32 s6, s2, 128"); e(f"s_and_b32 s{dst}, s6, 7"); e(f"s_mul_i32 s{dst}, s{dst}, 14"); e("s_lshr_b32 s6, s6, 3"); e(f"s_add_u32 s{dst}, s{dst}, s6")
    JT = [1, 2, 3, 0, 3, 0, 1, 2]
    JTAB = sum(j << (4 * x) for x, j in enumerate(JT))
    def mapBd(dst):
        if pair & 2:
            e(f"s_and_b32 s{dst}, s2, 7"); e(f"s_xor_b32 s{dst}, s{dst}, 4"); e(f"s_mul_i32 s{dst}, s{dst}, 14"); e("s_sub_u32 s6, s2, 128"); e("s_lshr_b32 s6, s6, 3"); e(f"s_add_u32 s{dst}, s{dst}, s6")
        else:
            e("s_and_b32 s6, s2, 7"); e("s_lshl_b32 s6, s6, 2"); e(f"s_lshr_b32 s{dst}, {JTAB:#x}, s6"); e(f"s_and_b32 s{dst}, s{dst}, 3")
            e(f"s_mul_i32 s{dst}, s{dst}, 14"); e("s_sub_u32 s7, s2, 128"); e("s_lshr_b32 s7, s7, 3"); e(f"s_add_u32 s{dst}, s{dst}, s7")
            e(f"s_lshl_b32 s{dst}, s{dst}, 1"); e("s_bfe_u32 s6, s2, 0x10002"); e(f"s_add_u32 s{dst}, s{dst}, s6")
    def mapC(dst):
        e(f"s_and_b32 s{dst}, s2, 7"); e(f"s_xor_b32 s{dst}, s{dst}, 4"); e(f"s_lshl_b32 s{dst}, s{dst}, 1"); e("s_bfe_u32 s6, s2, 0x10003"); e(f"s_add_u32 s{dst}, s{dst}, s6")
    def ws_srd():
        e("s_mov_b32 s36, s38"); e("s_mov_b32 s37, s39"); e(f"s_mov_b32 s38, {wssize:#x}"); e("s_mov_b32 s39, 0x20000")
    def epoch():
        e(f"buffer_load_dword v124, off, {WS}, 0 offset:{WS_E} sc1")
    def oo_addr(dst, isA):
        e("v_and_b32 v9, 3, v0")
        if isA:
            e("v_lshlrev_b32 v9, 3, v9"); e("v_and_b32 v10, 48, v0"); e("v_lshl_add_u32 v9, v10, 2, v9")
            e(f"s_and_b32 s6, s{S_WAVE}, 1"); e("s_lshl_b32 s6, s6, 5"); e(f"s_and_b32 s7, s{S_WAVE}, 2"); e("s_lshl_b32 s7, s7, 1"); e("s_add_u32 s6, s6, s7")
        else:
            e("v_lshlrev_b32 v9, 2, v9"); e("v_and_b32 v10, 16, v0"); e("v_lshl_add_u32 v9, v10, 3, v9"); e("v_and_b32 v10, 32, v0"); e("v_lshl_add_u32 v9, v10, 1, v9")
            e(f"s_lshl_b32 s6, s{S_WAVE}, 4")
        e(f"v_add_u32 v{dst}, s6, v9")

    if diag or probe: e("s_memrealtime s[98:99]")
    if probe: e("s_mov_b32 s96, 0")
    e(f"s_cmp_ge_u32 s2, {grid}"); e("s_cbranch_scc1 L_end")
    e("s_load_dwordx16 s[16:31], s[0:1], 0"); e("s_load_dwordx8 s[32:39], s[0:1], 64")
    e("v_lshrrev_b32 v1, 6, v0"); e("v_and_b32 v0, 63, v0")
    e(f"v_readfirstlane_b32 s{S_WAVE}, v1")
    e("s_mov_b32 s43, 0x20000")
    e("v_lshrrev_b32 v2, 4, v0"); e("v_and_b32 v3, 15, v0")
    if grid > 240: e("s_cmp_ge_u32 s2, 240"); e("s_cbranch_scc1 L_C")
    e(f"s_cmp_lt_u32 s{S_WAVE}, 4"); e("s_cbranch_scc1 L_X")

    e("s_setprio 3")
    e("v_lshlrev_b32 v1, 5, v0")
    e(f"s_lshl_b32 s9, s{S_WAVE}, 9"); e("s_sub_u32 s9, s9, 2048"); e("v_lshlrev_b32 v9, 3, v0")
    e("s_mov_b32 s42, 2048")
    e("s_waitcnt lgkmcnt(0)")
    e("s_mov_b32 s40, s16"); e("s_mov_b32 s41, s17")
    e("buffer_load_dwordx4 v[112:115], v1, s[40:43], 0 offen")
    e("buffer_load_dwordx4 v[116:119], v1, s[40:43], 0 offen offset:16")
    e("buffer_load_dwordx2 v[110:111], v9, s[40:43], s9 offen")
    ws_srd(); epoch()
    e("s_branch L_Y")

    g.label("L_X")
    e("s_cmp_ge_u32 s2, 128"); e("s_cbranch_scc1 L_BX")
    mapA(5); mapAq(59, 5)
    e("v_lshlrev_b32 v1, 17, v2"); e("v_lshl_add_u32 v1, v3, 4, v1")
    e("s_and_b32 s6, s59, 7"); e("s_lshl_b32 s6, s6, 1"); e(f"s_lshr_b32 s7, s{S_WAVE}, 1"); e("s_add_u32 s6, s6, s7")
    e("s_lshr_b32 s57, s59, 3"); e("s_lshl_b32 s57, s57, 1"); e(f"s_and_b32 s7, s{S_WAVE}, 1"); e("s_add_u32 s57, s57, s7")
    e("s_lshl_b32 s8, s6, 19"); e("s_lshl_b32 s7, s57, 8"); e("s_add_u32 s8, s8, s7")
    e("s_lshl_b32 s9, s6, 8")
    e("s_mov_b32 s42, 0x800000")
    e("s_waitcnt lgkmcnt(0)")
    e("s_mov_b32 s40, s22"); e("s_mov_b32 s41, s23")
    def issue_A(k):
        if k < 16:
            e(f"buffer_load_dwordx4 v[{V_W+4*k}:{V_W+4*k+3}], v1, s[40:43], s8 offen{NT}")
            if k < 15: e(f"s_add_u32 s8, s8, {8*8192}" if k % 2 == 0 else f"s_sub_u32 s8, s8, {7*8192}")
        else:
            isK = k < 24; late = k >= 24 + JV
            e(f"s_add_u32 m0, s50, s{58 if isK else 51}")
            e(f"s_add_u32 s49, s50, s{52 if late else 56}")
            e(f"buffer_load_dwordx4 v{121 if isK or late else 122}, {'s[44:47]' if isK else 's[60:63]'}, s49 offen{NT} lds")
            if k < 31: e("s_add_u32 s50, s50, 4096"); e("s_and_b32 s50, s50, 0x7000")
    for k in range(WA): issue_A(k)
    g.label("L_AX2")
    ws_srd(); epoch()
    e("s_setprio 3")
    g.note(0, 98)
    e("v_lshrrev_b32 v9, 3, v0"); e("v_lshl_add_u32 v120, v9, 5, s9")
    masks(g)
    g.srd(44, 18, 67108864); g.srd(60, 20, 67108864)
    e("s_lshr_b32 s56, s5, 5"); e(f"s_mul_i32 s50, s56, {rotg*4096}"); e("s_and_b32 s50, s50, 0x7000")
    e("s_lshl_b32 s56, s56, 24"); e("s_and_b32 s7, s5, 31"); e("s_lshl_b32 s7, s7, 15"); e("s_add_u32 s56, s56, s7")
    e(f"s_lshl_b32 s7, s{S_WAVE}, 10"); e("s_add_u32 s56, s56, s7"); e(f"s_add_u32 s56, s56, {61440*256}")
    e(f"s_add_u32 s58, s7, {L_K}"); e(f"s_add_u32 s51, s7, {L_V}")
    e(f"s_lshl_b32 s7, s{S_WAVE}, 2"); e("v_add_u32 v9, s7, v2")
    e("v_xor_b32 v10, v9, v3"); e("v_lshlrev_b32 v10, 4, v10"); e("v_lshl_add_u32 v121, v2, 8, v10")
    e("v_and_b32 v9, 7, v9"); e("v_lshlrev_b32 v10, 1, v9"); e("v_xor_b32 v10, v10, v3"); e("v_lshlrev_b32 v10, 4, v10")
    e("v_lshl_add_u32 v122, v2, 8, v10")
    e("s_lshr_b32 s6, s57, 3"); e("s_lshl_b32 s6, s6, 15"); e("s_and_b32 s57, s57, 7"); e("s_lshl_b32 s57, s57, 9"); e("s_add_u32 s57, s57, s6")
    e("s_and_b32 s6, s59, 7"); e("s_lshl_b32 s6, s6, 12"); e("s_add_u32 s57, s57, s6"); e(f"s_add_u32 s57, s57, {WS_QP}")
    e("v_lshlrev_b32 v125, 4, v0")
    e(f"s_lshl_b32 s6, s{S_WAVE}, 9"); e("v_add_u32 v126, s6, v125"); e("v_xor_b32 v127, 0x400, v126")
    def pos(k): return k if k < WA else k + 1
    nis = WA
    PRE = min(32, WA + PREA)
    role("AX")
    while nis < PRE:
        e(f"s_waitcnt vmcnt({WA-1})"); issue_A(nis); nis += 1; tr(nis - WA)
    e("s_barrier")
    for i in range(2):
        e(f"ds_read_b128 v[{V_XX+4*i}:{V_XX+4*i+3}], v120 offset:{L_XN + 16*i}")
    e("s_waitcnt lgkmcnt(1)")
    sel_half(g, 0, 0); sel_half(g, 0, 1)
    for i in range(16):
        if i == 4: e("s_waitcnt lgkmcnt(0)")
        gemv_pre(g, i, 16)
        e(f"s_waitcnt vmcnt({pos(nis-1) - pos(i)})")
        while nis < i + 1 + (WA if nis < 16 else WA2) and nis < 24 + JV:
            issue_A(nis); nis += 1
        gemv_mfma(g, i, V_W + 4 * i)
        if i + 1 > PRE - WA: tr(i + 1)
        if i == 14: make_tag(g)
    g.stamp(3)
    e(f"s_and_b32 s6, s{S_WAVE}, 1"); e("s_lshl_b32 s6, s6, 2"); e("v_mov_b32 v9, s6"); e("v_mov_b32 v10, 1")
    gemv_fin(g, 4)
    e(f"ds_write_b128 v126, v[{V_ACC}:{V_ACC+3}] offset:{L_RED}")
    e("s_mov_b32 exec_lo, 1")
    e(f"ds_add_rtn_u32 v10, v9, v10 offset:{L_CNT}")
    e("s_mov_b32 exec_lo, -1")
    e(f"ds_read_b128 v[24:27], v127 offset:{L_RED}")
    e("s_waitcnt lgkmcnt(1)")
    e("v_readfirstlane_b32 s6, v10")
    skip = g.newlab("Lnl")
    e("s_cmp_eq_u32 s6, 0"); e(f"s_cbranch_scc1 {skip}")
    e("s_waitcnt lgkmcnt(0)")
    for r in range(0, 4, 2): e(f"v_pk_add_f32 v[{20+r}:{21+r}], v[{20+r}:{21+r}], v[{24+r}:{25+r}]")
    tagput(g, V_ACC)
    if not dbg & 16 and not nost & 1: e(f"buffer_store_dwordx4 v[{V_ACC}:{V_ACC+3}], v125, {WS}, s57 offen {ST}")
    g.label(skip)
    e("s_mov_b64 exec, -1")
    while nis < 24 + JV:
        e(f"s_waitcnt vmcnt({WA2-1})"); issue_A(nis); nis += 1; tr(nis - WA2)
    e("v_mov_b32 v121, v122"); e("s_mov_b32 s52, s56")

    def att_pre():
        e("v_lshrrev_b32 v2, 4, v0"); e("v_and_b32 v3, 15, v0")
        e("v_xor_b32 v10, v2, v3"); e("v_lshlrev_b32 v10, 4, v10"); e("v_lshl_add_u32 v1, v3, 8, v10")
        e(f"s_lshl_b32 s6, s{S_WAVE}, 12")
        for s in range(4):
            e(f"v_xor_b32 v10, {64*s}, v1"); e(f"v_add_u32 v{43+4*s}, s6, v10")
        e("v_lshrrev_b32 v1, 2, v0"); e("v_and_b32 v9, 7, v1"); e(f"v_xor_b32 v9, s{S_WAVE}, v9"); e("v_lshlrev_b32 v9, 5, v9")
        e("v_and_b32 v10, 3, v0"); e("v_lshl_add_u32 v9, v10, 3, v9"); e("v_lshl_add_u32 v9, v1, 8, v9"); e(f"v_add_u32 v122, {L_V}, v9")
        e("v_and_b32 v1, 7, v0"); e("v_mul_u32_u24 v123, 272, v1"); e("v_lshl_add_u32 v123, v2, 4, v123")
        e("v_lshlrev_b32 v124, 2, v3")
        e(f"s_lshr_b32 s6, s{S_WAVE}, 1"); e("s_lshl_b32 s6, s6, 10"); e(f"s_and_b32 s7, s{S_WAVE}, 1"); e("s_lshl_b32 s7, s7, 3"); e("s_add_u32 s6, s6, s7")
        e("v_lshlrev_b32 v125, 4, v0"); e("v_add_u32 v126, s6, v125")
        e("v_lshlrev_b32 v127, 4, v3"); e("v_lshl_add_u32 v127, v2, 7, v127")
        e(f"s_mul_i32 s58, s5, {OS}"); e(f"s_lshl_b32 s7, s{S_WAVE}, 9"); e("s_add_u32 s58, s58, s7"); e(f"s_add_u32 s58, s58, {WS_OP}")
        e("v_mov_b32 v12, 0x3f803f80"); e("v_mov_b32 v13, v12"); e("v_mov_b32 v14, v12"); e("v_mov_b32 v15, v12")
        e("s_lshr_b32 s9, s5, 5"); e("s_lshl_b32 s9, s9, 15"); e("s_add_u32 s9, s9, s7"); e(f"s_add_u32 s9, s9, {WS_QP}")
        e("s_add_u32 s56, s9, 8192")
        e("v_lshrrev_b32 v9, 5, v0"); e("v_and_b32 v10, 31, v0"); e("v_lshlrev_b32 v16, 12, v9"); e("v_lshl_add_u32 v16, v10, 4, v16")
        e("v_add_u32 v17, 16384, v16")
        e(f"s_mul_i32 s6, s{S_WAVE}, 272"); e("v_lshlrev_b32 v18, 4, v3"); e("v_lshl_add_u32 v18, v9, 2, v18"); e("v_and_b32 v10, 1, v2")
        e("v_lshl_add_u32 v18, v10, 3, v18"); e("v_add_u32 v18, s6, v18")
    att_pre()
    if trace:
        for k in range(WA2 - 1, QW - 1, -1): e(f"s_waitcnt vmcnt({k})"); tr(24 + JV - k)
    e(f"s_waitcnt vmcnt({QW}) lgkmcnt(0)")
    g.label("L_att")
    e("s_barrier")
    g.stamp(1)
    def yload(k):
        e(f"buffer_load_dwordx4 v[{V_W+4*k}:{V_W+4*k+3}], v120, s[40:43], s8 offen{NT}")
        if k < 15: e("s_add_u32 s8, s8, 8192" if k % 4 != 3 else "s_add_u32 s8, s8, s57")
    ny = [0]
    def yissue(n):
        if not n: return
        lx = g.newlab("Lxp")
        e(f"s_cmp_lt_u32 s{S_WAVE}, 4"); e(f"s_cbranch_scc1 {lx}")
        for k in range(ny[0], ny[0] + n): yload(k)
        ny[0] += n
        g.label(lx)
    nq = 0 if dbg & 1 else 4
    def q_load(i):
        if nq: e(f"buffer_load_dwordx4 v[{24+4*i}:{27+4*i}], v{16 + (i >> 1)}, {WS}, {'s56' if i & 1 else 's9'} offen {LD}")
    def k_reads():
        for s in range(4): e(f"ds_read_b128 v[{40+4*s}:{43+4*s}], v{43+4*s} offset:{L_K}")
    def v_reads():
        for sg in range(4):
            for u in range(2):
                e(f"ds_read_b64_tr_b16 v[{104+4*sg+2*u}:{105+4*sg+2*u}], v122 offset:{8192*sg + 4096*u}")
    def v_wait():
        lx = g.newlab("Lxv")
        e(f"s_cmp_ge_u32 s{S_WAVE}, 4"); e(f"s_cbranch_scc1 {lx}")
        e("s_waitcnt vmcnt(0)")
        g.label(lx)
    def q_first():
        e("s_barrier")
        lx = g.newlab("Lxp"); ly = g.newlab("Lxq")
        e(f"s_cmp_lt_u32 s{S_WAVE}, 4"); e(f"s_cbranch_scc1 {lx}")
        for k in range(npe): yload(k)
        ny[0] = npe
        if KE: k_reads()
        e(f"s_waitcnt vmcnt({npe})")
        e(f"s_branch {ly}")
        g.label(lx)
        for k in range(24 + JV, 32): issue_A(k)
        if KE: k_reads()
        e(f"s_waitcnt vmcnt({8 - JV})")
        g.label(ly)
        yissue(nv)
    mpoll(g, 4, q_load, lambda i, dst: tagchk1(g, 24 + 4 * i, dst), 16, first=q_first, noretry=bool(dbg & 33))
    g.note(11, 7)
    g.stamp(2)
    for st in (8, 4):
        for r in range(0, st, 2): e(f"v_pk_add_f32 v[{24+r}:{25+r}], v[{24+r}:{25+r}], v[{24+st+r}:{25+st+r}]")
    g.nop(2)
    e("v_permlane32_swap_b32 v24, v26"); e("v_permlane32_swap_b32 v25, v27"); g.nop(1)
    e("v_pk_add_f32 v[24:25], v[24:25], v[26:27]")
    e("v_cvt_pk_bf16_f32 v24, v24, v25")
    e(f"ds_write_b32 v18, v24 offset:{L_Q}")
    yissue(NQ)
    e("s_waitcnt lgkmcnt(0)")
    e("s_barrier")
    g.stamp(5)
    if not KE: k_reads()
    for s in range(4):
        e(f"ds_read_b128 v[{24+4*s}:{27+4*s}], v123 offset:{L_Q + 64*s}")
    e("s_mov_b32 s6, 0x3db504f3")
    e("s_mov_b32 s7, 0x3fb8aa3b")
    for s in range(4):
        e(f"s_waitcnt lgkmcnt({3 - s})")
        c = "0" if s == 0 else "v[20:23]"
        e(f"v_mfma_f32_16x16x32_bf16 v[20:23], v[{40+4*s}:{43+4*s}], v[{24+4*s}:{27+4*s}], {c}")
    g.nop(8)
    e("v_max3_f32 v11, v20, v21, v22"); e("v_cvt_pk_bf16_f32 v9, v20, v21"); e("v_max_f32 v11, v11, v23")
    e(f"ds_max_f32 v124, v11 offset:{L_M}")
    e("v_cvt_pk_bf16_f32 v10, v22, v23")
    e("v_lshlrev_b32 v20, 16, v9"); e("v_and_b32 v21, 0xffff0000, v9"); e("v_lshlrev_b32 v22, 16, v10"); e("v_and_b32 v23, 0xffff0000, v10")
    for i in range(4): e(f"v_mul_f32 v{20+i}, s6, v{20+i}")
    yissue(nm)
    if vb == 1: v_wait()
    e("s_waitcnt lgkmcnt(0)")
    e("s_barrier")
    e(f"ds_read_b32 v11, v124 offset:{L_M}")
    if vb == 1: v_reads()
    e("v_cvt_pk_bf16_f32 v9, v20, v21"); e("v_cvt_pk_bf16_f32 v10, v22, v23")
    e("v_lshlrev_b32 v20, 16, v9"); e("v_and_b32 v21, 0xffff0000, v9"); e("v_lshlrev_b32 v22, 16, v10"); e("v_and_b32 v23, 0xffff0000, v10")
    e(f"s_waitcnt lgkmcnt({8 if vb == 1 else 0})")
    e("v_cvt_pk_bf16_f32 v11, v11, v11"); e("v_lshlrev_b32 v11, 16, v11"); e("v_mul_f32 v11, s6, v11")
    e("v_cvt_pk_bf16_f32 v11, v11, v11"); e("v_lshlrev_b32 v11, 16, v11")
    e("v_mul_f32 v11, s7, v11")
    for i in range(4): e(f"v_fma_f32 v{20+i}, v{20+i}, s7, -v11")
    for i in range(4): e(f"v_exp_f32 v{20+i}, v{20+i}")
    e("v_cvt_pk_bf16_f32 v20, v20, v21"); e("v_cvt_pk_bf16_f32 v21, v22, v23")
    e(f"ds_write_b64 v126, v[20:21] offset:{L_P}")
    yissue(np_)
    g.stamp(13)
    if vb == 2: v_wait()
    e("s_waitcnt lgkmcnt(0)")
    e("s_barrier")
    g.stamp(14)
    for sg in range(4):
        e(f"ds_read_b128 v[{40+4*sg}:{43+4*sg}], v125 offset:{L_P + 1024*sg}")
        if vb == 2:
            for u in range(2):
                e(f"ds_read_b64_tr_b16 v[{104+4*sg+2*u}:{105+4*sg+2*u}], v122 offset:{8192*sg + 4096*u}")
    e(f"v_mov_b32 v23, s{S_T[0]}")
    for sg in range(4):
        e(f"s_waitcnt lgkmcnt({(3 - sg) * (3 if vb == 2 else 1)})")
        e(f"v_mfma_f32_16x16x32_bf16 v[24:27], v[12:15], v[{40+4*sg}:{43+4*sg}], " + ("0" if sg == 0 else "v[24:27]"))
        e(f"v_mfma_f32_16x16x32_bf16 v[16:19], v[{104+4*sg}:{107+4*sg}], v[{40+4*sg}:{43+4*sg}], " + ("0" if sg == 0 else "v[16:19]"))
    e("s_mov_b32 exec_lo, 0x00ff00ff"); e("s_mov_b32 exec_hi, 0x00ff00ff")
    g.nop(5)
    e("v_rcp_f32 v9, v24"); e("v_log_f32 v10, v24")
    for r in range(4): e(f"v_mul_f32 v{16+r}, v9, v{16+r}")
    e("v_add_f32 v22, v11, v10")
    e("v_cvt_pk_bf16_f32 v20, v16, v17"); e("v_cvt_pk_bf16_f32 v21, v18, v19")
    if not dbg & 16 and not nost & 2: e(f"buffer_store_dwordx4 v[20:23], v127, {WS}, s58 offen {ST}")
    e("s_mov_b64 exec, -1")
    g.stamp(7)
    e(f"s_cmp_ge_u32 s{S_WAVE}, 4"); e("s_cbranch_scc1 L_YA2")
    mapAo(5)
    e("s_lshr_b32 s8, s5, 5"); e(f"s_mul_i32 s8, s8, {32*OS}"); e("s_bfe_u32 s6, s5, 0x30002"); e("s_lshl_b32 s6, s6, 9"); e("s_add_u32 s8, s8, s6")
    e("s_bfe_u32 s6, s5, 0x10001"); e("s_lshl_b32 s6, s6, 6"); e("s_add_u32 s8, s8, s6"); e(f"s_lshl_b32 s6, s{S_WAVE}, 7"); e("s_add_u32 s8, s8, s6")
    e(f"s_add_u32 s8, s8, {WS_OP}"); e(f"s_add_u32 s9, s8, {16*OS}")
    e("v_lshrrev_b32 v125, 2, v0"); e(f"v_mul_u32_u24 v125, {OS}, v125"); e("v_and_b32 v9, 3, v0"); e("v_lshl_add_u32 v125, v9, 4, v125")
    oo_addr(2, True)
    e("s_mov_b64 s[44:45], -1"); e("s_mov_b64 s[46:47], -1"); e(f"s_mov_b32 s7, {SPIN + 1}")
    if ackw & 1: e("s_waitcnt vmcnt(0)")
    g.stamp(6)
    def o_load(i):
        if not dbg & 2: e(f"buffer_load_dwordx4 v[{24+4*i}:{27+4*i}], v125, {WS}, s{8+i} offen {LD}")
    def o_check(i, dst): e(f"v_cmp_ne_u32 {dst}, s{S_T[0]}, v{27+4*i}")
    ipoll(g, 2, o_load, o_check, 44, noretry=bool(dbg & 34))
    g.note(12, 7)
    g.stamp(8)
    e("v_max_f32 v16, v26, v30")
    e("v_lshlrev_b32 v32, 16, v24"); e("v_and_b32 v33, 0xffff0000, v24")
    e("v_max_f32_dpp v16, v16, v16 row_ror:4 row_mask:0xf bank_mask:0xf")
    e("v_lshlrev_b32 v34, 16, v25"); e("v_and_b32 v35, 0xffff0000, v25")
    e("v_max_f32_dpp v16, v16, v16 row_ror:8 row_mask:0xf bank_mask:0xf")
    e("v_mov_b32 v9, v16")
    e("v_lshlrev_b32 v40, 16, v28"); e("v_and_b32 v41, 0xffff0000, v28")
    e("v_permlane16_swap_b32 v9, v16")
    g.nop(1)
    e("v_max_f32 v16, v9, v16")
    e("v_mov_b32 v9, v16")
    e("v_lshlrev_b32 v42, 16, v29"); e("v_and_b32 v43, 0xffff0000, v29")
    e("v_permlane32_swap_b32 v9, v16"); g.nop(1); e("v_max_f32 v16, v9, v16")
    e("v_sub_f32 v26, v26, v16"); e("v_sub_f32 v30, v30, v16")
    e("v_exp_f32 v26, v26"); e("v_exp_f32 v30, v30"); g.nop(1)
    e("v_add_f32 v36, v26, v30")
    for r in range(4): e(f"v_mul_f32 v{32+r}, v26, v{32+r}")
    for r in range(4): e(f"v_fmac_f32 v{32+r}, v30, v{40+r}")
    e("v_mov_b32 v37, v36"); g.nop(1)
    e("v_permlane32_swap_b32 v32, v34"); e("v_permlane32_swap_b32 v33, v35"); e("v_permlane32_swap_b32 v37, v36")
    e("v_add_f32 v32, v32, v34"); e("v_add_f32 v33, v33, v35"); e("v_add_f32 v36, v36, v37")
    e("v_mov_b32 v37, v36"); g.nop(1)
    e("v_permlane16_swap_b32 v32, v33"); e("v_permlane16_swap_b32 v37, v36"); g.nop(1)
    e("v_add_f32 v32, v32, v33"); e("v_add_f32 v36, v36, v37")
    for ror in (4, 8):
        g.nop(1)
        for r in (32, 36): e(f"v_add_f32_dpp v{r}, v{r}, v{r} row_ror:{ror} row_mask:0xf bank_mask:0xf")
    e("v_rcp_f32 v36, v36"); g.nop(1)
    e("v_mul_f32 v32, v36, v32")
    g.label("L_oo")
    e("v_cvt_pk_bf16_f32 v32, v32, v32")
    e(f"ds_write_b32 v2, v32 offset:{L_OO}")
    e("s_waitcnt lgkmcnt(0)")
    e("s_barrier")
    g.stamp(9)
    e("s_branch L_R")

    g.label("L_BX")
    mapB(5)
    e(f"s_mov_b32 s6, {32*7168}"); e("v_mul_lo_u32 v1, v2, s6"); e("v_lshl_add_u32 v1, v3, 4, v1")
    e("s_bfe_u32 s9, s5, 0x30001")
    e(f"s_mul_i32 s8, s9, {128*7168}"); e("s_lshr_b32 s7, s5, 4"); e("s_lshl_b32 s7, s7, 2"); e(f"s_add_u32 s7, s7, s{S_WAVE}")
    e("s_lshl_b32 s56, s7, 9")
    e("s_lshl_b32 s7, s7, 8"); e("s_add_u32 s8, s8, s7")
    e("s_mov_b32 s42, 7340032")
    e("s_and_b32 s6, s5, 1"); e("s_cmp_eq_u32 s6, 0")
    e("s_waitcnt lgkmcnt(0)")
    e("s_cselect_b32 s40, s28, s30"); e("s_cselect_b32 s41, s29, s31")
    def issue_B(k):
        r = V_W + 4 * (k & 15)
        e(f"buffer_load_dwordx4 v[{r}:{r+3}], v1, s[40:43], s8 offen{NT}")
        if k < 31: e(f"s_add_u32 s8, s8, {16*7168}" if k % 2 == 0 else f"s_sub_u32 s8, s8, {15*7168}")
    for k in range(WB1): issue_B(k)
    g.label("L_BX2")
    ws_srd(); epoch()
    e("s_setprio 3")
    g.note(0, 98)
    e("s_lshl_b32 s7, s9, 9"); e("v_lshrrev_b32 v9, 3, v0"); e("v_lshl_add_u32 v120, v9, 6, s7")
    masks(g)
    e("s_lshl_b32 s6, s6, 3"); e("s_add_u32 s6, s6, s9"); e(f"s_mul_i32 s6, s6, {GS}"); e("s_add_u32 s56, s56, s6"); e(f"s_add_u32 s56, s56, {WS_GP}")
    e("v_lshlrev_b32 v121, 4, v0")
    e("v_lshrrev_b32 v122, 2, v0"); e(f"v_mul_u32_u24 v122, {GS}, v122"); e("v_and_b32 v9, 3, v0"); e("v_lshl_add_u32 v122, v9, 4, v122")
    mapBd(9)
    e("s_bfe_u32 s6, s9, 0x10001"); e("s_lshl_b32 s6, s6, 7"); e("s_lshr_b32 s9, s9, 2"); e("s_lshl_b32 s9, s9, 9"); e("s_add_u32 s9, s9, s6")
    e(f"s_and_b32 s6, s{S_WAVE}, 2"); e("s_lshl_b32 s6, s6, 7"); e("s_add_u32 s9, s9, s6"); e(f"s_and_b32 s6, s{S_WAVE}, 1"); e("s_lshl_b32 s6, s6, 6"); e("s_add_u32 s9, s9, s6")
    e(f"s_add_u32 s9, s9, {WS_GP}")
    oo_addr(2, False)
    def posb(k): return k if k < WB1 else k + 1
    nis = WB1
    PRE = min(15, WB1 + PREB)
    role("BX")
    while nis < PRE:
        e(f"s_waitcnt vmcnt({WB1-1})"); issue_B(nis); nis += 1; tr(nis - WB1)
    e("s_barrier")
    for i in range(4):
        e(f"ds_read_b128 v[{V_XX+4*i}:{V_XX+4*i+3}], v120 offset:{L_XN + 16*i}")
    e("s_waitcnt lgkmcnt(3)")
    sel_half(g, 0, 0); sel_half(g, 0, 1)
    b2done = False
    for i in range(32):
        if i == 4: e("s_waitcnt lgkmcnt(0)")
        gemv_pre(g, i, 32)
        e(f"s_waitcnt vmcnt({posb(nis-1) - posb(i)})")
        W = WB1 if i < WBsw else (WB2 if i < WBsw3 else WB3)
        while nis < 32 and nis < i + 1 + W:
            issue_B(nis); nis += 1
        if nis == 32 and not b2done and 31 - i <= HB:
            e("s_barrier"); b2done = True
        gemv_mfma(g, i, V_W + 4 * (i & 15))
        if i + 1 > PRE - WB1: tr(i + 1)
        if i == 20: make_tag(g)
    g.stamp(3)
    gemv_fin(g)
    tagput(g, V_ACC)
    if not dbg & 16 and not nost & 4: e(f"buffer_store_dwordx4 v[20:23], v121, {WS}, s56 offen {ST}")
    e("s_mov_b64 exec, -1")
    if not b2done: e("s_barrier")
    e("s_mov_b64 s[44:45], -1"); e(f"s_mov_b32 s7, {SPIN + 1}")
    if ackw & 2: e("s_waitcnt vmcnt(0)")
    g.stamp(6)
    def h_load(i):
        if not dbg & 4: e(f"buffer_load_dwordx4 v[28:31], v122, {WS}, s9 offen {LD}")
    ipoll(g, 1, h_load, lambda i, dst: tagchk1(g, 28, dst), 44, noretry=bool(dbg & 36))
    g.note(11, 7)
    g.stamp(5)
    e("v_permlane16_swap_b32 v28, v30"); e("v_permlane16_swap_b32 v29, v31"); g.nop(1)
    e("v_add_f32 v28, v28, v30"); e("v_add_f32 v29, v29, v31")
    for ror in (4, 8):
        g.nop(1)
        for r in (28, 29): e(f"v_add_f32_dpp v{r}, v{r}, v{r} row_ror:{ror} row_mask:0xf bank_mask:0xf")
    g.nop(2)
    e("v_permlane32_swap_b32 v28, v29")
    g.nop(1)
    e("v_cvt_pk_bf16_f32 v28, v28, v29")
    e("v_lshlrev_b32 v32, 16, v28"); e("v_mul_f32 v32, 0xbfb8aa3b, v32"); e("v_exp_f32 v32, v32")
    e("v_and_b32 v29, 0xffff0000, v28")
    e("v_add_f32 v32, 1.0, v32"); e("v_rcp_f32 v32, v32"); g.nop(1)
    e("v_cvt_pk_bf16_f32 v32, v32, v32"); e("v_lshlrev_b32 v32, 16, v32")
    e("v_mul_f32 v32, v32, v29")
    e("s_branch L_oo")

    g.label("L_Y")
    g.note(0, 98)
    e("s_lshl_b32 s9, s9, 1"); e("v_lshl_add_u32 v122, v0, 4, s9")
    e("v_mov_b32 v9, 0"); e("v_mov_b32 v44, 0"); e("v_mov_b32 v45, 0"); e("v_mov_b32 v46, 0"); e("v_mov_b32 v47, 0")
    e(f"ds_write_b128 v9, v[44:47] offset:{L_CNT}")
    e("v_lshlrev_b32 v10, 2, v3"); e("v_mov_b32 v11, 0xff800000"); e(f"ds_write_b32 v10, v11 offset:{L_M}")
    e("v_lshlrev_b32 v120, 11, v2"); e("v_lshl_add_u32 v120, v3, 4, v120")
    e("v_lshrrev_b32 v121, 2, v0"); e(f"v_mul_u32_u24 v121, {RS}, v121"); e("v_and_b32 v10, 3, v0"); e("v_lshl_add_u32 v121, v10, 4, v121")
    e("v_mov_b32 v12, 0x3f803f80"); e("v_mov_b32 v10, 0"); e("v_mov_b32 v11, 0x3a800000")
    e("s_waitcnt vmcnt(1)")
    layernorm(g, 112, 110)
    e(f"ds_write_b128 v122, v[24:27] offset:{L_XN}")
    e("s_waitcnt lgkmcnt(0) vmcnt(0)")
    g.stamp(6)
    e("s_barrier")
    make_tag(g)
    masks(g)
    def ysetup(pbase):
        e("s_lshr_b32 s9, s5, 1")
        if pbase == 0:
            e("s_lshr_b32 s8, s5, 5"); e("s_lshl_b32 s8, s8, 21"); e("s_bfe_u32 s6, s5, 0x10001"); e("s_lshl_b32 s6, s6, 20"); e("s_add_u32 s8, s8, s6")
            e("s_bfe_u32 s6, s5, 0x30002"); e("s_lshl_b32 s6, s6, 15"); e("s_add_u32 s8, s8, s6"); e(f"s_mov_b32 s57, {116*2048}")
        else:
            e("s_lshl_b32 s8, s9, 17"); e("s_movk_i32 s57, 8192")
        e("s_and_b32 s6, s5, 1"); e("s_lshl_b32 s6, s6, 2")
        e(f"s_add_u32 s6, s6, s{S_WAVE}"); e("s_sub_u32 s6, s6, 4")
        e("s_lshl_b32 s7, s6, 8"); e("s_add_u32 s8, s8, s7")
        e(f"s_mul_i32 s59, s6, {8*RS}"); e(f"s_mul_i32 s9, s9, {PS}"); e("s_add_u32 s59, s59, s9"); e(f"s_add_u32 s59, s59, {WS_SP + pbase*PS}")
    e("s_cmp_ge_u32 s2, 128"); e("s_cbranch_scc1 L_YB2")
    mapAo(5); ysetup(0)
    e("s_mov_b32 s40, s24"); e("s_mov_b32 s41, s25"); e("s_mov_b32 s42, 0x800000")
    mapA(5)
    att_pre()
    e("s_branch L_att")
    def ystream(k0, W1, N1, W2, gate):
        for k in range(k0, 16):
            if gate and k == max(N1, k0): e("s_barrier")
            W = W1 if k < N1 else W2
            if k >= W: e(f"s_waitcnt vmcnt({W-1})")
            yload(k)
            if k >= W: tr(k + 1 - W)
        if gate and max(N1, k0) >= 16: e("s_barrier")
        if trace:
            for k in range(min(W, 16) - 1, -1, -1): e(f"s_waitcnt vmcnt({k})"); tr(16 - k)
    g.label("L_YB2")
    mapBd(5); ysetup(64)
    e("s_mov_b32 s40, s32"); e("s_mov_b32 s41, s33"); e("s_mov_b32 s42, 7340032")
    e("s_setprio 0")
    e("s_barrier")
    g.stamp(2)
    role("BY"); ystream(0, WYB, N1B, W2B, 0)
    e("s_branch L_YL3")
    g.label("L_YA2")
    e("s_setprio 0")
    role("AY"); ystream(NPRE, WYA, N1A, W2A, 0)
    g.label("L_YL3")
    g.stamp(3)
    e("v_and_b32 v9, 56, v0"); e("v_lshlrev_b32 v9, 2, v9")
    e("s_barrier")
    g.stamp(4)
    for i in range(2):
        e(f"ds_read_b128 v[{V_XX+4*i}:{V_XX+4*i+3}], v9 offset:{L_OO + 16*i}")
    e("s_waitcnt lgkmcnt(1)")
    sel_half(g, 0, 0); sel_half(g, 0, 1)
    for i in range(16):
        gemv_pre(g, i, 16)
        e(f"s_waitcnt vmcnt({15-i})" + (" lgkmcnt(0)" if i == 4 else ""))
        gemv_mfma(g, i, V_W + 4 * i)
    gemv_fin(g)
    tagput(g, V_ACC)
    if not dbg & 16 and not nost & 8: e(f"buffer_store_dwordx4 v[{V_ACC}:{V_ACC+3}], v121, {WS}, s59 offen {ST}")
    e("s_mov_b64 exec, -1")
    g.stamp(9)

    g.label("L_R")
    lo = 0 if rrole == 0 else 128
    e(f"s_sub_u32 s6, s2, {lo}"); e("s_cmp_ge_u32 s6, 64"); e("s_cbranch_scc1 L_fin")
    if dbg & 256: e("s_branch L_fin")
    e("s_setprio 3")
    e("s_lshr_b32 s7, s6, 3"); e("s_and_b32 s5, s6, 7"); e("s_xor_b32 s5, s5, 4"); e("s_lshl_b32 s5, s5, 3"); e("s_add_u32 s5, s5, s7")
    e(f"s_lshl_b32 s6, s{S_WAVE}, 4"); e(f"s_mul_i32 s7, s{S_WAVE}, 14"); e("s_add_u32 s7, s7, 8")
    e(f"s_cmp_lt_u32 s{S_WAVE}, 4"); e("s_cselect_b32 s6, s6, s7"); e("s_cselect_b32 s45, -1, 0x00ffffff"); e("s_mov_b32 s44, -1")
    e(f"s_mul_i32 s6, s6, {PS}"); e(f"s_mul_i32 s9, s5, {RS}"); e("s_add_u32 s9, s9, s6"); e(f"s_add_u32 s9, s9, {WS_SP}")
    e("v_lshrrev_b32 v122, 2, v0"); e(f"v_mul_u32_u24 v122, {PS}, v122"); e("v_and_b32 v9, 3, v0"); e("v_lshl_add_u32 v122, v9, 4, v122")
    for r in range(4): e(f"v_mov_b32 v{28+r}, 0")
    e("v_lshrrev_b32 v10, 4, v0"); e("v_lshl_add_u32 v9, v9, 2, v10"); e("v_mul_u32_u24 v120, 48, v9"); e(f"s_lshl_b32 s6, s{S_WAVE}, 2"); e("v_add_u32 v120, s6, v120")
    e("v_and_b32 v9, 15, v0"); e("v_mul_u32_u24 v121, 48, v9")
    e("v_and_b32 v10, 12, v0"); e("v_add_u32 v125, v9, v10"); e("v_lshlrev_b32 v125, 1, v125")
    g.srd(32, 34, 2048)
    lw = g.newlab("Lrw")
    e(f"s_cmp_lg_u32 s{S_WAVE}, 0"); e(f"s_cbranch_scc1 {lw}")
    e("s_load_dwordx2 s[48:49], s[0:1], 0")
    e("s_lshr_b32 s8, s5, 3"); e("s_lshl_b32 s8, s8, 8"); e("s_and_b32 s6, s5, 3"); e("s_lshl_b32 s6, s6, 6"); e("s_add_u32 s8, s8, s6")
    e("s_and_b32 s6, s5, 4"); e("s_lshl_b32 s6, s6, 1"); e("s_add_u32 s8, s8, s6")
    e("s_mov_b32 s50, 2048"); e("s_mov_b32 s51, 0x20000")
    e("s_waitcnt lgkmcnt(0)")
    e("buffer_load_ushort v126, v125, s[48:51], s8 offen")
    g.label(lw)
    e(f"s_mov_b32 s7, {SPIN + 1}")
    if rack: e("s_waitcnt vmcnt(0)")
    e("s_barrier")
    g.stamp(13)
    def r_load(i): e(f"buffer_load_dwordx4 v[28:31], v122, {WS}, s9 offen {LD}")
    ipoll(g, 1, r_load, lambda i, dst: tagchk1(g, 28, dst), 44, noretry=bool(dbg & 8))
    g.note(15, 7)
    g.stamp(14)
    e("v_permlane32_swap_b32 v28, v30"); e("v_permlane32_swap_b32 v29, v31"); g.nop(1)
    e("v_add_f32 v28, v28, v30"); e("v_add_f32 v29, v29, v31"); g.nop(2)
    e("v_permlane16_swap_b32 v28, v29"); g.nop(1)
    e("v_add_f32 v28, v28, v29")
    for ror in (4, 8):
        g.nop(2); e(f"v_add_f32_dpp v28, v28, v28 row_ror:{ror} row_mask:0xf bank_mask:0xf")
    e(f"ds_write_b32 v120, v28 offset:{L_RED}")
    e("s_waitcnt lgkmcnt(0)")
    e("s_barrier")
    e(f"s_cmp_lg_u32 s{S_WAVE}, 0"); e("s_cbranch_scc1 L_R3")
    e(f"ds_read_b128 v[28:31], v121 offset:{L_RED + 16}"); e(f"ds_read_b128 v[24:27], v121 offset:{L_RED}")
    e("v_lshlrev_b32 v126, 16, v126")
    e("s_waitcnt lgkmcnt(1)")
    e("v_add_f32 v28, v28, v29"); e("v_add_f32 v30, v30, v31"); e("v_add_f32 v28, v28, v30")
    e("v_cvt_pk_bf16_f32 v28, v28, v28"); e("v_lshlrev_b32 v28, 16, v28")
    e("v_mul_f32 v10, 0xbfb8aa3b, v28"); e("v_exp_f32 v10, v10")
    e("s_waitcnt lgkmcnt(0)")
    e("v_add_f32 v24, v24, v25"); e("v_add_f32 v10, 1.0, v10"); e("v_rcp_f32 v10, v10")
    e("v_add_f32 v26, v26, v27"); e("v_add_f32 v24, v24, v26")
    e("v_mul_f32 v10, v28, v10")
    e("v_cvt_pk_bf16_f32 v10, v10, v24")
    e("v_and_b32 v24, 0xffff0000, v10"); e("v_lshlrev_b32 v10, 16, v10")
    e("v_mul_f32 v10, v24, v10")
    e("v_cvt_pk_bf16_f32 v10, v10, v10"); e("v_lshlrev_b32 v10, 16, v10")
    e("v_add_f32 v10, v126, v10")
    pol = ["", " sc1", " nt", " sc0 sc1"][ost & 3]
    e("s_mov_b64 exec, 0xffff")
    e("v_cvt_pk_bf16_f32 v10, v10, v10")
    e("buffer_store_short v10, v125, s[32:35], s8 offen" + pol)
    e("s_mov_b64 exec, -1")
    g.stamp(4)
    if probe: e("s_waitcnt vmcnt(0)"); e("s_memrealtime s[96:97]")
    if not diag and not probe: e("s_endpgm")
    g.label("L_R3")
    e(f"s_cmp_lg_u32 s{S_WAVE}, 1"); e("s_cbranch_scc1 L_fin")
    e("s_cmp_lg_u32 s5, 0"); e("s_cbranch_scc1 L_fin")
    e("s_mov_b64 exec, 1")
    e(f"v_mov_b32 v10, s{S_T[0]}")
    e(f"buffer_store_dword v10, off, {WS}, 0 offset:{WS_E} sc1")
    e("s_mov_b64 exec, -1")
    e("s_branch L_fin")

    g.label("L_C")
    e("s_getpc_b64 s[60:61]")
    g.label("L_pc")
    e(f"s_sub_u32 s60, s60, L_pc-{NAME}_kernel"); e("s_subb_u32 s61, s61, 0")
    e(f"s_lshl_b32 s6, s{S_WAVE}, 11"); e("v_lshl_add_u32 v9, v0, 5, s6")
    e(f"v_min_u32 v9, L_fail-{NAME}_kernel, v9")
    if cpf: e("global_load_dword v10, v9, s[60:61]")
    g.label("L_C0")
    if diag or pw:
        e("s_waitcnt lgkmcnt(0)"); ws_srd(); g.note(0, 98)
    if pw:
        if pwd:
            lpd = g.newlab("Lcd"); e(f"s_mov_b32 s7, {pwd}"); g.label(lpd); e("s_sleep 16"); e("s_sub_u32 s7, s7, 1"); e("s_cmp_lg_u32 s7, 0"); e(f"s_cbranch_scc1 {lpd}")
        e("s_and_b32 s5, s2, 7"); e("s_lshl_b32 s5, s5, 1"); e("s_bfe_u32 s6, s2, 0x10003"); e("s_add_u32 s5, s5, s6")
        e(f"s_lshl_b32 s5, s5, 3"); e(f"s_add_u32 s5, s5, s{S_WAVE}")
        e("v_lshlrev_b32 v1, 6, v0")
        if pw & 1:
            e("s_mul_i32 s6, s5, 3840"); e(f"s_add_u32 s6, s6, {WS_SP}"); e(f"buffer_load_dword v10, v1, {WS}, s6 offen")
        if pw & 2:
            e(f"s_mul_i32 s6, s5, {OS}"); e(f"s_add_u32 s6, s6, {WS_OP}"); e(f"buffer_load_dword v11, v1, {WS}, s6 offen")
    g.label("L_fin")
    if probe:
        def until(lab, base, t):
            g.label(lab); e("s_sleep 4"); e("s_memrealtime s[92:93]"); e("s_waitcnt lgkmcnt(0)"); e(f"s_sub_u32 s92, s92, {base}"); e(f"s_cmp_lt_u32 s92, {t}"); e(f"s_cbranch_scc1 {lab}")
        e(f"s_cmp_lg_u32 s{S_WAVE}, 0"); e("s_cbranch_scc1 L_end")
        e("s_load_dwordx2 s[90:91], s[0:1], 80")
        until("L_q0", "s98", 1600)
        e("s_not_b32 s6, s98"); e("s_atomic_umax s6, s[90:91], 128")
        e("s_mov_b32 s6, s96"); e("s_atomic_umax s6, s[90:91], 192")
        e("s_cmp_lg_u32 s2, 0"); e("s_cbranch_scc1 L_end")
        until("L_q3", "s98", 4000)
        e("s_load_dword s8, s[90:91], 128 glc"); e("s_load_dword s9, s[90:91], 192 glc"); e("s_waitcnt lgkmcnt(0)")
        e("s_not_b32 s8, s8"); e("s_sub_u32 s9, s9, s8"); e("s_min_u32 s9, s9, 3000"); e("s_mul_i32 s9, s9, 10")
        g.label("L_q4"); e("s_memrealtime s[92:93]"); e("s_waitcnt lgkmcnt(0)"); e("s_sub_u32 s92, s92, s8"); e("s_cmp_lt_u32 s92, s9"); e("s_cbranch_scc1 L_q4")
    if diag:
        e("s_waitcnt vmcnt(0)")
        g.stamp(10)
        e("s_lshl_b32 s6, s2, 3"); e(f"s_add_u32 s6, s6, s{S_WAVE}"); e("s_lshl_b32 s6, s6, 8"); e(f"s_add_u32 s6, s6, {WS_DIAG}")
        e("v_lshlrev_b32 v1, 2, v0")
        e(f"buffer_store_dword v128, v1, {WS}, s6 offen")
    g.label("L_end")
    e("s_endpgm")
    g.L += g.tail
    g.label("L_fail")
    e("s_endpgm")
    nv = 136 if diag else 128
    g.L += ['.section .rodata,"a"', ".p2align 6", f".amdhsa_kernel {NAME}_kernel",
            f"  .amdhsa_next_free_vgpr {nv}", f"  .amdhsa_next_free_sgpr {64 if final else 102}", f"  .amdhsa_accum_offset {nv}",
            "  .amdhsa_group_segment_fixed_size 0", "  .amdhsa_kernarg_size 96", "  .amdhsa_user_sgpr_count 2",
            "  .amdhsa_user_sgpr_kernarg_segment_ptr 1", "  .amdhsa_system_sgpr_workgroup_id_x 1",
            ".end_amdhsa_kernel"]
    if heads:
        L = g.L
        def cut(a, b):
            i = L.index(a); j = L.index(b); blk = L[i:j]; del L[i:j]; return blk
        bh = cut("L_BX:", "L_BX2:") + ["  s_branch L_BX2"]
        i = L.index("L_AX2:"); L[i:i] = ["  s_branch L_AX2"] + bh
        ch = cut("L_C:", "L_C0:") + ["  s_branch L_C0"]
        i = L.index("L_X:")
        if grid > 240: L[i:i] = ch
    out = "\n".join(x for x in g.L if x is not None) + "\n"
    if not diag and not probe: out = out.replace("  s_branch L_fin\n", "  s_endpgm\n")
    return out

F = [("AX:st",0,128,0,4,0),("wq",0,128,0,4,3),("ba",0,128,0,4,1),("gotq",0,128,0,8,2),("bq",0,128,0,4,5),("sm",64,128,0,8,13),("bp",64,128,0,8,14),("pubo",0,128,0,8,7),("gath",0,128,0,4,6),("goto",0,128,0,4,8),
     ("AY:ln",0,128,4,8,6),("iss",0,128,4,8,3),("bo",0,128,4,8,4),("pub",0,128,4,8,9),
     ("BX:gu",128,240,0,4,3),("gath",128,240,0,4,6),("goth",128,240,0,4,5),
     ("BY:go",128,240,4,8,2),("iss",128,240,4,8,3),("bo",128,240,4,8,4),("pub",128,240,4,8,9),
     ("R:go",0,64,0,8,13),("got",0,64,0,8,14),("out",0,64,0,1,4),("end",0,240,0,8,10)]
POLLS = [("q", 0, 128, 0, 8, 11), ("o", 0, 128, 0, 4, 12), ("h", 128, 240, 0, 4, 11), ("fin", 0, 64, 0, 8, 15)]

def valid(c):
    return c.get("npe", 4) + c.get("nv", 0) + c.get("nm", 0) + c.get("np_", 0) <= c.get("NPRE", 4) <= 12 and c.get("WA", 8) <= 14

def parse(cfg):
    kw = {}
    for t in cfg.split(","):
        if not t: continue
        k, v = t.split("=")
        kw[k] = v if k in ("NT",) else int(v)
    return kw

if __name__ == "__main__":
    open(sys.argv[1], "w").write(gen(**parse(sys.argv[2] if len(sys.argv) > 2 else "")))
```

```python
import sys
NAME = "recurrent_scan__sliding_block_cached__glu_gated_glu__decode"
HEADER = open("cdna_kernels/" + NAME + ".s.ref").read().split("; @launch")[0]
NEWDIAG = 1

WS_E  = 0x0
WS_QP = 0x1000
WS_GP = 0x21000
WS_OP = 0x60000
WS_SP = 0xE8000
WS_USED = 0x168000
WS_DIAG = 0x1000000
L_CNT = 0
L_M   = 64
L_OO  = 512
L_RED = 2048
L_Q   = 4096
L_XN  = 8192
L_P   = 8192
L_K   = 12288
L_V   = 45056
L_XR  = 77824
LDS_BYTES = 79872
SPIN = 200000
SPIN_FINAL = 4000000

class G:
    def __init__(s, diag):
        s.L = []; s.tail = []; s.diag = diag; s.lab = 0
    def e(s, t): s.L.append("  " + t)
    def label(s, n): s.L.append(n + ":")
    def newlab(s, p="L"):
        s.lab += 1; return f"{p}_{s.lab}"
    def nop(s, n):
        while n > 0:
            k = min(n, 16); s.e(f"s_nop {k-1}"); n -= k
    def stamp(s, i):
        if s.diag:
            s.e("s_memrealtime s[100:101]"); s.e("s_waitcnt lgkmcnt(0)"); s.e(f"v_writelane_b32 v128, s100, {i}")
    def note(s, i, sreg):
        if s.diag: s.e(f"v_writelane_b32 v128, s{sreg}, {i}")
    def srd(s, d, lo, size):
        s.e(f"s_mov_b32 s{d}, s{lo}"); s.e(f"s_mov_b32 s{d+1}, s{lo+1}")
        s.e(f"s_mov_b32 s{d+2}, {size:#x}"); s.e(f"s_mov_b32 s{d+3}, 0x20000")

S_WAVE = 4
S_T = [10]
S_N = [11, 12, 13, 14]
WS = "s[36:39]"; WSP = "s[36:37]"
SLOTS = [16, 48, 64, 80]
V_M = 4; V_FF = 8; V_TMP = 12; V_ACC = 20; V_XX = 24; V_ACC1 = 48; V_W = 56

def tagput(g, r):
    for i in range(4): g.e(f"v_add_u32 v{r+i}, 8, v{r+i}")
    for i in range(4): g.e(f"v_bfi_b32 v{r+i}, 15, s{S_N[i]}, v{r+i}")

def wave_sum(g, v, sdst, fill=()):
    fill = list(fill)
    def pad(n):
        for _ in range(n):
            if fill: g.e(fill.pop(0))
            else: g.nop(1)
    for ror in (8, 4, 2, 1):
        pad(2); g.e(f"v_add_f32_dpp v{v}, v{v}, v{v} row_ror:{ror} row_mask:0xf bank_mask:0xf")
    pad(2); g.e(f"v_add_f32_dpp v{v}, v{v}, v{v} row_bcast:15 row_mask:0xa bank_mask:0xf")
    pad(2); g.e(f"v_add_f32_dpp v{v}, v{v}, v{v} row_bcast:31 row_mask:0xc bank_mask:0xf")
    pad(1); g.e(f"v_readlane_b32 s{sdst}, v{v}, 63")
    pad(2)
    for f in fill: g.e(f)

def xreduce(g, op, regs, tmps, steps=(16, 32)):
    for st in steps:
        for r, t in zip(regs, tmps): g.e(f"v_mov_b32 v{t}, v{r}")
        if len(regs) < 3: g.nop(3 - len(regs))
        for r, t in zip(regs, tmps): g.e(f"v_permlane{st}_swap_b32 v{t}, v{r}")
        if len(regs) < 2: g.nop(1)
        for r, t in zip(regs, tmps): g.e(f"{op} v{r}, v{t}, v{r}")

def layernorm(g, xr, xm):
    U = 28
    for i in range(8): g.e(f"v_dot2c_f32_bf16 v{9 + (i & 1)}, v12, v{xr+i}")
    unp = []
    for i in range(8):
        unp += [f"v_lshlrev_b32 v{U+2*i}, 16, v{xr+i}", f"v_and_b32 v{U+2*i+1}, 0xffff0000, v{xr+i}"]
    for _ in range(3): g.e(unp.pop(0))
    g.e("v_add_f32 v9, v9, v10")
    wave_sum(g, 9, 6, unp)
    g.e("v_mul_f32 v2, s6, v11"); g.e("v_mul_f32 v3, s6, v11")
    for i in range(0, 16, 2):
        g.e(f"v_pk_add_f32 v[{U+i}:{U+i+1}], v[{U+i}:{U+i+1}], v[2:3] neg_lo:[0,1] neg_hi:[0,1]")
    for i in range(0, 16, 2):
        a = 44 + 2 * ((i >> 1) & 1)
        g.e(f"v_pk_fma_f32 v[{a}:{a+1}], v[{U+i}:{U+i+1}], v[{U+i}:{U+i+1}], v[{a}:{a+1}]")
    g.e("v_pk_add_f32 v[44:45], v[44:45], v[46:47]")
    g.e("v_add_f32 v9, v44, v45")
    fill = [f"v_lshlrev_b32 v24, 16, v{xm}", f"v_and_b32 v25, 0xffff0000, v{xm}", f"v_lshlrev_b32 v26, 16, v{xm+1}", f"v_and_b32 v27, 0xffff0000, v{xm+1}",
            "v_cvt_pk_bf16_f32 v3, v3, v3", "v_lshlrev_b32 v3, 16, v3"] + [f"v_sub_f32 v{24+i}, v{24+i}, v3" for i in range(4)] + \
           ["v_cvt_pk_bf16_f32 v10, v24, v25", "v_cvt_pk_bf16_f32 v2, v26, v27", "v_lshlrev_b32 v24, 16, v10", "v_and_b32 v25, 0xffff0000, v10", "v_lshlrev_b32 v26, 16, v2"]
    wave_sum(g, 9, 6, fill)
    g.e("v_mul_f32 v9, s6, v11")
    g.e("v_cvt_pk_bf16_f32 v9, v9, v9"); g.e("v_lshlrev_b32 v9, 16, v9")
    g.e("v_add_f32 v9, 0x3727c5ac, v9")
    g.e("v_cvt_pk_bf16_f32 v9, v9, v9"); g.e("v_lshlrev_b32 v9, 16, v9")
    g.e("v_sqrt_f32 v9, v9")
    g.e("v_and_b32 v27, 0xffff0000, v2")
    g.e("v_cvt_pk_bf16_f32 v9, v9, v9"); g.e("v_lshlrev_b32 v9, 16, v9")
    g.e("v_rcp_f32 v9, v9"); g.nop(1)
    for i in range(4): g.e(f"v_mul_f32 v{24+i}, v{24+i}, v9")
    for i in range(4): g.e(f"v_cvt_pk_bf16_f32 v{24+i}, v{24+i}, v{24+i}")

def sel_half(g, m, h):
    t = V_TMP + 4 * (m & 1)
    for r in (2 * h, 2 * h + 1): g.e(f"v_and_b32 v{t+r}, v{V_XX+m}, v{V_M+r}")
def gemv_mfma(g, i, w):
    t = V_TMP + 4 * ((i >> 1) & 1); a = V_ACC1 if i & 1 else V_ACC
    c = "0" if i < 2 else f"v[{a}:{a+3}]"
    g.e(f"v_mfma_f32_16x16x32_bf16 v[{a}:{a+3}], v[{t}:{t+3}], v[{w}:{w+3}], {c}")
def gemv_pre(g, i, n):
    m = (i >> 1) + 1
    if 2 * m < n: sel_half(g, m, i & 1)
def gemv_fin(g, pad=8):
    g.nop(pad)
    for r in range(4): g.e(f"v_permlane32_swap_b32 v{V_ACC1+r}, v{V_XX+r}")
    g.e("s_mov_b32 exec_hi, 0")
    for r in (0, 2): g.e(f"v_pk_add_f32 v[{V_ACC+r}:{V_ACC+r+1}], v[{V_ACC+r}:{V_ACC+r+1}], v[{V_XX+r}:{V_XX+r+1}]")

def mpoll(g, n, load, check, sbase, first=None, noretry=False):
    e = g.e
    rt = g.newlab("Lrt"); lp = g.newlab("Lrl"); ok = g.newlab("Lok")
    M = lambda i: f"s[{sbase+2*i}:{sbase+2*i+1}]"
    def anymiss():
        if n == 1: e(f"s_cmp_lg_u64 {M(0)}, 0")
        else:
            e(f"s_or_b64 vcc, {M(0)}, {M(1)}")
            for i in range(2, n): e(f"s_or_b64 vcc, vcc, {M(i)}")
    for i in range(n): load(i)
    if g.diag: e(f"s_mov_b32 s7, {SPIN}")
    if first: first()
    else: e("s_waitcnt vmcnt(0)")
    for i in range(n): check(i, M(i))
    anymiss()
    if not noretry: e(f"s_cbranch_scc1 {rt}")
    g.label(ok)
    main = g.L; g.L = g.tail
    g.label(rt)
    e(f"s_mov_b32 s7, {SPIN}")
    g.label(lp)
    for i in range(n):
        e(f"s_wqm_b64 exec, {M(i)}")
        if n > 1:
            sk = g.newlab("Lms"); e(f"s_cbranch_execz {sk}"); load(i); g.label(sk)
        else: load(i)
    e("s_sub_u32 s7, s7, 1"); e("s_cbranch_scc1 L_fail")
    e("s_waitcnt vmcnt(0)")
    for i in range(n):
        if n > 1: e(f"s_wqm_b64 exec, {M(i)}")
        check(i, M(i))
    anymiss()
    e(f"s_cbranch_scc1 {lp}")
    e("s_mov_b64 exec, -1")
    e(f"s_branch {ok}")
    g.L = main

def ipoll(g, n, load, check, sbase, noretry=False):
    e = g.e
    lp = g.newlab("Lil")
    M = lambda i: f"s[{sbase+2*i}:{sbase+2*i+1}]"
    g.label(lp)
    for i in range(n):
        e(f"s_wqm_b64 exec, {M(i)}")
        if n > 1:
            sk = g.newlab("Lms"); e(f"s_cbranch_execz {sk}"); load(i); g.label(sk)
        else: load(i)
    e("s_sub_u32 s7, s7, 1"); e("s_cbranch_scc1 L_fail")
    e("s_waitcnt vmcnt(0)")
    for i in reversed(range(n)):
        if i < n - 1: e(f"s_wqm_b64 exec, {M(i)}")
        check(i, M(i))
    e("s_mov_b64 exec, -1")
    if n == 1: e(f"s_cmp_lg_u64 {M(0)}, 0")
    else: e(f"s_or_b64 vcc, {M(0)}, {M(1)}")
    if not noretry: e(f"s_cbranch_scc1 {lp}")

def tagchk1(g, r, dst):
    for i in range(4): g.e(f"v_xor_b32 v{r+i}, s{S_N[i]}, v{r+i}")
    g.e(f"v_or3_b32 v9, v{r}, v{r+1}, v{r+2}")
    g.e(f"v_bitop3_b32 v9, v9, v{r+3}, 15 bitop3:0xa8")
    g.e(f"v_cmp_ne_u32 {dst}, 0, v9")

def make_tag(g):
    g.e(f"v_readfirstlane_b32 s{S_T[0]}, v124")
    g.nop(1)
    g.e(f"s_add_u32 s{S_T[0]}, s{S_T[0]}, 0x9e3779b9")
    for i in range(4): g.e(f"s_bfe_u32 s{S_N[i]}, s{S_T[0]}, {0x40000 + 4*i:#x}")

def masks(g):
    e = g.e
    e("v_and_b32 v9, 1, v0"); e("v_lshlrev_b32 v9, 4, v9"); e("v_mov_b32 v10, 0xffff"); e("v_lshlrev_b32 v10, v9, v10")
    e("v_bfe_u32 v9, v0, 1, 2")
    for r in range(4):
        e(f"v_cmp_eq_u32 vcc, {r}, v9"); g.nop(2); e(f"v_cndmask_b32 v{V_M+r}, 0, v10, vcc")

def gen(diag=False, WA=8, WB1=5, WB2=8, WBsw=14, WYA=6, WYB=6, HB=3, NT=" nt", dbg=0, ackw=0,
        PREA=6, PREB=4, QW=4, NPRE=4, npe=4, cpf=1, cbo=0, obo=0, hbo=0,
        N1A=16, W2A=8, GA=0, N1B=16, W2B=8, GB=0, oslp=20, hslp=24, cwait=1, trace=0, pair=0, rotg=2,
        sfo=1, sfh=1, limo=2, limh=4, sfc=0, limc=1, nost=0, OS=4224, GS=14464, nv=0, nm=0, np_=0, heads=1, ost=3, slay=0, rrole=0, sfr=0, limr=4, rbo=0, rslp=0, pw=0, pwd=0, WB3=0, WBsw3=99, WA2=0, JV=4, vb=2, rack=0, probe=0, grid=256, final=0, rlast=1):
    global SPIN
    SPIN = SPIN_FINAL if final else 200000
    KE = QW <= JV
    WA2 = WA2 or WA
    RS = 7680 if slay == 0 else 64; PS = 64 if slay == 0 else 4224
    NQ = NPRE - npe - nv - nm - np_; assert NQ >= 0 and NPRE <= 12
    global TR
    TR = {}; cur = [None]
    g = G(diag); e = g.e
    def role(n): cur[0] = n; TR.setdefault(n, [])
    def tr(landed):
        if not trace: return
        i = len(TR[cur[0]]); TR[cur[0]].append(landed); g.stamp(16 + i)
    ST = "sc1"; LD = "sc1"
    wssize = WS_DIAG + 0x100000 if diag else WS_USED
    g.L.append(HEADER.rstrip("\n"))
    g.L.append(f"; @launch grid=({grid},1,1) block=(512,1,1) lds={LDS_BYTES}")
    g.L.append('.amdgcn_target "amdgcn-amd-amdhsa--gfx950"')
    g.L += [".text", f".globl {NAME}_kernel", ".p2align 8", f".type {NAME}_kernel,@function", f"{NAME}_kernel:"]
    def mapA(dst):
        e(f"s_and_b32 s{dst}, s2, 7"); e(f"s_lshl_b32 s{dst}, s{dst}, 4"); e("s_lshr_b32 s6, s2, 3"); e(f"s_add_u32 s{dst}, s{dst}, s6")
    def mapAq(dst, a):
        e(f"s_add_u32 s{dst}, s{a}, 32"); e(f"s_and_b32 s{dst}, s{dst}, 127")
    def mapAo(dst):
        if pair & 1:
            e(f"s_and_b32 s{dst}, s2, 7"); e(f"s_xor_b32 s{dst}, s{dst}, 4"); e(f"s_lshl_b32 s{dst}, s{dst}, 4"); e("s_lshr_b32 s6, s2, 3"); e(f"s_add_u32 s{dst}, s{dst}, s6")
        else:
            e("s_bfe_u32 s6, s2, 0x10002"); e(f"s_lshl_b32 s{dst}, s6, 1"); e(f"s_add_u32 s{dst}, s{dst}, s2"); e(f"s_add_u32 s{dst}, s{dst}, 1")
            e(f"s_and_b32 s{dst}, s{dst}, 3"); e(f"s_lshl_b32 s{dst}, s{dst}, 4"); e("s_lshr_b32 s7, s2, 3"); e(f"s_add_u32 s{dst}, s{dst}, s7")
            e(f"s_lshl_b32 s{dst}, s{dst}, 1"); e(f"s_add_u32 s{dst}, s{dst}, s6")
    def mapB(dst):
        e("s_sub_u32 s6, s2, 128"); e(f"s_and_b32 s{dst}, s6, 7"); e(f"s_mul_i32 s{dst}, s{dst}, 14"); e("s_lshr_b32 s6, s6, 3"); e(f"s_add_u32 s{dst}, s{dst}, s6")
    JT = [1, 2, 3, 0, 3, 0, 1, 2]
    JTAB = sum(j << (4 * x) for x, j in enumerate(JT))
    def mapBd(dst):
        if pair & 2:
            e(f"s_and_b32 s{dst}, s2, 7"); e(f"s_xor_b32 s{dst}, s{dst}, 4"); e(f"s_mul_i32 s{dst}, s{dst}, 14"); e("s_sub_u32 s6, s2, 128"); e("s_lshr_b32 s6, s6, 3"); e(f"s_add_u32 s{dst}, s{dst}, s6")
        else:
            e("s_and_b32 s6, s2, 7"); e("s_lshl_b32 s6, s6, 2"); e(f"s_lshr_b32 s{dst}, {JTAB:#x}, s6"); e(f"s_and_b32 s{dst}, s{dst}, 3")
            e(f"s_mul_i32 s{dst}, s{dst}, 14"); e("s_sub_u32 s7, s2, 128"); e("s_lshr_b32 s7, s7, 3"); e(f"s_add_u32 s{dst}, s{dst}, s7")
            e(f"s_lshl_b32 s{dst}, s{dst}, 1"); e("s_bfe_u32 s6, s2, 0x10002"); e(f"s_add_u32 s{dst}, s{dst}, s6")
    def mapC(dst):
        e(f"s_and_b32 s{dst}, s2, 7"); e(f"s_xor_b32 s{dst}, s{dst}, 4"); e(f"s_lshl_b32 s{dst}, s{dst}, 1"); e("s_bfe_u32 s6, s2, 0x10003"); e(f"s_add_u32 s{dst}, s{dst}, s6")
    def ws_srd():
        e("s_mov_b32 s36, s38"); e("s_mov_b32 s37, s39"); e(f"s_mov_b32 s38, {wssize:#x}"); e("s_mov_b32 s39, 0x20000")
    def epoch():
        e(f"buffer_load_dword v124, off, {WS}, 0 offset:{WS_E} sc1")
    def oo_addr(dst, isA):
        e("v_and_b32 v9, 3, v0")
        if isA:
            e("v_lshlrev_b32 v9, 3, v9"); e("v_and_b32 v10, 48, v0"); e("v_lshl_add_u32 v9, v10, 2, v9")
            e(f"s_and_b32 s6, s{S_WAVE}, 1"); e("s_lshl_b32 s6, s6, 5"); e(f"s_and_b32 s7, s{S_WAVE}, 2"); e("s_lshl_b32 s7, s7, 1"); e("s_add_u32 s6, s6, s7")
        else:
            e("v_lshlrev_b32 v9, 2, v9"); e("v_and_b32 v10, 16, v0"); e("v_lshl_add_u32 v9, v10, 3, v9"); e("v_and_b32 v10, 32, v0"); e("v_lshl_add_u32 v9, v10, 1, v9")
            e(f"s_lshl_b32 s6, s{S_WAVE}, 4")
        e(f"v_add_u32 v{dst}, s6, v9")

    def rsetup():
        sk = g.newlab("Lrs")
        e(f"s_sub_u32 s15, s2, {0 if rrole == 0 else 128}")
        g.srd(32, 34, 2048)
        e("v_lshrrev_b32 v122, 2, v0"); e(f"v_mul_u32_u24 v122, {PS}, v122"); e("v_and_b32 v9, 3, v0"); e("v_lshl_add_u32 v122, v9, 4, v122")
        e("v_and_b32 v11, 15, v0"); e("v_and_b32 v10, 12, v0"); e("v_add_u32 v125, v11, v10"); e("v_lshlrev_b32 v125, 1, v125")
        e("s_cmp_ge_u32 s15, 64"); e(f"s_cbranch_scc1 {sk}")
        e("s_lshr_b32 s7, s15, 3"); e("s_and_b32 s5, s15, 7"); e("s_xor_b32 s5, s5, 4"); e("s_lshl_b32 s5, s5, 3"); e("s_add_u32 s5, s5, s7")
        e(f"s_lshl_b32 s6, s{S_WAVE}, 4"); e(f"s_mul_i32 s7, s{S_WAVE}, 14"); e("s_add_u32 s7, s7, 8")
        e(f"s_cmp_lt_u32 s{S_WAVE}, 4"); e("s_cselect_b32 s6, s6, s7"); e("s_cselect_b32 s45, -1, 0x00ffffff"); e("s_mov_b32 s44, -1")
        e(f"s_mul_i32 s6, s6, {PS}"); e(f"s_mul_i32 s9, s5, {RS}"); e("s_add_u32 s9, s9, s6"); e(f"s_add_u32 s9, s9, {WS_SP}")
        e("s_lshr_b32 s8, s5, 3"); e("s_lshl_b32 s8, s8, 8"); e("s_and_b32 s6, s5, 3"); e("s_lshl_b32 s6, s6, 6"); e("s_add_u32 s8, s8, s6")
        e("s_and_b32 s6, s5, 4"); e("s_lshl_b32 s6, s6, 1"); e("s_add_u32 s8, s8, s6")
        e(f"s_add_u32 s6, s8, {L_XR}"); e("v_add_u32 v10, s6, v125"); e("ds_read_u16 v126, v10")
        for r in range(4): e(f"v_mov_b32 v{44+r}, 0")
        e("v_lshrrev_b32 v10, 4, v0"); e("v_lshl_add_u32 v9, v9, 2, v10"); e("v_mul_u32_u24 v123, 48, v9"); e(f"s_lshl_b32 s6, s{S_WAVE}, 2"); e("v_add_u32 v123, s6, v123")
        e("v_mul_u32_u24 v124, 48, v11"); e("v_mov_b32 v127, 0"); e("v_mov_b32 v43, 1")
        e(f"s_mov_b32 s7, {SPIN + 1}")
        e("s_waitcnt lgkmcnt(0)")
        e("v_lshlrev_b32 v126, 16, v126")
        g.label(sk)
    if diag or probe: e("s_memrealtime s[98:99]")
    if probe: e("s_mov_b32 s96, 0")
    e(f"s_cmp_ge_u32 s2, {grid}"); e("s_cbranch_scc1 L_end")
    e("s_load_dwordx16 s[16:31], s[0:1], 0"); e("s_load_dwordx8 s[32:39], s[0:1], 64")
    e("v_lshrrev_b32 v1, 6, v0"); e("v_and_b32 v0, 63, v0")
    e(f"v_readfirstlane_b32 s{S_WAVE}, v1")
    e("s_mov_b32 s43, 0x20000")
    e("v_lshrrev_b32 v2, 4, v0"); e("v_and_b32 v3, 15, v0")
    if grid > 240: e("s_cmp_ge_u32 s2, 240"); e("s_cbranch_scc1 L_C")
    e(f"s_cmp_lt_u32 s{S_WAVE}, 4"); e("s_cbranch_scc1 L_X")

    e("s_setprio 3")
    e("v_lshlrev_b32 v1, 5, v0")
    e(f"s_lshl_b32 s9, s{S_WAVE}, 9"); e("s_sub_u32 s9, s9, 2048"); e("v_lshlrev_b32 v9, 3, v0")
    e("s_mov_b32 s42, 2048")
    e("s_waitcnt lgkmcnt(0)")
    e("s_mov_b32 s40, s16"); e("s_mov_b32 s41, s17")
    e("buffer_load_dwordx4 v[112:115], v1, s[40:43], 0 offen")
    e("buffer_load_dwordx4 v[116:119], v1, s[40:43], 0 offen offset:16")
    e("buffer_load_dwordx2 v[110:111], v9, s[40:43], s9 offen")
    ws_srd(); epoch()
    e("s_branch L_Y")

    g.label("L_X")
    e("s_cmp_ge_u32 s2, 128"); e("s_cbranch_scc1 L_BX")
    mapA(5); mapAq(59, 5)
    e("v_lshlrev_b32 v1, 17, v2"); e("v_lshl_add_u32 v1, v3, 4, v1")
    e("s_and_b32 s6, s59, 7"); e("s_lshl_b32 s6, s6, 1"); e(f"s_lshr_b32 s7, s{S_WAVE}, 1"); e("s_add_u32 s6, s6, s7")
    e("s_lshr_b32 s57, s59, 3"); e("s_lshl_b32 s57, s57, 1"); e(f"s_and_b32 s7, s{S_WAVE}, 1"); e("s_add_u32 s57, s57, s7")
    e("s_lshl_b32 s8, s6, 19"); e("s_lshl_b32 s7, s57, 8"); e("s_add_u32 s8, s8, s7")
    e("s_lshl_b32 s9, s6, 8")
    e("s_mov_b32 s42, 0x800000")
    e("s_waitcnt lgkmcnt(0)")
    e("s_mov_b32 s40, s22"); e("s_mov_b32 s41, s23")
    def issue_A(k):
        if k < 16:
            e(f"buffer_load_dwordx4 v[{V_W+4*k}:{V_W+4*k+3}], v1, s[40:43], s8 offen{NT}")
            if k < 15: e(f"s_add_u32 s8, s8, {8*8192}" if k % 2 == 0 else f"s_sub_u32 s8, s8, {7*8192}")
        else:
            isK = k < 24; late = k >= 24 + JV
            e(f"s_add_u32 m0, s50, s{58 if isK else 51}")
            e(f"s_add_u32 s49, s50, s{52 if late else 56}")
            e(f"buffer_load_dwordx4 v{121 if isK or late else 122}, {'s[44:47]' if isK else 's[60:63]'}, s49 offen{NT} lds")
            if k < 31: e("s_add_u32 s50, s50, 4096"); e("s_and_b32 s50, s50, 0x7000")
    for k in range(WA): issue_A(k)
    g.label("L_AX2")
    ws_srd(); epoch()
    e("s_setprio 3")
    g.note(0, 98)
    e("v_lshrrev_b32 v9, 3, v0"); e("v_lshl_add_u32 v120, v9, 5, s9")
    masks(g)
    g.srd(44, 18, 67108864); g.srd(60, 20, 67108864)
    e("s_lshr_b32 s56, s5, 5"); e(f"s_mul_i32 s50, s56, {rotg*4096}"); e("s_and_b32 s50, s50, 0x7000")
    e("s_lshl_b32 s56, s56, 24"); e("s_and_b32 s7, s5, 31"); e("s_lshl_b32 s7, s7, 15"); e("s_add_u32 s56, s56, s7")
    e(f"s_lshl_b32 s7, s{S_WAVE}, 10"); e("s_add_u32 s56, s56, s7"); e(f"s_add_u32 s56, s56, {61440*256}")
    e(f"s_add_u32 s58, s7, {L_K}"); e(f"s_add_u32 s51, s7, {L_V}")
    e(f"s_lshl_b32 s7, s{S_WAVE}, 2"); e("v_add_u32 v9, s7, v2")
    e("v_xor_b32 v10, v9, v3"); e("v_lshlrev_b32 v10, 4, v10"); e("v_lshl_add_u32 v121, v2, 8, v10")
    e("v_and_b32 v9, 7, v9"); e("v_lshlrev_b32 v10, 1, v9"); e("v_xor_b32 v10, v10, v3"); e("v_lshlrev_b32 v10, 4, v10")
    e("v_lshl_add_u32 v122, v2, 8, v10")
    e("s_lshr_b32 s6, s57, 3"); e("s_lshl_b32 s6, s6, 15"); e("s_and_b32 s57, s57, 7"); e("s_lshl_b32 s57, s57, 9"); e("s_add_u32 s57, s57, s6")
    e("s_and_b32 s6, s59, 7"); e("s_lshl_b32 s6, s6, 12"); e("s_add_u32 s57, s57, s6"); e(f"s_add_u32 s57, s57, {WS_QP}")
    e("v_lshlrev_b32 v125, 4, v0")
    e(f"s_lshl_b32 s6, s{S_WAVE}, 9"); e("v_add_u32 v126, s6, v125"); e("v_xor_b32 v127, 0x400, v126")
    def pos(k): return k if k < WA else k + 1
    nis = WA
    PRE = min(32, WA + PREA)
    role("AX")
    while nis < PRE:
        e(f"s_waitcnt vmcnt({WA-1})"); issue_A(nis); nis += 1; tr(nis - WA)
    e("s_barrier")
    for i in range(2):
        e(f"ds_read_b128 v[{V_XX+4*i}:{V_XX+4*i+3}], v120 offset:{L_XN + 16*i}")
    e("s_waitcnt lgkmcnt(1)")
    sel_half(g, 0, 0); sel_half(g, 0, 1)
    for i in range(16):
        if i == 4: e("s_waitcnt lgkmcnt(0)")
        gemv_pre(g, i, 16)
        e(f"s_waitcnt vmcnt({pos(nis-1) - pos(i)})")
        while nis < i + 1 + (WA if nis < 16 else WA2) and nis < 24 + JV:
            issue_A(nis); nis += 1
        gemv_mfma(g, i, V_W + 4 * i)
        if i + 1 > PRE - WA: tr(i + 1)
        if i == 14: make_tag(g)
    g.stamp(3)
    e(f"s_and_b32 s6, s{S_WAVE}, 1"); e("s_lshl_b32 s6, s6, 2"); e("v_mov_b32 v9, s6"); e("v_mov_b32 v10, 1")
    gemv_fin(g, 4)
    e(f"ds_write_b128 v126, v[{V_ACC}:{V_ACC+3}] offset:{L_RED}")
    e("s_mov_b32 exec_lo, 1")
    e(f"ds_add_rtn_u32 v10, v9, v10 offset:{L_CNT}")
    e("s_mov_b32 exec_lo, -1")
    e(f"ds_read_b128 v[24:27], v127 offset:{L_RED}")
    e("s_waitcnt lgkmcnt(1)")
    e("v_readfirstlane_b32 s6, v10")
    skip = g.newlab("Lnl")
    e("s_cmp_eq_u32 s6, 0"); e(f"s_cbranch_scc1 {skip}")
    e("s_waitcnt lgkmcnt(0)")
    for r in range(0, 4, 2): e(f"v_pk_add_f32 v[{20+r}:{21+r}], v[{20+r}:{21+r}], v[{24+r}:{25+r}]")
    tagput(g, V_ACC)
    if not dbg & 16 and not nost & 1: e(f"buffer_store_dwordx4 v[{V_ACC}:{V_ACC+3}], v125, {WS}, s57 offen {ST}")
    g.label(skip)
    e("s_mov_b64 exec, -1")
    while nis < 24 + JV:
        e(f"s_waitcnt vmcnt({WA2-1})"); issue_A(nis); nis += 1; tr(nis - WA2)
    e("v_mov_b32 v121, v122"); e("s_mov_b32 s52, s56")

    def att_pre():
        e("v_lshrrev_b32 v2, 4, v0"); e("v_and_b32 v3, 15, v0")
        e("v_xor_b32 v10, v2, v3"); e("v_lshlrev_b32 v10, 4, v10"); e("v_lshl_add_u32 v1, v3, 8, v10")
        e(f"s_lshl_b32 s6, s{S_WAVE}, 12")
        for s in range(4):
            e(f"v_xor_b32 v10, {64*s}, v1"); e(f"v_add_u32 v{43+4*s}, s6, v10")
        e("v_lshrrev_b32 v1, 2, v0"); e("v_and_b32 v9, 7, v1"); e(f"v_xor_b32 v9, s{S_WAVE}, v9"); e("v_lshlrev_b32 v9, 5, v9")
        e("v_and_b32 v10, 3, v0"); e("v_lshl_add_u32 v9, v10, 3, v9"); e("v_lshl_add_u32 v9, v1, 8, v9"); e(f"v_add_u32 v122, {L_V}, v9")
        e("v_and_b32 v1, 7, v0"); e("v_mul_u32_u24 v123, 272, v1"); e("v_lshl_add_u32 v123, v2, 4, v123")
        e("v_lshlrev_b32 v124, 2, v3")
        e(f"s_lshr_b32 s6, s{S_WAVE}, 1"); e("s_lshl_b32 s6, s6, 10"); e(f"s_and_b32 s7, s{S_WAVE}, 1"); e("s_lshl_b32 s7, s7, 3"); e("s_add_u32 s6, s6, s7")
        e("v_lshlrev_b32 v125, 4, v0"); e("v_add_u32 v126, s6, v125")
        e("v_lshlrev_b32 v127, 4, v3"); e("v_lshl_add_u32 v127, v2, 7, v127")
        e(f"s_mul_i32 s58, s5, {OS}"); e(f"s_lshl_b32 s7, s{S_WAVE}, 9"); e("s_add_u32 s58, s58, s7"); e(f"s_add_u32 s58, s58, {WS_OP}")
        e("v_mov_b32 v12, 0x3f803f80"); e("v_mov_b32 v13, v12"); e("v_mov_b32 v14, v12"); e("v_mov_b32 v15, v12")
        e("s_lshr_b32 s9, s5, 5"); e("s_lshl_b32 s9, s9, 15"); e("s_add_u32 s9, s9, s7"); e(f"s_add_u32 s9, s9, {WS_QP}")
        e("s_add_u32 s56, s9, 8192")
        e("v_lshrrev_b32 v9, 5, v0"); e("v_and_b32 v10, 31, v0"); e("v_lshlrev_b32 v16, 12, v9"); e("v_lshl_add_u32 v16, v10, 4, v16")
        e("v_add_u32 v17, 16384, v16")
        e(f"s_mul_i32 s6, s{S_WAVE}, 272"); e("v_lshlrev_b32 v18, 4, v3"); e("v_lshl_add_u32 v18, v9, 2, v18"); e("v_and_b32 v10, 1, v2")
        e("v_lshl_add_u32 v18, v10, 3, v18"); e("v_add_u32 v18, s6, v18")
    att_pre()
    if trace:
        for k in range(WA2 - 1, QW - 1, -1): e(f"s_waitcnt vmcnt({k})"); tr(24 + JV - k)
    e(f"s_waitcnt vmcnt({QW}) lgkmcnt(0)")
    g.label("L_att")
    e("s_barrier")
    g.stamp(1)
    def yload(k):
        e(f"buffer_load_dwordx4 v[{V_W+4*k}:{V_W+4*k+3}], v120, s[40:43], s8 offen{NT}")
        if k < 15: e("s_add_u32 s8, s8, 8192" if k % 4 != 3 else "s_add_u32 s8, s8, s57")
    ny = [0]
    def yissue(n):
        if not n: return
        lx = g.newlab("Lxp")
        e(f"s_cmp_lt_u32 s{S_WAVE}, 4"); e(f"s_cbranch_scc1 {lx}")
        for k in range(ny[0], ny[0] + n): yload(k)
        ny[0] += n
        g.label(lx)
    nq = 0 if dbg & 1 else 4
    def q_load(i):
        if nq: e(f"buffer_load_dwordx4 v[{24+4*i}:{27+4*i}], v{16 + (i >> 1)}, {WS}, {'s56' if i & 1 else 's9'} offen {LD}")
    def k_reads():
        for s in range(4): e(f"ds_read_b128 v[{40+4*s}:{43+4*s}], v{43+4*s} offset:{L_K}")
    def v_reads():
        for sg in range(4):
            for u in range(2):
                e(f"ds_read_b64_tr_b16 v[{104+4*sg+2*u}:{105+4*sg+2*u}], v122 offset:{8192*sg + 4096*u}")
    def v_wait():
        lx = g.newlab("Lxv")
        e(f"s_cmp_ge_u32 s{S_WAVE}, 4"); e(f"s_cbranch_scc1 {lx}")
        e("s_waitcnt vmcnt(0)")
        g.label(lx)
    def q_first():
        e("s_barrier")
        lx = g.newlab("Lxp"); ly = g.newlab("Lxq")
        e(f"s_cmp_lt_u32 s{S_WAVE}, 4"); e(f"s_cbranch_scc1 {lx}")
        for k in range(npe): yload(k)
        ny[0] = npe
        if KE: k_reads()
        e(f"s_waitcnt vmcnt({npe})")
        e(f"s_branch {ly}")
        g.label(lx)
        for k in range(24 + JV, 32): issue_A(k)
        if KE: k_reads()
        e(f"s_waitcnt vmcnt({8 - JV})")
        g.label(ly)
        yissue(nv)
    mpoll(g, 4, q_load, lambda i, dst: tagchk1(g, 24 + 4 * i, dst), 16, first=q_first, noretry=bool(dbg & 33))
    g.note(11, 7)
    g.stamp(2)
    for st in (8, 4):
        for r in range(0, st, 2): e(f"v_pk_add_f32 v[{24+r}:{25+r}], v[{24+r}:{25+r}], v[{24+st+r}:{25+st+r}]")
    g.nop(2)
    e("v_permlane32_swap_b32 v24, v26"); e("v_permlane32_swap_b32 v25, v27"); g.nop(1)
    e("v_pk_add_f32 v[24:25], v[24:25], v[26:27]")
    e("v_cvt_pk_bf16_f32 v24, v24, v25")
    e(f"ds_write_b32 v18, v24 offset:{L_Q}")
    yissue(NQ)
    e("s_waitcnt lgkmcnt(0)")
    e("s_barrier")
    g.stamp(5)
    if not KE: k_reads()
    for s in range(4):
        e(f"ds_read_b128 v[{24+4*s}:{27+4*s}], v123 offset:{L_Q + 64*s}")
    e("s_mov_b32 s6, 0x3db504f3")
    e("s_mov_b32 s7, 0x3fb8aa3b")
    for s in range(4):
        e(f"s_waitcnt lgkmcnt({3 - s})")
        c = "0" if s == 0 else "v[20:23]"
        e(f"v_mfma_f32_16x16x32_bf16 v[20:23], v[{40+4*s}:{43+4*s}], v[{24+4*s}:{27+4*s}], {c}")
    g.nop(8)
    e("v_max3_f32 v11, v20, v21, v22"); e("v_cvt_pk_bf16_f32 v9, v20, v21"); e("v_max_f32 v11, v11, v23")
    e(f"ds_max_f32 v124, v11 offset:{L_M}")
    e("v_cvt_pk_bf16_f32 v10, v22, v23")
    e("v_lshlrev_b32 v20, 16, v9"); e("v_and_b32 v21, 0xffff0000, v9"); e("v_lshlrev_b32 v22, 16, v10"); e("v_and_b32 v23, 0xffff0000, v10")
    for i in range(4): e(f"v_mul_f32 v{20+i}, s6, v{20+i}")
    yissue(nm)
    if vb == 1: v_wait()
    e("s_waitcnt lgkmcnt(0)")
    e("s_barrier")
    e(f"ds_read_b32 v11, v124 offset:{L_M}")
    if vb == 1: v_reads()
    e("v_cvt_pk_bf16_f32 v9, v20, v21"); e("v_cvt_pk_bf16_f32 v10, v22, v23")
    e("v_lshlrev_b32 v20, 16, v9"); e("v_and_b32 v21, 0xffff0000, v9"); e("v_lshlrev_b32 v22, 16, v10"); e("v_and_b32 v23, 0xffff0000, v10")
    e(f"s_waitcnt lgkmcnt({8 if vb == 1 else 0})")
    e("v_cvt_pk_bf16_f32 v11, v11, v11"); e("v_lshlrev_b32 v11, 16, v11"); e("v_mul_f32 v11, s6, v11")
    e("v_cvt_pk_bf16_f32 v11, v11, v11"); e("v_lshlrev_b32 v11, 16, v11")
    e("v_mul_f32 v11, s7, v11")
    for i in range(4): e(f"v_fma_f32 v{20+i}, v{20+i}, s7, -v11")
    for i in range(4): e(f"v_exp_f32 v{20+i}, v{20+i}")
    e("v_cvt_pk_bf16_f32 v20, v20, v21"); e("v_cvt_pk_bf16_f32 v21, v22, v23")
    e(f"ds_write_b64 v126, v[20:21] offset:{L_P}")
    yissue(np_)
    g.stamp(13)
    if vb == 2: v_wait()
    e("s_waitcnt lgkmcnt(0)")
    e("s_barrier")
    g.stamp(14)
    for sg in range(4):
        e(f"ds_read_b128 v[{40+4*sg}:{43+4*sg}], v125 offset:{L_P + 1024*sg}")
        if vb == 2:
            for u in range(2):
                e(f"ds_read_b64_tr_b16 v[{104+4*sg+2*u}:{105+4*sg+2*u}], v122 offset:{8192*sg + 4096*u}")
    e(f"v_mov_b32 v23, s{S_T[0]}")
    for sg in range(4):
        e(f"s_waitcnt lgkmcnt({(3 - sg) * (3 if vb == 2 else 1)})")
        e(f"v_mfma_f32_16x16x32_bf16 v[24:27], v[12:15], v[{40+4*sg}:{43+4*sg}], " + ("0" if sg == 0 else "v[24:27]"))
        e(f"v_mfma_f32_16x16x32_bf16 v[16:19], v[{104+4*sg}:{107+4*sg}], v[{40+4*sg}:{43+4*sg}], " + ("0" if sg == 0 else "v[16:19]"))
    e("s_mov_b32 exec_lo, 0x00ff00ff"); e("s_mov_b32 exec_hi, 0x00ff00ff")
    g.nop(5)
    e("v_rcp_f32 v9, v24"); e("v_log_f32 v10, v24")
    for r in range(4): e(f"v_mul_f32 v{16+r}, v9, v{16+r}")
    e("v_add_f32 v22, v11, v10")
    e("v_cvt_pk_bf16_f32 v20, v16, v17"); e("v_cvt_pk_bf16_f32 v21, v18, v19")
    if not dbg & 16 and not nost & 2: e(f"buffer_store_dwordx4 v[20:23], v127, {WS}, s58 offen {ST}")
    e("s_mov_b64 exec, -1")
    g.stamp(7)
    e(f"s_cmp_ge_u32 s{S_WAVE}, 4"); e("s_cbranch_scc1 L_YA2")
    mapAo(5)
    e("s_lshr_b32 s8, s5, 5"); e(f"s_mul_i32 s8, s8, {32*OS}"); e("s_bfe_u32 s6, s5, 0x30002"); e("s_lshl_b32 s6, s6, 9"); e("s_add_u32 s8, s8, s6")
    e("s_bfe_u32 s6, s5, 0x10001"); e("s_lshl_b32 s6, s6, 6"); e("s_add_u32 s8, s8, s6"); e(f"s_lshl_b32 s6, s{S_WAVE}, 7"); e("s_add_u32 s8, s8, s6")
    e(f"s_add_u32 s8, s8, {WS_OP}"); e(f"s_add_u32 s9, s8, {16*OS}")
    e("v_lshrrev_b32 v125, 2, v0"); e(f"v_mul_u32_u24 v125, {OS}, v125"); e("v_and_b32 v9, 3, v0"); e("v_lshl_add_u32 v125, v9, 4, v125")
    oo_addr(2, True)
    e("s_mov_b64 s[44:45], -1"); e("s_mov_b64 s[46:47], -1"); e(f"s_mov_b32 s7, {SPIN + 1}")
    if ackw & 1: e("s_waitcnt vmcnt(0)")
    g.stamp(6)
    def o_load(i):
        if not dbg & 2: e(f"buffer_load_dwordx4 v[{24+4*i}:{27+4*i}], v125, {WS}, s{8+i} offen {LD}")
    def o_check(i, dst): e(f"v_cmp_ne_u32 {dst}, s{S_T[0]}, v{27+4*i}")
    ipoll(g, 2, o_load, o_check, 44, noretry=bool(dbg & 34))
    g.note(12, 7)
    g.stamp(8)
    e("v_max_f32 v16, v26, v30")
    e("v_lshlrev_b32 v32, 16, v24"); e("v_and_b32 v33, 0xffff0000, v24")
    e("v_max_f32_dpp v16, v16, v16 row_ror:4 row_mask:0xf bank_mask:0xf")
    e("v_lshlrev_b32 v34, 16, v25"); e("v_and_b32 v35, 0xffff0000, v25")
    e("v_max_f32_dpp v16, v16, v16 row_ror:8 row_mask:0xf bank_mask:0xf")
    e("v_mov_b32 v9, v16")
    e("v_lshlrev_b32 v40, 16, v28"); e("v_and_b32 v41, 0xffff0000, v28")
    e("v_permlane16_swap_b32 v9, v16")
    g.nop(1)
    e("v_max_f32 v16, v9, v16")
    e("v_mov_b32 v9, v16")
    e("v_lshlrev_b32 v42, 16, v29"); e("v_and_b32 v43, 0xffff0000, v29")
    e("v_permlane32_swap_b32 v9, v16"); g.nop(1); e("v_max_f32 v16, v9, v16")
    e("v_sub_f32 v26, v26, v16"); e("v_sub_f32 v30, v30, v16")
    e("v_exp_f32 v26, v26"); e("v_exp_f32 v30, v30"); g.nop(1)
    e("v_add_f32 v36, v26, v30")
    for r in range(4): e(f"v_mul_f32 v{32+r}, v26, v{32+r}")
    for r in range(4): e(f"v_fmac_f32 v{32+r}, v30, v{40+r}")
    e("v_mov_b32 v37, v36"); g.nop(1)
    e("v_permlane32_swap_b32 v32, v34"); e("v_permlane32_swap_b32 v33, v35"); e("v_permlane32_swap_b32 v37, v36")
    e("v_add_f32 v32, v32, v34"); e("v_add_f32 v33, v33, v35"); e("v_add_f32 v36, v36, v37")
    e("v_mov_b32 v37, v36"); g.nop(1)
    e("v_permlane16_swap_b32 v32, v33"); e("v_permlane16_swap_b32 v37, v36"); g.nop(1)
    e("v_add_f32 v32, v32, v33"); e("v_add_f32 v36, v36, v37")
    for ror in (4, 8):
        g.nop(1)
        for r in (32, 36): e(f"v_add_f32_dpp v{r}, v{r}, v{r} row_ror:{ror} row_mask:0xf bank_mask:0xf")
    e("v_rcp_f32 v36, v36"); g.nop(1)
    e("v_mul_f32 v32, v36, v32")
    g.label("L_oo")
    e("v_cvt_pk_bf16_f32 v32, v32, v32")
    e(f"ds_write_b32 v2, v32 offset:{L_OO}")
    e("s_waitcnt lgkmcnt(0)")
    e("s_barrier")
    g.stamp(9)
    rsetup()
    e("s_branch L_R")

    g.label("L_BX")
    mapB(5)
    e(f"s_mov_b32 s6, {32*7168}"); e("v_mul_lo_u32 v1, v2, s6"); e("v_lshl_add_u32 v1, v3, 4, v1")
    e("s_bfe_u32 s9, s5, 0x30001")
    e(f"s_mul_i32 s8, s9, {128*7168}"); e("s_lshr_b32 s7, s5, 4"); e("s_lshl_b32 s7, s7, 2"); e(f"s_add_u32 s7, s7, s{S_WAVE}")
    e("s_lshl_b32 s56, s7, 9")
    e("s_lshl_b32 s7, s7, 8"); e("s_add_u32 s8, s8, s7")
    e("s_mov_b32 s42, 7340032")
    e("s_and_b32 s6, s5, 1"); e("s_cmp_eq_u32 s6, 0")
    e("s_waitcnt lgkmcnt(0)")
    e("s_cselect_b32 s40, s28, s30"); e("s_cselect_b32 s41, s29, s31")
    def issue_B(k):
        r = V_W + 4 * (k & 15)
        e(f"buffer_load_dwordx4 v[{r}:{r+3}], v1, s[40:43], s8 offen{NT}")
        if k < 31: e(f"s_add_u32 s8, s8, {16*7168}" if k % 2 == 0 else f"s_sub_u32 s8, s8, {15*7168}")
    for k in range(WB1): issue_B(k)
    g.label("L_BX2")
    ws_srd(); epoch()
    e("s_setprio 3")
    g.note(0, 98)
    e("s_lshl_b32 s7, s9, 9"); e("v_lshrrev_b32 v9, 3, v0"); e("v_lshl_add_u32 v120, v9, 6, s7")
    masks(g)
    e("s_lshl_b32 s6, s6, 3"); e("s_add_u32 s6, s6, s9"); e(f"s_mul_i32 s6, s6, {GS}"); e("s_add_u32 s56, s56, s6"); e(f"s_add_u32 s56, s56, {WS_GP}")
    e("v_lshlrev_b32 v121, 4, v0")
    e("v_lshrrev_b32 v122, 2, v0"); e(f"v_mul_u32_u24 v122, {GS}, v122"); e("v_and_b32 v9, 3, v0"); e("v_lshl_add_u32 v122, v9, 4, v122")
    mapBd(9)
    e("s_bfe_u32 s6, s9, 0x10001"); e("s_lshl_b32 s6, s6, 7"); e("s_lshr_b32 s9, s9, 2"); e("s_lshl_b32 s9, s9, 9"); e("s_add_u32 s9, s9, s6")
    e(f"s_and_b32 s6, s{S_WAVE}, 2"); e("s_lshl_b32 s6, s6, 7"); e("s_add_u32 s9, s9, s6"); e(f"s_and_b32 s6, s{S_WAVE}, 1"); e("s_lshl_b32 s6, s6, 6"); e("s_add_u32 s9, s9, s6")
    e(f"s_add_u32 s9, s9, {WS_GP}")
    oo_addr(2, False)
    def posb(k): return k if k < WB1 else k + 1
    nis = WB1
    PRE = min(15, WB1 + PREB)
    role("BX")
    while nis < PRE:
        e(f"s_waitcnt vmcnt({WB1-1})"); issue_B(nis); nis += 1; tr(nis - WB1)
    e("s_barrier")
    for i in range(4):
        e(f"ds_read_b128 v[{V_XX+4*i}:{V_XX+4*i+3}], v120 offset:{L_XN + 16*i}")
    e("s_waitcnt lgkmcnt(3)")
    sel_half(g, 0, 0); sel_half(g, 0, 1)
    b2done = False
    for i in range(32):
        if i == 4: e("s_waitcnt lgkmcnt(0)")
        gemv_pre(g, i, 32)
        e(f"s_waitcnt vmcnt({posb(nis-1) - posb(i)})")
        W = WB1 if i < WBsw else (WB2 if i < WBsw3 else WB3)
        while nis < 32 and nis < i + 1 + W:
            issue_B(nis); nis += 1
        if nis == 32 and not b2done and 31 - i <= HB:
            e("s_barrier"); b2done = True
        gemv_mfma(g, i, V_W + 4 * (i & 15))
        if i + 1 > PRE - WB1: tr(i + 1)
        if i == 20: make_tag(g)
    g.stamp(3)
    gemv_fin(g)
    tagput(g, V_ACC)
    if not dbg & 16 and not nost & 4: e(f"buffer_store_dwordx4 v[20:23], v121, {WS}, s56 offen {ST}")
    e("s_mov_b64 exec, -1")
    if not b2done: e("s_barrier")
    e("s_mov_b64 s[44:45], -1"); e(f"s_mov_b32 s7, {SPIN + 1}")
    if ackw & 2: e("s_waitcnt vmcnt(0)")
    g.stamp(6)
    def h_load(i):
        if not dbg & 4: e(f"buffer_load_dwordx4 v[28:31], v122, {WS}, s9 offen {LD}")
    ipoll(g, 1, h_load, lambda i, dst: tagchk1(g, 28, dst), 44, noretry=bool(dbg & 36))
    g.note(11, 7)
    g.stamp(5)
    e("v_permlane16_swap_b32 v28, v30"); e("v_permlane16_swap_b32 v29, v31"); g.nop(1)
    e("v_add_f32 v28, v28, v30"); e("v_add_f32 v29, v29, v31")
    for ror in (4, 8):
        g.nop(1)
        for r in (28, 29): e(f"v_add_f32_dpp v{r}, v{r}, v{r} row_ror:{ror} row_mask:0xf bank_mask:0xf")
    g.nop(2)
    e("v_permlane32_swap_b32 v28, v29")
    g.nop(1)
    e("v_cvt_pk_bf16_f32 v28, v28, v29")
    e("v_lshlrev_b32 v32, 16, v28"); e("v_mul_f32 v32, 0xbfb8aa3b, v32"); e("v_exp_f32 v32, v32")
    e("v_and_b32 v29, 0xffff0000, v28")
    e("v_add_f32 v32, 1.0, v32"); e("v_rcp_f32 v32, v32"); g.nop(1)
    e("v_cvt_pk_bf16_f32 v32, v32, v32"); e("v_lshlrev_b32 v32, 16, v32")
    e("v_mul_f32 v32, v32, v29")
    e("s_branch L_oo")

    g.label("L_Y")
    g.note(0, 98)
    e("s_lshl_b32 s9, s9, 1"); e("v_lshl_add_u32 v122, v0, 4, s9")
    e("v_mov_b32 v9, 0"); e("v_mov_b32 v44, 0"); e("v_mov_b32 v45, 0"); e("v_mov_b32 v46, 0"); e("v_mov_b32 v47, 0")
    e(f"ds_write_b128 v9, v[44:47] offset:{L_CNT}")
    e("v_lshlrev_b32 v10, 2, v3"); e("v_mov_b32 v11, 0xff800000"); e(f"ds_write_b32 v10, v11 offset:{L_M}")
    e("v_lshlrev_b32 v120, 11, v2"); e("v_lshl_add_u32 v120, v3, 4, v120")
    e("v_lshrrev_b32 v121, 2, v0"); e(f"v_mul_u32_u24 v121, {RS}, v121"); e("v_and_b32 v10, 3, v0"); e("v_lshl_add_u32 v121, v10, 4, v121")
    e("v_mov_b32 v12, 0x3f803f80"); e("v_mov_b32 v10, 0"); e("v_mov_b32 v11, 0x3a800000")
    e("s_waitcnt vmcnt(1)")
    e("v_lshrrev_b32 v1, 1, v122"); e(f"v_add_u32 v1, {L_XR}, v1"); e("ds_write_b64 v1, v[110:111]")
    layernorm(g, 112, 110)
    e(f"ds_write_b128 v122, v[24:27] offset:{L_XN}")
    e("s_waitcnt lgkmcnt(0) vmcnt(0)")
    g.stamp(6)
    e("s_barrier")
    make_tag(g)
    masks(g)
    def ysetup(pbase):
        e("s_lshr_b32 s9, s5, 1")
        if pbase == 0:
            e("s_lshr_b32 s8, s5, 5"); e("s_lshl_b32 s8, s8, 21"); e("s_bfe_u32 s6, s5, 0x10001"); e("s_lshl_b32 s6, s6, 20"); e("s_add_u32 s8, s8, s6")
            e("s_bfe_u32 s6, s5, 0x30002"); e("s_lshl_b32 s6, s6, 15"); e("s_add_u32 s8, s8, s6"); e(f"s_mov_b32 s57, {116*2048}")
        else:
            e("s_lshl_b32 s8, s9, 17"); e("s_movk_i32 s57, 8192")
        e("s_and_b32 s6, s5, 1"); e("s_lshl_b32 s6, s6, 2")
        e(f"s_add_u32 s6, s6, s{S_WAVE}"); e("s_sub_u32 s6, s6, 4")
        e("s_lshl_b32 s7, s6, 8"); e("s_add_u32 s8, s8, s7")
        e(f"s_mul_i32 s59, s6, {8*RS}"); e(f"s_mul_i32 s9, s9, {PS}"); e("s_add_u32 s59, s59, s9"); e(f"s_add_u32 s59, s59, {WS_SP + pbase*PS}")
    e("s_cmp_ge_u32 s2, 128"); e("s_cbranch_scc1 L_YB2")
    mapAo(5); ysetup(0)
    e("s_mov_b32 s40, s24"); e("s_mov_b32 s41, s25"); e("s_mov_b32 s42, 0x800000")
    mapA(5)
    att_pre()
    e("s_branch L_att")
    def ystream(k0, W1, N1, W2, gate):
        for k in range(k0, 16):
            if gate and k == max(N1, k0): e("s_barrier")
            W = W1 if k < N1 else W2
            if k >= W: e(f"s_waitcnt vmcnt({W-1})")
            yload(k)
            if k >= W: tr(k + 1 - W)
        if gate and max(N1, k0) >= 16: e("s_barrier")
        if trace:
            for k in range(min(W, 16) - 1, -1, -1): e(f"s_waitcnt vmcnt({k})"); tr(16 - k)
    g.label("L_YB2")
    mapBd(5); ysetup(64)
    e("s_mov_b32 s40, s32"); e("s_mov_b32 s41, s33"); e("s_mov_b32 s42, 7340032")
    e("s_setprio 0")
    e("s_barrier")
    g.stamp(2)
    role("BY"); ystream(0, WYB, N1B, W2B, 0)
    e("s_branch L_YL3")
    g.label("L_YA2")
    e("s_setprio 0")
    role("AY"); ystream(NPRE, WYA, N1A, W2A, 0)
    g.label("L_YL3")
    g.stamp(3)
    rsetup()
    e("s_setprio 3")
    e("v_and_b32 v9, 56, v0"); e("v_lshlrev_b32 v9, 2, v9")
    e("s_barrier")
    g.stamp(4)
    for i in range(2):
        e(f"ds_read_b128 v[{V_XX+4*i}:{V_XX+4*i+3}], v9 offset:{L_OO + 16*i}")
    e("s_waitcnt lgkmcnt(1)")
    sel_half(g, 0, 0); sel_half(g, 0, 1)
    for i in range(16):
        gemv_pre(g, i, 16)
        e(f"s_waitcnt vmcnt({15-i})" + (" lgkmcnt(0)" if i == 4 else ""))
        gemv_mfma(g, i, V_W + 4 * i)
    gemv_fin(g)
    tagput(g, V_ACC)
    if not dbg & 16 and not nost & 8: e(f"buffer_store_dwordx4 v[{V_ACC}:{V_ACC+3}], v121, {WS}, s59 offen {ST}")
    e("s_mov_b64 exec, -1")
    g.stamp(9)

    g.label("L_R")
    e(f"s_cmp_ge_u32 s15, 64"); e("s_cbranch_scc1 L_fin")
    if dbg & 256: e("s_branch L_fin")
    if rack: e("s_waitcnt vmcnt(0)")
    e("s_barrier")
    g.stamp(13)
    def r_load(i): e(f"buffer_load_dwordx4 v[44:47], v122, {WS}, s9 offen {LD}")
    ipoll(g, 1, r_load, lambda i, dst: tagchk1(g, 44, dst), 44, noretry=bool(dbg & 8))
    g.note(15, 7)
    g.stamp(14)
    e("v_permlane32_swap_b32 v44, v46"); e("v_permlane32_swap_b32 v45, v47"); g.nop(1)
    e("v_add_f32 v44, v44, v46"); e("v_add_f32 v45, v45, v47"); g.nop(2)
    e("v_permlane16_swap_b32 v44, v45"); g.nop(1)
    e("v_add_f32 v44, v44, v45")
    for ror in (4, 8):
        g.nop(2); e(f"v_add_f32_dpp v44, v44, v44 row_ror:{ror} row_mask:0xf bank_mask:0xf")
    e(f"ds_write_b32 v123, v44 offset:{L_RED}")
    e("s_mov_b64 exec, 1")
    e(f"ds_add_rtn_u32 v43, v127, v43 offset:{L_CNT + 8}")
    e("s_mov_b64 exec, -1")
    e(f"ds_read_b128 v[28:31], v124 offset:{L_RED + 16}"); e(f"ds_read_b128 v[24:27], v124 offset:{L_RED}")
    e("s_waitcnt lgkmcnt(2)")
    e("v_readfirstlane_b32 s6, v43")
    e("s_waitcnt lgkmcnt(1)")
    e("s_cmp_lg_u32 s6, 7"); e("s_cbranch_scc1 L_fin")
    e("v_add_f32 v28, v28, v29"); e("v_add_f32 v30, v30, v31"); e("v_add_f32 v28, v28, v30")
    e("v_cvt_pk_bf16_f32 v28, v28, v28"); e("v_lshlrev_b32 v28, 16, v28")
    e("v_mul_f32 v10, 0xbfb8aa3b, v28"); e("v_exp_f32 v10, v10")
    e("s_waitcnt lgkmcnt(0)")
    e("v_add_f32 v24, v24, v25"); e("v_add_f32 v10, 1.0, v10"); e("v_rcp_f32 v10, v10")
    e("v_add_f32 v26, v26, v27"); e("v_add_f32 v24, v24, v26")
    e("v_mul_f32 v10, v28, v10")
    e("v_cvt_pk_bf16_f32 v10, v10, v24")
    e("v_and_b32 v24, 0xffff0000, v10"); e("v_lshlrev_b32 v10, 16, v10")
    e("v_mul_f32 v10, v24, v10")
    e("v_cvt_pk_bf16_f32 v10, v10, v10"); e("v_lshlrev_b32 v10, 16, v10")
    e("v_add_f32 v10, v126, v10")
    pol = ["", " sc1", " nt", " sc0 sc1"][ost & 3]
    e("s_mov_b64 exec, 0xffff")
    e("v_cvt_pk_bf16_f32 v10, v10, v10")
    e("buffer_store_short v10, v125, s[32:35], s8 offen" + pol)
    e("s_mov_b64 exec, -1")
    if probe: e("s_waitcnt vmcnt(0)"); e("s_memrealtime s[96:97]")

    e("s_cmp_lg_u32 s5, 0"); e("s_cbranch_scc1 L_fin")
    e("s_mov_b64 exec, 1")
    e(f"v_mov_b32 v10, s{S_T[0]}")
    e(f"buffer_store_dword v10, off, {WS}, 0 offset:{WS_E} sc1")
    e("s_mov_b64 exec, -1")
    e("s_branch L_fin")

    g.label("L_C")
    e("s_getpc_b64 s[60:61]")
    g.label("L_pc")
    e(f"s_sub_u32 s60, s60, L_pc-{NAME}_kernel"); e("s_subb_u32 s61, s61, 0")
    e(f"s_lshl_b32 s6, s{S_WAVE}, 11"); e("v_lshl_add_u32 v9, v0, 5, s6")
    e(f"v_min_u32 v9, L_fail-{NAME}_kernel, v9")
    if cpf: e("global_load_dword v10, v9, s[60:61]")
    g.label("L_C0")
    if diag or pw:
        e("s_waitcnt lgkmcnt(0)"); ws_srd(); g.note(0, 98)
    if pw:
        if pwd:
            lpd = g.newlab("Lcd"); e(f"s_mov_b32 s7, {pwd}"); g.label(lpd); e("s_sleep 16"); e("s_sub_u32 s7, s7, 1"); e("s_cmp_lg_u32 s7, 0"); e(f"s_cbranch_scc1 {lpd}")
        e("s_and_b32 s5, s2, 7"); e("s_lshl_b32 s5, s5, 1"); e("s_bfe_u32 s6, s2, 0x10003"); e("s_add_u32 s5, s5, s6")
        e(f"s_lshl_b32 s5, s5, 3"); e(f"s_add_u32 s5, s5, s{S_WAVE}")
        e("v_lshlrev_b32 v1, 6, v0")
        if pw & 1:
            e("s_mul_i32 s6, s5, 3840"); e(f"s_add_u32 s6, s6, {WS_SP}"); e(f"buffer_load_dword v10, v1, {WS}, s6 offen")
        if pw & 2:
            e(f"s_mul_i32 s6, s5, {OS}"); e(f"s_add_u32 s6, s6, {WS_OP}"); e(f"buffer_load_dword v11, v1, {WS}, s6 offen")
    g.label("L_fin")
    if probe:
        def until(lab, base, t):
            g.label(lab); e("s_sleep 4"); e("s_memrealtime s[92:93]"); e("s_waitcnt lgkmcnt(0)"); e(f"s_sub_u32 s92, s92, {base}"); e(f"s_cmp_lt_u32 s92, {t}"); e(f"s_cbranch_scc1 {lab}")
        e("s_waitcnt lgkmcnt(0)"); e("s_cmp_lg_u32 s96, 0"); e("s_cbranch_scc1 L_q5")
        e(f"s_cmp_lg_u32 s{S_WAVE}, 0"); e("s_cbranch_scc1 L_end")
        g.label("L_q5")
        e("s_load_dwordx2 s[90:91], s[0:1], 80")
        until("L_q0", "s98", 1600)
        e("s_not_b32 s6, s98"); e("s_atomic_umax s6, s[90:91], 128")
        e("s_mov_b32 s6, s96"); e("s_atomic_umax s6, s[90:91], 192")
        e("s_cmp_lg_u32 s2, 100"); e("s_cbranch_scc1 L_end")
        until("L_q3", "s98", 4000)
        e("s_load_dword s8, s[90:91], 128 glc"); e("s_load_dword s9, s[90:91], 192 glc"); e("s_waitcnt lgkmcnt(0)")
        e("s_not_b32 s8, s8"); e("s_sub_u32 s9, s9, s8"); e("s_min_u32 s9, s9, 3000"); e("s_mul_i32 s9, s9, 10")
        g.label("L_q4"); e("s_memrealtime s[92:93]"); e("s_waitcnt lgkmcnt(0)"); e("s_sub_u32 s92, s92, s8"); e("s_cmp_lt_u32 s92, s9"); e("s_cbranch_scc1 L_q4")
    if diag:
        e("s_waitcnt vmcnt(0)")
        g.stamp(10)
        e("s_lshl_b32 s6, s2, 3"); e(f"s_add_u32 s6, s6, s{S_WAVE}"); e("s_lshl_b32 s6, s6, 8"); e(f"s_add_u32 s6, s6, {WS_DIAG}")
        e("v_lshlrev_b32 v1, 2, v0")
        e(f"buffer_store_dword v128, v1, {WS}, s6 offen")
    g.label("L_end")
    e("s_endpgm")
    g.L += g.tail
    g.label("L_fail")
    e("s_endpgm")
    nv = 136 if diag else 128
    g.L += ['.section .rodata,"a"', ".p2align 6", f".amdhsa_kernel {NAME}_kernel",
            f"  .amdhsa_next_free_vgpr {nv}", f"  .amdhsa_next_free_sgpr {64 if final else 102}", f"  .amdhsa_accum_offset {nv}",
            "  .amdhsa_group_segment_fixed_size 0", "  .amdhsa_kernarg_size 96", "  .amdhsa_user_sgpr_count 2",
            "  .amdhsa_user_sgpr_kernarg_segment_ptr 1", "  .amdhsa_system_sgpr_workgroup_id_x 1",
            ".end_amdhsa_kernel"]
    if heads:
        L = g.L
        def cut(a, b):
            i = L.index(a); j = L.index(b); blk = L[i:j]; del L[i:j]; return blk
        bh = cut("L_BX:", "L_BX2:") + ["  s_branch L_BX2"]
        i = L.index("L_AX2:"); L[i:i] = ["  s_branch L_AX2"] + bh
        ch = cut("L_C:", "L_C0:") + ["  s_branch L_C0"]
        i = L.index("L_X:")
        if grid > 240: L[i:i] = ch
    out = "\n".join(x for x in g.L if x is not None) + "\n"
    if not diag and not probe: out = out.replace("  s_branch L_fin\n", "  s_endpgm\n")
    return out

F = [("AX:st",0,128,0,4,0),("wq",0,128,0,4,3),("ba",0,128,0,4,1),("gotq",0,128,0,8,2),("bq",0,128,0,4,5),("sm",64,128,0,8,13),("bp",64,128,0,8,14),("pubo",0,128,0,8,7),("gath",0,128,0,4,6),("goto",0,128,0,4,8),
     ("AY:ln",0,128,4,8,6),("iss",0,128,4,8,3),("bo",0,128,4,8,4),("pub",0,128,4,8,9),
     ("BX:gu",128,240,0,4,3),("gath",128,240,0,4,6),("goth",128,240,0,4,5),
     ("BY:go",128,240,4,8,2),("iss",128,240,4,8,3),("bo",128,240,4,8,4),("pub",128,240,4,8,9),
     ("R:go",128,192,0,8,13),("got",128,192,0,8,14),("end",0,240,0,8,10)]
POLLS = [("q", 0, 128, 0, 8, 11), ("o", 0, 128, 0, 4, 12), ("h", 128, 240, 0, 4, 11), ("fin", 128, 192, 0, 8, 15)]

def valid(c):
    return c.get("npe", 4) + c.get("nv", 0) + c.get("nm", 0) + c.get("np_", 0) <= c.get("NPRE", 4) <= 12 and c.get("WA", 8) <= 14

def parse(cfg):
    kw = {}
    for t in cfg.split(","):
        if not t: continue
        k, v = t.split("=")
        kw[k] = v if k in ("NT",) else int(v)
    return kw

if __name__ == "__main__":
    open(sys.argv[1], "w").write(gen(**parse(sys.argv[2] if len(sys.argv) > 2 else "")))
```

```python
import sys
NAME = "recurrent_scan__sliding_block_cached__glu_gated_glu__decode"
HEADER = open("cdna_kernels/" + NAME + ".s.ref").read().split("; @launch")[0]
NEWDIAG = 1

WS_E  = 0x0
WS_QP = 0x1000
WS_GP = 0x21000
WS_OP = 0x60000
WS_SP = 0xE8000
WS_USED = 0x168000
WS_DIAG = 0x1000000
L_CNT = 0
L_M   = 64
L_OO  = 512
L_RED = 2048
L_Q   = 4096
L_XN  = 8192
L_P   = 8192
L_K   = 12288
L_V   = 45056
L_XR  = 77824
LDS_BYTES = 79872
SPIN = 200000
SPIN_FINAL = 4000000

class G:
    def __init__(s, diag):
        s.L = []; s.tail = []; s.pidx = -1; s.diag = diag; s.lab = 0
    def e(s, t): s.L.append("  " + t)
    def label(s, n): s.L.append(n + ":")
    def newlab(s, p="L"):
        s.lab += 1; return f"{p}_{s.lab}"
    def nop(s, n):
        while n > 0:
            k = min(n, 16); s.e(f"s_nop {k-1}"); n -= k
    def stamp(s, i):
        if i == s.pidx: s.e("s_memrealtime s[96:97]")
        if s.diag:
            s.e("s_memrealtime s[100:101]"); s.e("s_waitcnt lgkmcnt(0)"); s.e(f"v_writelane_b32 v128, s100, {i}")
    def note(s, i, sreg):
        if s.diag: s.e(f"v_writelane_b32 v128, s{sreg}, {i}")
    def srd(s, d, lo, size):
        s.e(f"s_mov_b32 s{d}, s{lo}"); s.e(f"s_mov_b32 s{d+1}, s{lo+1}")
        s.e(f"s_mov_b32 s{d+2}, {size:#x}"); s.e(f"s_mov_b32 s{d+3}, 0x20000")

S_WAVE = 4
S_T = [10]
S_N = [11, 12, 13, 14]
WS = "s[36:39]"; WSP = "s[36:37]"
SLOTS = [16, 48, 64, 80]
V_M = 4; V_FF = 8; V_TMP = 12; V_ACC = 20; V_XX = 24; V_ACC1 = 48; V_W = 56

def tagput(g, r):
    for i in range(4): g.e(f"v_add_u32 v{r+i}, 8, v{r+i}")
    for i in range(4): g.e(f"v_bfi_b32 v{r+i}, 15, s{S_N[i]}, v{r+i}")

def wave_sum(g, v, sdst, fill=()):
    fill = list(fill)
    def pad(n):
        for _ in range(n):
            if fill: g.e(fill.pop(0))
            else: g.nop(1)
    for ror in (8, 4, 2, 1):
        pad(2); g.e(f"v_add_f32_dpp v{v}, v{v}, v{v} row_ror:{ror} row_mask:0xf bank_mask:0xf")
    pad(2); g.e(f"v_add_f32_dpp v{v}, v{v}, v{v} row_bcast:15 row_mask:0xa bank_mask:0xf")
    pad(2); g.e(f"v_add_f32_dpp v{v}, v{v}, v{v} row_bcast:31 row_mask:0xc bank_mask:0xf")
    pad(1); g.e(f"v_readlane_b32 s{sdst}, v{v}, 63")
    pad(2)
    for f in fill: g.e(f)

def xreduce(g, op, regs, tmps, steps=(16, 32)):
    for st in steps:
        for r, t in zip(regs, tmps): g.e(f"v_mov_b32 v{t}, v{r}")
        if len(regs) < 3: g.nop(3 - len(regs))
        for r, t in zip(regs, tmps): g.e(f"v_permlane{st}_swap_b32 v{t}, v{r}")
        if len(regs) < 2: g.nop(1)
        for r, t in zip(regs, tmps): g.e(f"{op} v{r}, v{t}, v{r}")

def layernorm(g, xr, xm):
    U = 28
    for i in range(8): g.e(f"v_dot2c_f32_bf16 v{9 + (i & 1)}, v12, v{xr+i}")
    unp = []
    for i in range(8):
        unp += [f"v_lshlrev_b32 v{U+2*i}, 16, v{xr+i}", f"v_and_b32 v{U+2*i+1}, 0xffff0000, v{xr+i}"]
    for _ in range(3): g.e(unp.pop(0))
    g.e("v_add_f32 v9, v9, v10")
    wave_sum(g, 9, 6, unp)
    g.e("v_mul_f32 v2, s6, v11"); g.e("v_mul_f32 v3, s6, v11")
    for i in range(0, 16, 2):
        g.e(f"v_pk_add_f32 v[{U+i}:{U+i+1}], v[{U+i}:{U+i+1}], v[2:3] neg_lo:[0,1] neg_hi:[0,1]")
    for i in range(0, 16, 2):
        a = 44 + 2 * ((i >> 1) & 1)
        g.e(f"v_pk_fma_f32 v[{a}:{a+1}], v[{U+i}:{U+i+1}], v[{U+i}:{U+i+1}], v[{a}:{a+1}]")
    g.e("v_pk_add_f32 v[44:45], v[44:45], v[46:47]")
    g.e("v_add_f32 v9, v44, v45")
    fill = [f"v_lshlrev_b32 v24, 16, v{xm}", f"v_and_b32 v25, 0xffff0000, v{xm}", f"v_lshlrev_b32 v26, 16, v{xm+1}", f"v_and_b32 v27, 0xffff0000, v{xm+1}",
            "v_cvt_pk_bf16_f32 v3, v3, v3", "v_lshlrev_b32 v3, 16, v3"] + [f"v_sub_f32 v{24+i}, v{24+i}, v3" for i in range(4)] + \
           ["v_cvt_pk_bf16_f32 v10, v24, v25", "v_cvt_pk_bf16_f32 v2, v26, v27", "v_lshlrev_b32 v24, 16, v10", "v_and_b32 v25, 0xffff0000, v10", "v_lshlrev_b32 v26, 16, v2"]
    wave_sum(g, 9, 6, fill)
    g.e("v_mul_f32 v9, s6, v11")
    g.e("v_cvt_pk_bf16_f32 v9, v9, v9"); g.e("v_lshlrev_b32 v9, 16, v9")
    g.e("v_add_f32 v9, 0x3727c5ac, v9")
    g.e("v_cvt_pk_bf16_f32 v9, v9, v9"); g.e("v_lshlrev_b32 v9, 16, v9")
    g.e("v_sqrt_f32 v9, v9")
    g.e("v_and_b32 v27, 0xffff0000, v2")
    g.e("v_cvt_pk_bf16_f32 v9, v9, v9"); g.e("v_lshlrev_b32 v9, 16, v9")
    g.e("v_rcp_f32 v9, v9"); g.nop(1)
    for i in range(4): g.e(f"v_mul_f32 v{24+i}, v{24+i}, v9")
    for i in range(4): g.e(f"v_cvt_pk_bf16_f32 v{24+i}, v{24+i}, v{24+i}")

def sel_half(g, m, h):
    t = V_TMP + 4 * (m & 1)
    for r in (2 * h, 2 * h + 1): g.e(f"v_and_b32 v{t+r}, v{V_XX+m}, v{V_M+r}")
def gemv_mfma(g, i, w):
    t = V_TMP + 4 * ((i >> 1) & 1); a = V_ACC1 if i & 1 else V_ACC
    c = "0" if i < 2 else f"v[{a}:{a+3}]"
    g.e(f"v_mfma_f32_16x16x32_bf16 v[{a}:{a+3}], v[{t}:{t+3}], v[{w}:{w+3}], {c}")
def gemv_pre(g, i, n):
    m = (i >> 1) + 1
    if 2 * m < n: sel_half(g, m, i & 1)
def gemv_fin(g, pad=8):
    g.nop(pad)
    for r in range(4): g.e(f"v_permlane32_swap_b32 v{V_ACC1+r}, v{V_XX+r}")
    g.e("s_mov_b32 exec_hi, 0")
    for r in (0, 2): g.e(f"v_pk_add_f32 v[{V_ACC+r}:{V_ACC+r+1}], v[{V_ACC+r}:{V_ACC+r+1}], v[{V_XX+r}:{V_XX+r+1}]")

def mpoll(g, n, load, check, sbase, first=None, noretry=False):
    e = g.e
    rt = g.newlab("Lrt"); lp = g.newlab("Lrl"); ok = g.newlab("Lok")
    M = lambda i: f"s[{sbase+2*i}:{sbase+2*i+1}]"
    def anymiss():
        if n == 1: e(f"s_cmp_lg_u64 {M(0)}, 0")
        else:
            e(f"s_or_b64 vcc, {M(0)}, {M(1)}")
            for i in range(2, n): e(f"s_or_b64 vcc, vcc, {M(i)}")
    for i in range(n): load(i)
    if g.diag: e(f"s_mov_b32 s7, {SPIN}")
    if first: first()
    else: e("s_waitcnt vmcnt(0)")
    for i in range(n): check(i, M(i))
    anymiss()
    if not noretry: e(f"s_cbranch_scc1 {rt}")
    g.label(ok)
    main = g.L; g.L = g.tail
    g.label(rt)
    e(f"s_mov_b32 s7, {SPIN}")
    g.label(lp)
    for i in range(n):
        e(f"s_wqm_b64 exec, {M(i)}")
        if n > 1:
            sk = g.newlab("Lms"); e(f"s_cbranch_execz {sk}"); load(i); g.label(sk)
        else: load(i)
    e("s_sub_u32 s7, s7, 1"); e("s_cbranch_scc1 L_fail")
    e("s_waitcnt vmcnt(0)")
    for i in range(n):
        if n > 1: e(f"s_wqm_b64 exec, {M(i)}")
        check(i, M(i))
    anymiss()
    e(f"s_cbranch_scc1 {lp}")
    e("s_mov_b64 exec, -1")
    e(f"s_branch {ok}")
    g.L = main

def ipoll(g, n, load, check, sbase, noretry=False):
    e = g.e
    lp = g.newlab("Lil")
    M = lambda i: f"s[{sbase+2*i}:{sbase+2*i+1}]"
    g.label(lp)
    for i in range(n):
        e(f"s_wqm_b64 exec, {M(i)}")
        if n > 1:
            sk = g.newlab("Lms"); e(f"s_cbranch_execz {sk}"); load(i); g.label(sk)
        else: load(i)
    e("s_sub_u32 s7, s7, 1"); e("s_cbranch_scc1 L_fail")
    e("s_waitcnt vmcnt(0)")
    for i in reversed(range(n)):
        if i < n - 1: e(f"s_wqm_b64 exec, {M(i)}")
        check(i, M(i))
    e("s_mov_b64 exec, -1")
    if n == 1: e(f"s_cmp_lg_u64 {M(0)}, 0")
    else: e(f"s_or_b64 vcc, {M(0)}, {M(1)}")
    if not noretry: e(f"s_cbranch_scc1 {lp}")

def tagchk1(g, r, dst):
    for i in range(4): g.e(f"v_xor_b32 v{r+i}, s{S_N[i]}, v{r+i}")
    g.e(f"v_or3_b32 v9, v{r}, v{r+1}, v{r+2}")
    g.e(f"v_bitop3_b32 v9, v9, v{r+3}, 15 bitop3:0xa8")
    g.e(f"v_cmp_ne_u32 {dst}, 0, v9")

def make_tag(g):
    g.e(f"v_readfirstlane_b32 s{S_T[0]}, v124")
    g.nop(1)
    g.e(f"s_add_u32 s{S_T[0]}, s{S_T[0]}, 0x9e3779b9")
    for i in range(4): g.e(f"s_bfe_u32 s{S_N[i]}, s{S_T[0]}, {0x40000 + 4*i:#x}")

def masks(g):
    e = g.e
    e("v_and_b32 v9, 1, v0"); e("v_lshlrev_b32 v9, 4, v9"); e("v_mov_b32 v10, 0xffff"); e("v_lshlrev_b32 v10, v9, v10")
    e("v_bfe_u32 v9, v0, 1, 2")
    for r in range(4):
        e(f"v_cmp_eq_u32 vcc, {r}, v9"); g.nop(2); e(f"v_cndmask_b32 v{V_M+r}, 0, v10, vcc")

def gen(diag=False, WA=8, WB1=5, WB2=8, WBsw=14, WYA=6, WYB=6, HB=3, NT=" nt", dbg=0, ackw=0,
        PREA=6, PREB=4, QW=4, NPRE=4, npe=4, cpf=1, cbo=0, obo=0, hbo=0,
        N1A=16, W2A=8, GA=0, N1B=16, W2B=8, GB=0, oslp=20, hslp=24, cwait=1, trace=0, pair=0, rotg=2,
        sfo=1, sfh=1, limo=2, limh=4, sfc=0, limc=1, nost=0, OS=4224, GS=14464, nv=0, nm=0, np_=0, heads=1, ost=3, slay=0, rrole=0, sfr=0, limr=4, rbo=0, rslp=0, pw=0, pwd=0, WB3=0, WBsw3=99, WA2=0, JV=4, vb=2, rack=0, probe=0, grid=256, final=0, rlast=1, pidx=-1, pw0=0, pw1=256, pv0=0, pv1=8):
    global SPIN
    SPIN = SPIN_FINAL if final else 200000
    KE = QW <= JV
    WA2 = WA2 or WA
    RS = 7680 if slay == 0 else 64; PS = 64 if slay == 0 else 4224
    NQ = NPRE - npe - nv - nm - np_; assert NQ >= 0 and NPRE <= 12
    global TR
    TR = {}; cur = [None]
    g = G(diag); e = g.e
    g.pidx = pidx
    def role(n): cur[0] = n; TR.setdefault(n, [])
    def tr(landed):
        if not trace: return
        i = len(TR[cur[0]]); TR[cur[0]].append(landed); g.stamp(16 + i)
    ST = "sc1"; LD = "sc1"
    wssize = WS_DIAG + 0x100000 if diag else WS_USED
    g.L.append(HEADER.rstrip("\n"))
    g.L.append(f"; @launch grid=({grid},1,1) block=(512,1,1) lds={LDS_BYTES}")
    g.L.append('.amdgcn_target "amdgcn-amd-amdhsa--gfx950"')
    g.L += [".text", f".globl {NAME}_kernel", ".p2align 8", f".type {NAME}_kernel,@function", f"{NAME}_kernel:"]
    def mapA(dst):
        e(f"s_and_b32 s{dst}, s2, 7"); e(f"s_lshl_b32 s{dst}, s{dst}, 4"); e("s_lshr_b32 s6, s2, 3"); e(f"s_add_u32 s{dst}, s{dst}, s6")
    def mapAq(dst, a):
        e(f"s_add_u32 s{dst}, s{a}, 32"); e(f"s_and_b32 s{dst}, s{dst}, 127")
    def mapAo(dst):
        if pair & 1:
            e(f"s_and_b32 s{dst}, s2, 7"); e(f"s_xor_b32 s{dst}, s{dst}, 4"); e(f"s_lshl_b32 s{dst}, s{dst}, 4"); e("s_lshr_b32 s6, s2, 3"); e(f"s_add_u32 s{dst}, s{dst}, s6")
        else:
            e("s_bfe_u32 s6, s2, 0x10002"); e(f"s_lshl_b32 s{dst}, s6, 1"); e(f"s_add_u32 s{dst}, s{dst}, s2"); e(f"s_add_u32 s{dst}, s{dst}, 1")
            e(f"s_and_b32 s{dst}, s{dst}, 3"); e(f"s_lshl_b32 s{dst}, s{dst}, 4"); e("s_lshr_b32 s7, s2, 3"); e(f"s_add_u32 s{dst}, s{dst}, s7")
            e(f"s_lshl_b32 s{dst}, s{dst}, 1"); e(f"s_add_u32 s{dst}, s{dst}, s6")
    def mapB(dst):
        e("s_sub_u32 s6, s2, 128"); e(f"s_and_b32 s{dst}, s6, 7"); e(f"s_mul_i32 s{dst}, s{dst}, 14"); e("s_lshr_b32 s6, s6, 3"); e(f"s_add_u32 s{dst}, s{dst}, s6")
    JT = [1, 2, 3, 0, 3, 0, 1, 2]
    JTAB = sum(j << (4 * x) for x, j in enumerate(JT))
    def mapBd(dst):
        if pair & 2:
            e(f"s_and_b32 s{dst}, s2, 7"); e(f"s_xor_b32 s{dst}, s{dst}, 4"); e(f"s_mul_i32 s{dst}, s{dst}, 14"); e("s_sub_u32 s6, s2, 128"); e("s_lshr_b32 s6, s6, 3"); e(f"s_add_u32 s{dst}, s{dst}, s6")
        else:
            e("s_and_b32 s6, s2, 7"); e("s_lshl_b32 s6, s6, 2"); e(f"s_lshr_b32 s{dst}, {JTAB:#x}, s6"); e(f"s_and_b32 s{dst}, s{dst}, 3")
            e(f"s_mul_i32 s{dst}, s{dst}, 14"); e("s_sub_u32 s7, s2, 128"); e("s_lshr_b32 s7, s7, 3"); e(f"s_add_u32 s{dst}, s{dst}, s7")
            e(f"s_lshl_b32 s{dst}, s{dst}, 1"); e("s_bfe_u32 s6, s2, 0x10002"); e(f"s_add_u32 s{dst}, s{dst}, s6")
    def mapC(dst):
        e(f"s_and_b32 s{dst}, s2, 7"); e(f"s_xor_b32 s{dst}, s{dst}, 4"); e(f"s_lshl_b32 s{dst}, s{dst}, 1"); e("s_bfe_u32 s6, s2, 0x10003"); e(f"s_add_u32 s{dst}, s{dst}, s6")
    def ws_srd():
        e("s_mov_b32 s36, s38"); e("s_mov_b32 s37, s39"); e(f"s_mov_b32 s38, {wssize:#x}"); e("s_mov_b32 s39, 0x20000")
    def epoch():
        e(f"buffer_load_dword v124, off, {WS}, 0 offset:{WS_E} sc1")
    def oo_addr(dst, isA):
        e("v_and_b32 v9, 3, v0")
        if isA:
            e("v_lshlrev_b32 v9, 3, v9"); e("v_and_b32 v10, 48, v0"); e("v_lshl_add_u32 v9, v10, 2, v9")
            e(f"s_and_b32 s6, s{S_WAVE}, 1"); e("s_lshl_b32 s6, s6, 5"); e(f"s_and_b32 s7, s{S_WAVE}, 2"); e("s_lshl_b32 s7, s7, 1"); e("s_add_u32 s6, s6, s7")
        else:
            e("v_lshlrev_b32 v9, 2, v9"); e("v_and_b32 v10, 16, v0"); e("v_lshl_add_u32 v9, v10, 3, v9"); e("v_and_b32 v10, 32, v0"); e("v_lshl_add_u32 v9, v10, 1, v9")
            e(f"s_lshl_b32 s6, s{S_WAVE}, 4")
        e(f"v_add_u32 v{dst}, s6, v9")

    def rsetup():
        sk = g.newlab("Lrs")
        e(f"s_sub_u32 s15, s2, {0 if rrole == 0 else 128}")
        g.srd(32, 34, 2048)
        e("v_lshrrev_b32 v122, 2, v0"); e(f"v_mul_u32_u24 v122, {PS}, v122"); e("v_and_b32 v9, 3, v0"); e("v_lshl_add_u32 v122, v9, 4, v122")
        e("v_and_b32 v11, 15, v0"); e("v_and_b32 v10, 12, v0"); e("v_add_u32 v125, v11, v10"); e("v_lshlrev_b32 v125, 1, v125")
        e("s_cmp_ge_u32 s15, 64"); e(f"s_cbranch_scc1 {sk}")
        e("s_lshr_b32 s7, s15, 3"); e("s_and_b32 s5, s15, 7"); e("s_xor_b32 s5, s5, 4"); e("s_lshl_b32 s5, s5, 3"); e("s_add_u32 s5, s5, s7")
        e(f"s_lshl_b32 s6, s{S_WAVE}, 4"); e(f"s_mul_i32 s7, s{S_WAVE}, 14"); e("s_add_u32 s7, s7, 8")
        e(f"s_cmp_lt_u32 s{S_WAVE}, 4"); e("s_cselect_b32 s6, s6, s7"); e("s_cselect_b32 s45, -1, 0x00ffffff"); e("s_mov_b32 s44, -1")
        e(f"s_mul_i32 s6, s6, {PS}"); e(f"s_mul_i32 s9, s5, {RS}"); e("s_add_u32 s9, s9, s6"); e(f"s_add_u32 s9, s9, {WS_SP}")
        e("s_lshr_b32 s8, s5, 3"); e("s_lshl_b32 s8, s8, 8"); e("s_and_b32 s6, s5, 3"); e("s_lshl_b32 s6, s6, 6"); e("s_add_u32 s8, s8, s6")
        e("s_and_b32 s6, s5, 4"); e("s_lshl_b32 s6, s6, 1"); e("s_add_u32 s8, s8, s6")
        e(f"s_add_u32 s6, s8, {L_XR}"); e("v_add_u32 v10, s6, v125"); e("ds_read_u16 v126, v10")
        for r in range(4): e(f"v_mov_b32 v{44+r}, 0")
        e("v_lshrrev_b32 v10, 4, v0"); e("v_lshl_add_u32 v9, v9, 2, v10"); e("v_mul_u32_u24 v123, 48, v9"); e(f"s_lshl_b32 s6, s{S_WAVE}, 2"); e("v_add_u32 v123, s6, v123")
        e("v_mul_u32_u24 v124, 48, v11"); e("v_mov_b32 v127, 0"); e("v_mov_b32 v43, 1")
        e(f"s_mov_b32 s7, {SPIN + 1}")
        e("s_waitcnt lgkmcnt(0)")
        e("v_lshlrev_b32 v126, 16, v126")
        g.label(sk)
    if diag or probe: e("s_memrealtime s[98:99]")
    if probe: e("s_mov_b32 s96, 0")
    e(f"s_cmp_ge_u32 s2, {grid}"); e("s_cbranch_scc1 L_end")
    e("s_load_dwordx16 s[16:31], s[0:1], 0"); e("s_load_dwordx8 s[32:39], s[0:1], 64")
    e("v_lshrrev_b32 v1, 6, v0"); e("v_and_b32 v0, 63, v0")
    e(f"v_readfirstlane_b32 s{S_WAVE}, v1")
    e("s_mov_b32 s43, 0x20000")
    e("v_lshrrev_b32 v2, 4, v0"); e("v_and_b32 v3, 15, v0")
    if grid > 240: e("s_cmp_ge_u32 s2, 240"); e("s_cbranch_scc1 L_C")
    e(f"s_cmp_lt_u32 s{S_WAVE}, 4"); e("s_cbranch_scc1 L_X")

    e("s_setprio 3")
    e("v_lshlrev_b32 v1, 5, v0")
    e(f"s_lshl_b32 s9, s{S_WAVE}, 9"); e("s_sub_u32 s9, s9, 2048"); e("v_lshlrev_b32 v9, 3, v0")
    e("s_mov_b32 s42, 2048")
    e("s_waitcnt lgkmcnt(0)")
    e("s_mov_b32 s40, s16"); e("s_mov_b32 s41, s17")
    e("buffer_load_dwordx4 v[112:115], v1, s[40:43], 0 offen")
    e("buffer_load_dwordx4 v[116:119], v1, s[40:43], 0 offen offset:16")
    e("buffer_load_dwordx2 v[110:111], v9, s[40:43], s9 offen")
    ws_srd(); epoch()
    e("s_branch L_Y")

    g.label("L_X")
    e("s_cmp_ge_u32 s2, 128"); e("s_cbranch_scc1 L_BX")
    mapA(5); mapAq(59, 5)
    e("v_lshlrev_b32 v1, 17, v2"); e("v_lshl_add_u32 v1, v3, 4, v1")
    e("s_and_b32 s6, s59, 7"); e("s_lshl_b32 s6, s6, 1"); e(f"s_lshr_b32 s7, s{S_WAVE}, 1"); e("s_add_u32 s6, s6, s7")
    e("s_lshr_b32 s57, s59, 3"); e("s_lshl_b32 s57, s57, 1"); e(f"s_and_b32 s7, s{S_WAVE}, 1"); e("s_add_u32 s57, s57, s7")
    e("s_lshl_b32 s8, s6, 19"); e("s_lshl_b32 s7, s57, 8"); e("s_add_u32 s8, s8, s7")
    e("s_lshl_b32 s9, s6, 8")
    e("s_mov_b32 s42, 0x800000")
    e("s_waitcnt lgkmcnt(0)")
    e("s_mov_b32 s40, s22"); e("s_mov_b32 s41, s23")
    def issue_A(k):
        if k < 16:
            e(f"buffer_load_dwordx4 v[{V_W+4*k}:{V_W+4*k+3}], v1, s[40:43], s8 offen{NT}")
            if k < 15: e(f"s_add_u32 s8, s8, {8*8192}" if k % 2 == 0 else f"s_sub_u32 s8, s8, {7*8192}")
        else:
            isK = k < 24; late = k >= 24 + JV
            e(f"s_add_u32 m0, s50, s{58 if isK else 51}")
            e(f"s_add_u32 s49, s50, s{52 if late else 56}")
            e(f"buffer_load_dwordx4 v{121 if isK or late else 122}, {'s[44:47]' if isK else 's[60:63]'}, s49 offen{NT} lds")
            if k < 31: e("s_add_u32 s50, s50, 4096"); e("s_and_b32 s50, s50, 0x7000")
    for k in range(WA): issue_A(k)
    g.label("L_AX2")
    ws_srd(); epoch()
    e("s_setprio 3")
    g.note(0, 98)
    e("v_lshrrev_b32 v9, 3, v0"); e("v_lshl_add_u32 v120, v9, 5, s9")
    masks(g)
    g.srd(44, 18, 67108864); g.srd(60, 20, 67108864)
    e("s_lshr_b32 s56, s5, 5"); e(f"s_mul_i32 s50, s56, {rotg*4096}"); e("s_and_b32 s50, s50, 0x7000")
    e("s_lshl_b32 s56, s56, 24"); e("s_and_b32 s7, s5, 31"); e("s_lshl_b32 s7, s7, 15"); e("s_add_u32 s56, s56, s7")
    e(f"s_lshl_b32 s7, s{S_WAVE}, 10"); e("s_add_u32 s56, s56, s7"); e(f"s_add_u32 s56, s56, {61440*256}")
    e(f"s_add_u32 s58, s7, {L_K}"); e(f"s_add_u32 s51, s7, {L_V}")
    e(f"s_lshl_b32 s7, s{S_WAVE}, 2"); e("v_add_u32 v9, s7, v2")
    e("v_xor_b32 v10, v9, v3"); e("v_lshlrev_b32 v10, 4, v10"); e("v_lshl_add_u32 v121, v2, 8, v10")
    e("v_and_b32 v9, 7, v9"); e("v_lshlrev_b32 v10, 1, v9"); e("v_xor_b32 v10, v10, v3"); e("v_lshlrev_b32 v10, 4, v10")
    e("v_lshl_add_u32 v122, v2, 8, v10")
    e("s_lshr_b32 s6, s57, 3"); e("s_lshl_b32 s6, s6, 15"); e("s_and_b32 s57, s57, 7"); e("s_lshl_b32 s57, s57, 9"); e("s_add_u32 s57, s57, s6")
    e("s_and_b32 s6, s59, 7"); e("s_lshl_b32 s6, s6, 12"); e("s_add_u32 s57, s57, s6"); e(f"s_add_u32 s57, s57, {WS_QP}")
    e("v_lshlrev_b32 v125, 4, v0")
    e(f"s_lshl_b32 s6, s{S_WAVE}, 9"); e("v_add_u32 v126, s6, v125"); e("v_xor_b32 v127, 0x400, v126")
    def pos(k): return k if k < WA else k + 1
    nis = WA
    PRE = min(32, WA + PREA)
    role("AX")
    while nis < PRE:
        e(f"s_waitcnt vmcnt({WA-1})"); issue_A(nis); nis += 1; tr(nis - WA)
    e("s_barrier")
    for i in range(2):
        e(f"ds_read_b128 v[{V_XX+4*i}:{V_XX+4*i+3}], v120 offset:{L_XN + 16*i}")
    e("s_waitcnt lgkmcnt(1)")
    sel_half(g, 0, 0); sel_half(g, 0, 1)
    for i in range(16):
        if i == 4: e("s_waitcnt lgkmcnt(0)")
        gemv_pre(g, i, 16)
        e(f"s_waitcnt vmcnt({pos(nis-1) - pos(i)})")
        while nis < i + 1 + (WA if nis < 16 else WA2) and nis < 24 + JV:
            issue_A(nis); nis += 1
        gemv_mfma(g, i, V_W + 4 * i)
        if i + 1 > PRE - WA: tr(i + 1)
        if i == 14: make_tag(g)
    g.stamp(3)
    e(f"s_and_b32 s6, s{S_WAVE}, 1"); e("s_lshl_b32 s6, s6, 2"); e("v_mov_b32 v9, s6"); e("v_mov_b32 v10, 1")
    gemv_fin(g, 4)
    e(f"ds_write_b128 v126, v[{V_ACC}:{V_ACC+3}] offset:{L_RED}")
    e("s_mov_b32 exec_lo, 1")
    e(f"ds_add_rtn_u32 v10, v9, v10 offset:{L_CNT}")
    e("s_mov_b32 exec_lo, -1")
    e(f"ds_read_b128 v[24:27], v127 offset:{L_RED}")
    e("s_waitcnt lgkmcnt(1)")
    e("v_readfirstlane_b32 s6, v10")
    skip = g.newlab("Lnl")
    e("s_cmp_eq_u32 s6, 0"); e(f"s_cbranch_scc1 {skip}")
    e("s_waitcnt lgkmcnt(0)")
    for r in range(0, 4, 2): e(f"v_pk_add_f32 v[{20+r}:{21+r}], v[{20+r}:{21+r}], v[{24+r}:{25+r}]")
    tagput(g, V_ACC)
    if not dbg & 16 and not nost & 1: e(f"buffer_store_dwordx4 v[{V_ACC}:{V_ACC+3}], v125, {WS}, s57 offen {ST}")
    g.label(skip)
    e("s_mov_b64 exec, -1")
    while nis < 24 + JV:
        e(f"s_waitcnt vmcnt({WA2-1})"); issue_A(nis); nis += 1; tr(nis - WA2)
    e("v_mov_b32 v121, v122"); e("s_mov_b32 s52, s56")

    def att_pre():
        e("v_lshrrev_b32 v2, 4, v0"); e("v_and_b32 v3, 15, v0")
        e("v_xor_b32 v10, v2, v3"); e("v_lshlrev_b32 v10, 4, v10"); e("v_lshl_add_u32 v1, v3, 8, v10")
        e(f"s_lshl_b32 s6, s{S_WAVE}, 12")
        for s in range(4):
            e(f"v_xor_b32 v10, {64*s}, v1"); e(f"v_add_u32 v{43+4*s}, s6, v10")
        e("v_lshrrev_b32 v1, 2, v0"); e("v_and_b32 v9, 7, v1"); e(f"v_xor_b32 v9, s{S_WAVE}, v9"); e("v_lshlrev_b32 v9, 5, v9")
        e("v_and_b32 v10, 3, v0"); e("v_lshl_add_u32 v9, v10, 3, v9"); e("v_lshl_add_u32 v9, v1, 8, v9"); e(f"v_add_u32 v122, {L_V}, v9")
        e("v_and_b32 v1, 7, v0"); e("v_mul_u32_u24 v123, 272, v1"); e("v_lshl_add_u32 v123, v2, 4, v123")
        e("v_lshlrev_b32 v124, 2, v3")
        e(f"s_lshr_b32 s6, s{S_WAVE}, 1"); e("s_lshl_b32 s6, s6, 10"); e(f"s_and_b32 s7, s{S_WAVE}, 1"); e("s_lshl_b32 s7, s7, 3"); e("s_add_u32 s6, s6, s7")
        e("v_lshlrev_b32 v125, 4, v0"); e("v_add_u32 v126, s6, v125")
        e("v_lshlrev_b32 v127, 4, v3"); e("v_lshl_add_u32 v127, v2, 7, v127")
        e(f"s_mul_i32 s58, s5, {OS}"); e(f"s_lshl_b32 s7, s{S_WAVE}, 9"); e("s_add_u32 s58, s58, s7"); e(f"s_add_u32 s58, s58, {WS_OP}")
        e("v_mov_b32 v12, 0x3f803f80"); e("v_mov_b32 v13, v12"); e("v_mov_b32 v14, v12"); e("v_mov_b32 v15, v12")
        e("s_lshr_b32 s9, s5, 5"); e("s_lshl_b32 s9, s9, 15"); e("s_add_u32 s9, s9, s7"); e(f"s_add_u32 s9, s9, {WS_QP}")
        e("s_add_u32 s56, s9, 8192")
        e("v_lshrrev_b32 v9, 5, v0"); e("v_and_b32 v10, 31, v0"); e("v_lshlrev_b32 v16, 12, v9"); e("v_lshl_add_u32 v16, v10, 4, v16")
        e("v_add_u32 v17, 16384, v16")
        e(f"s_mul_i32 s6, s{S_WAVE}, 272"); e("v_lshlrev_b32 v18, 4, v3"); e("v_lshl_add_u32 v18, v9, 2, v18"); e("v_and_b32 v10, 1, v2")
        e("v_lshl_add_u32 v18, v10, 3, v18"); e("v_add_u32 v18, s6, v18")
    att_pre()
    if trace:
        for k in range(WA2 - 1, QW - 1, -1): e(f"s_waitcnt vmcnt({k})"); tr(24 + JV - k)
    e(f"s_waitcnt vmcnt({QW}) lgkmcnt(0)")
    g.label("L_att")
    e("s_barrier")
    g.stamp(1)
    def yload(k):
        e(f"buffer_load_dwordx4 v[{V_W+4*k}:{V_W+4*k+3}], v120, s[40:43], s8 offen{NT}")
        if k < 15: e("s_add_u32 s8, s8, 8192" if k % 4 != 3 else "s_add_u32 s8, s8, s57")
    ny = [0]
    def yissue(n):
        if not n: return
        lx = g.newlab("Lxp")
        e(f"s_cmp_lt_u32 s{S_WAVE}, 4"); e(f"s_cbranch_scc1 {lx}")
        for k in range(ny[0], ny[0] + n): yload(k)
        ny[0] += n
        g.label(lx)
    nq = 0 if dbg & 1 else 4
    def q_load(i):
        if nq: e(f"buffer_load_dwordx4 v[{24+4*i}:{27+4*i}], v{16 + (i >> 1)}, {WS}, {'s56' if i & 1 else 's9'} offen {LD}")
    def k_reads():
        for s in range(4): e(f"ds_read_b128 v[{40+4*s}:{43+4*s}], v{43+4*s} offset:{L_K}")
    def v_reads():
        for sg in range(4):
            for u in range(2):
                e(f"ds_read_b64_tr_b16 v[{104+4*sg+2*u}:{105+4*sg+2*u}], v122 offset:{8192*sg + 4096*u}")
    def v_wait():
        lx = g.newlab("Lxv")
        e(f"s_cmp_ge_u32 s{S_WAVE}, 4"); e(f"s_cbranch_scc1 {lx}")
        e("s_waitcnt vmcnt(0)")
        g.label(lx)
    def q_first():
        e("s_barrier")
        lx = g.newlab("Lxp"); ly = g.newlab("Lxq")
        e(f"s_cmp_lt_u32 s{S_WAVE}, 4"); e(f"s_cbranch_scc1 {lx}")
        for k in range(npe): yload(k)
        ny[0] = npe
        if KE: k_reads()
        e(f"s_waitcnt vmcnt({npe})")
        e(f"s_branch {ly}")
        g.label(lx)
        for k in range(24 + JV, 32): issue_A(k)
        if KE: k_reads()
        e(f"s_waitcnt vmcnt({8 - JV})")
        g.label(ly)
        yissue(nv)
    mpoll(g, 4, q_load, lambda i, dst: tagchk1(g, 24 + 4 * i, dst), 16, first=q_first, noretry=bool(dbg & 33))
    g.note(11, 7)
    g.stamp(2)
    for st in (8, 4):
        for r in range(0, st, 2): e(f"v_pk_add_f32 v[{24+r}:{25+r}], v[{24+r}:{25+r}], v[{24+st+r}:{25+st+r}]")
    g.nop(2)
    e("v_permlane32_swap_b32 v24, v26"); e("v_permlane32_swap_b32 v25, v27"); g.nop(1)
    e("v_pk_add_f32 v[24:25], v[24:25], v[26:27]")
    e("v_cvt_pk_bf16_f32 v24, v24, v25")
    e(f"ds_write_b32 v18, v24 offset:{L_Q}")
    yissue(NQ)
    e("s_waitcnt lgkmcnt(0)")
    e("s_barrier")
    g.stamp(5)
    if not KE: k_reads()
    for s in range(4):
        e(f"ds_read_b128 v[{24+4*s}:{27+4*s}], v123 offset:{L_Q + 64*s}")
    e("s_mov_b32 s6, 0x3db504f3")
    e("s_mov_b32 s7, 0x3fb8aa3b")
    for s in range(4):
        e(f"s_waitcnt lgkmcnt({3 - s})")
        c = "0" if s == 0 else "v[20:23]"
        e(f"v_mfma_f32_16x16x32_bf16 v[20:23], v[{40+4*s}:{43+4*s}], v[{24+4*s}:{27+4*s}], {c}")
    g.nop(8)
    e("v_max3_f32 v11, v20, v21, v22"); e("v_cvt_pk_bf16_f32 v9, v20, v21"); e("v_max_f32 v11, v11, v23")
    e(f"ds_max_f32 v124, v11 offset:{L_M}")
    e("v_cvt_pk_bf16_f32 v10, v22, v23")
    e("v_lshlrev_b32 v20, 16, v9"); e("v_and_b32 v21, 0xffff0000, v9"); e("v_lshlrev_b32 v22, 16, v10"); e("v_and_b32 v23, 0xffff0000, v10")
    for i in range(4): e(f"v_mul_f32 v{20+i}, s6, v{20+i}")
    yissue(nm)
    if vb == 1: v_wait()
    e("s_waitcnt lgkmcnt(0)")
    e("s_barrier")
    e(f"ds_read_b32 v11, v124 offset:{L_M}")
    if vb == 1: v_reads()
    e("v_cvt_pk_bf16_f32 v9, v20, v21"); e("v_cvt_pk_bf16_f32 v10, v22, v23")
    e("v_lshlrev_b32 v20, 16, v9"); e("v_and_b32 v21, 0xffff0000, v9"); e("v_lshlrev_b32 v22, 16, v10"); e("v_and_b32 v23, 0xffff0000, v10")
    e(f"s_waitcnt lgkmcnt({8 if vb == 1 else 0})")
    e("v_cvt_pk_bf16_f32 v11, v11, v11"); e("v_lshlrev_b32 v11, 16, v11"); e("v_mul_f32 v11, s6, v11")
    e("v_cvt_pk_bf16_f32 v11, v11, v11"); e("v_lshlrev_b32 v11, 16, v11")
    e("v_mul_f32 v11, s7, v11")
    for i in range(4): e(f"v_fma_f32 v{20+i}, v{20+i}, s7, -v11")
    for i in range(4): e(f"v_exp_f32 v{20+i}, v{20+i}")
    e("v_cvt_pk_bf16_f32 v20, v20, v21"); e("v_cvt_pk_bf16_f32 v21, v22, v23")
    e(f"ds_write_b64 v126, v[20:21] offset:{L_P}")
    yissue(np_)
    g.stamp(13)
    if vb == 2: v_wait()
    e("s_waitcnt lgkmcnt(0)")
    e("s_barrier")
    g.stamp(14)
    for sg in range(4):
        e(f"ds_read_b128 v[{40+4*sg}:{43+4*sg}], v125 offset:{L_P + 1024*sg}")
        if vb == 2:
            for u in range(2):
                e(f"ds_read_b64_tr_b16 v[{104+4*sg+2*u}:{105+4*sg+2*u}], v122 offset:{8192*sg + 4096*u}")
    e(f"v_mov_b32 v23, s{S_T[0]}")
    for sg in range(4):
        e(f"s_waitcnt lgkmcnt({(3 - sg) * (3 if vb == 2 else 1)})")
        e(f"v_mfma_f32_16x16x32_bf16 v[24:27], v[12:15], v[{40+4*sg}:{43+4*sg}], " + ("0" if sg == 0 else "v[24:27]"))
        e(f"v_mfma_f32_16x16x32_bf16 v[16:19], v[{104+4*sg}:{107+4*sg}], v[{40+4*sg}:{43+4*sg}], " + ("0" if sg == 0 else "v[16:19]"))
    e("s_mov_b32 exec_lo, 0x00ff00ff"); e("s_mov_b32 exec_hi, 0x00ff00ff")
    g.nop(5)
    e("v_rcp_f32 v9, v24"); e("v_log_f32 v10, v24")
    for r in range(4): e(f"v_mul_f32 v{16+r}, v9, v{16+r}")
    e("v_add_f32 v22, v11, v10")
    e("v_cvt_pk_bf16_f32 v20, v16, v17"); e("v_cvt_pk_bf16_f32 v21, v18, v19")
    if not dbg & 16 and not nost & 2: e(f"buffer_store_dwordx4 v[20:23], v127, {WS}, s58 offen {ST}")
    e("s_mov_b64 exec, -1")
    g.stamp(7)
    e(f"s_cmp_ge_u32 s{S_WAVE}, 4"); e("s_cbranch_scc1 L_YA2")
    mapAo(5)
    e("s_lshr_b32 s8, s5, 5"); e(f"s_mul_i32 s8, s8, {32*OS}"); e("s_bfe_u32 s6, s5, 0x30002"); e("s_lshl_b32 s6, s6, 9"); e("s_add_u32 s8, s8, s6")
    e("s_bfe_u32 s6, s5, 0x10001"); e("s_lshl_b32 s6, s6, 6"); e("s_add_u32 s8, s8, s6"); e(f"s_lshl_b32 s6, s{S_WAVE}, 7"); e("s_add_u32 s8, s8, s6")
    e(f"s_add_u32 s8, s8, {WS_OP}"); e(f"s_add_u32 s9, s8, {16*OS}")
    e("v_lshrrev_b32 v125, 2, v0"); e(f"v_mul_u32_u24 v125, {OS}, v125"); e("v_and_b32 v9, 3, v0"); e("v_lshl_add_u32 v125, v9, 4, v125")
    oo_addr(2, True)
    e("s_mov_b64 s[44:45], -1"); e("s_mov_b64 s[46:47], -1"); e(f"s_mov_b32 s7, {SPIN + 1}")
    if ackw & 1: e("s_waitcnt vmcnt(0)")
    g.stamp(6)
    def o_load(i):
        if not dbg & 2: e(f"buffer_load_dwordx4 v[{24+4*i}:{27+4*i}], v125, {WS}, s{8+i} offen {LD}")
    def o_check(i, dst): e(f"v_cmp_ne_u32 {dst}, s{S_T[0]}, v{27+4*i}")
    ipoll(g, 2, o_load, o_check, 44, noretry=bool(dbg & 34))
    g.note(12, 7)
    g.stamp(8)
    e("v_max_f32 v16, v26, v30")
    e("v_lshlrev_b32 v32, 16, v24"); e("v_and_b32 v33, 0xffff0000, v24")
    e("v_max_f32_dpp v16, v16, v16 row_ror:4 row_mask:0xf bank_mask:0xf")
    e("v_lshlrev_b32 v34, 16, v25"); e("v_and_b32 v35, 0xffff0000, v25")
    e("v_max_f32_dpp v16, v16, v16 row_ror:8 row_mask:0xf bank_mask:0xf")
    e("v_mov_b32 v9, v16")
    e("v_lshlrev_b32 v40, 16, v28"); e("v_and_b32 v41, 0xffff0000, v28")
    e("v_permlane16_swap_b32 v9, v16")
    g.nop(1)
    e("v_max_f32 v16, v9, v16")
    e("v_mov_b32 v9, v16")
    e("v_lshlrev_b32 v42, 16, v29"); e("v_and_b32 v43, 0xffff0000, v29")
    e("v_permlane32_swap_b32 v9, v16"); g.nop(1); e("v_max_f32 v16, v9, v16")
    e("v_sub_f32 v26, v26, v16"); e("v_sub_f32 v30, v30, v16")
    e("v_exp_f32 v26, v26"); e("v_exp_f32 v30, v30"); g.nop(1)
    e("v_add_f32 v36, v26, v30")
    for r in range(4): e(f"v_mul_f32 v{32+r}, v26, v{32+r}")
    for r in range(4): e(f"v_fmac_f32 v{32+r}, v30, v{40+r}")
    e("v_mov_b32 v37, v36"); g.nop(1)
    e("v_permlane32_swap_b32 v32, v34"); e("v_permlane32_swap_b32 v33, v35"); e("v_permlane32_swap_b32 v37, v36")
    e("v_add_f32 v32, v32, v34"); e("v_add_f32 v33, v33, v35"); e("v_add_f32 v36, v36, v37")
    e("v_mov_b32 v37, v36"); g.nop(1)
    e("v_permlane16_swap_b32 v32, v33"); e("v_permlane16_swap_b32 v37, v36"); g.nop(1)
    e("v_add_f32 v32, v32, v33"); e("v_add_f32 v36, v36, v37")
    for ror in (4, 8):
        g.nop(1)
        for r in (32, 36): e(f"v_add_f32_dpp v{r}, v{r}, v{r} row_ror:{ror} row_mask:0xf bank_mask:0xf")
    e("v_rcp_f32 v36, v36"); g.nop(1)
    e("v_mul_f32 v32, v36, v32")
    g.label("L_oo")
    e("v_cvt_pk_bf16_f32 v32, v32, v32")
    e(f"ds_write_b32 v2, v32 offset:{L_OO}")
    e("s_waitcnt lgkmcnt(0)")
    e("s_barrier")
    g.stamp(9)
    rsetup()
    e("s_branch L_R")

    g.label("L_BX")
    mapB(5)
    e(f"s_mov_b32 s6, {32*7168}"); e("v_mul_lo_u32 v1, v2, s6"); e("v_lshl_add_u32 v1, v3, 4, v1")
    e("s_bfe_u32 s9, s5, 0x30001")
    e(f"s_mul_i32 s8, s9, {128*7168}"); e("s_lshr_b32 s7, s5, 4"); e("s_lshl_b32 s7, s7, 2"); e(f"s_add_u32 s7, s7, s{S_WAVE}")
    e("s_lshl_b32 s56, s7, 9")
    e("s_lshl_b32 s7, s7, 8"); e("s_add_u32 s8, s8, s7")
    e("s_mov_b32 s42, 7340032")
    e("s_and_b32 s6, s5, 1"); e("s_cmp_eq_u32 s6, 0")
    e("s_waitcnt lgkmcnt(0)")
    e("s_cselect_b32 s40, s28, s30"); e("s_cselect_b32 s41, s29, s31")
    def issue_B(k):
        r = V_W + 4 * (k & 15)
        e(f"buffer_load_dwordx4 v[{r}:{r+3}], v1, s[40:43], s8 offen{NT}")
        if k < 31: e(f"s_add_u32 s8, s8, {16*7168}" if k % 2 == 0 else f"s_sub_u32 s8, s8, {15*7168}")
    for k in range(WB1): issue_B(k)
    g.label("L_BX2")
    ws_srd(); epoch()
    e("s_setprio 3")
    g.note(0, 98)
    e("s_lshl_b32 s7, s9, 9"); e("v_lshrrev_b32 v9, 3, v0"); e("v_lshl_add_u32 v120, v9, 6, s7")
    masks(g)
    e("s_lshl_b32 s6, s6, 3"); e("s_add_u32 s6, s6, s9"); e(f"s_mul_i32 s6, s6, {GS}"); e("s_add_u32 s56, s56, s6"); e(f"s_add_u32 s56, s56, {WS_GP}")
    e("v_lshlrev_b32 v121, 4, v0")
    e("v_lshrrev_b32 v122, 2, v0"); e(f"v_mul_u32_u24 v122, {GS}, v122"); e("v_and_b32 v9, 3, v0"); e("v_lshl_add_u32 v122, v9, 4, v122")
    mapBd(9)
    e("s_bfe_u32 s6, s9, 0x10001"); e("s_lshl_b32 s6, s6, 7"); e("s_lshr_b32 s9, s9, 2"); e("s_lshl_b32 s9, s9, 9"); e("s_add_u32 s9, s9, s6")
    e(f"s_and_b32 s6, s{S_WAVE}, 2"); e("s_lshl_b32 s6, s6, 7"); e("s_add_u32 s9, s9, s6"); e(f"s_and_b32 s6, s{S_WAVE}, 1"); e("s_lshl_b32 s6, s6, 6"); e("s_add_u32 s9, s9, s6")
    e(f"s_add_u32 s9, s9, {WS_GP}")
    oo_addr(2, False)
    def posb(k): return k if k < WB1 else k + 1
    nis = WB1
    PRE = min(15, WB1 + PREB)
    role("BX")
    while nis < PRE:
        e(f"s_waitcnt vmcnt({WB1-1})"); issue_B(nis); nis += 1; tr(nis - WB1)
    e("s_barrier")
    for i in range(4):
        e(f"ds_read_b128 v[{V_XX+4*i}:{V_XX+4*i+3}], v120 offset:{L_XN + 16*i}")
    e("s_waitcnt lgkmcnt(3)")
    sel_half(g, 0, 0); sel_half(g, 0, 1)
    b2done = False
    for i in range(32):
        if i == 4: e("s_waitcnt lgkmcnt(0)")
        gemv_pre(g, i, 32)
        e(f"s_waitcnt vmcnt({posb(nis-1) - posb(i)})")
        W = WB1 if i < WBsw else (WB2 if i < WBsw3 else WB3)
        while nis < 32 and nis < i + 1 + W:
            issue_B(nis); nis += 1
        if nis == 32 and not b2done and 31 - i <= HB:
            e("s_barrier"); b2done = True
        gemv_mfma(g, i, V_W + 4 * (i & 15))
        if i + 1 > PRE - WB1: tr(i + 1)
        if i == 20: make_tag(g)
    g.stamp(3)
    gemv_fin(g)
    tagput(g, V_ACC)
    if not dbg & 16 and not nost & 4: e(f"buffer_store_dwordx4 v[20:23], v121, {WS}, s56 offen {ST}")
    e("s_mov_b64 exec, -1")
    if not b2done: e("s_barrier")
    e("s_mov_b64 s[44:45], -1"); e(f"s_mov_b32 s7, {SPIN + 1}")
    if ackw & 2: e("s_waitcnt vmcnt(0)")
    g.stamp(6)
    def h_load(i):
        if not dbg & 4: e(f"buffer_load_dwordx4 v[28:31], v122, {WS}, s9 offen {LD}")
    ipoll(g, 1, h_load, lambda i, dst: tagchk1(g, 28, dst), 44, noretry=bool(dbg & 36))
    g.note(11, 7)
    g.stamp(5)
    e("v_permlane16_swap_b32 v28, v30"); e("v_permlane16_swap_b32 v29, v31"); g.nop(1)
    e("v_add_f32 v28, v28, v30"); e("v_add_f32 v29, v29, v31")
    for ror in (4, 8):
        g.nop(1)
        for r in (28, 29): e(f"v_add_f32_dpp v{r}, v{r}, v{r} row_ror:{ror} row_mask:0xf bank_mask:0xf")
    g.nop(2)
    e("v_permlane32_swap_b32 v28, v29")
    g.nop(1)
    e("v_cvt_pk_bf16_f32 v28, v28, v29")
    e("v_lshlrev_b32 v32, 16, v28"); e("v_mul_f32 v32, 0xbfb8aa3b, v32"); e("v_exp_f32 v32, v32")
    e("v_and_b32 v29, 0xffff0000, v28")
    e("v_add_f32 v32, 1.0, v32"); e("v_rcp_f32 v32, v32"); g.nop(1)
    e("v_cvt_pk_bf16_f32 v32, v32, v32"); e("v_lshlrev_b32 v32, 16, v32")
    e("v_mul_f32 v32, v32, v29")
    e("s_branch L_oo")

    g.label("L_Y")
    g.note(0, 98)
    e("s_lshl_b32 s9, s9, 1"); e("v_lshl_add_u32 v122, v0, 4, s9")
    e("v_mov_b32 v9, 0"); e("v_mov_b32 v44, 0"); e("v_mov_b32 v45, 0"); e("v_mov_b32 v46, 0"); e("v_mov_b32 v47, 0")
    e(f"ds_write_b128 v9, v[44:47] offset:{L_CNT}")
    e("v_lshlrev_b32 v10, 2, v3"); e("v_mov_b32 v11, 0xff800000"); e(f"ds_write_b32 v10, v11 offset:{L_M}")
    e("v_lshlrev_b32 v120, 11, v2"); e("v_lshl_add_u32 v120, v3, 4, v120")
    e("v_lshrrev_b32 v121, 2, v0"); e(f"v_mul_u32_u24 v121, {RS}, v121"); e("v_and_b32 v10, 3, v0"); e("v_lshl_add_u32 v121, v10, 4, v121")
    e("v_mov_b32 v12, 0x3f803f80"); e("v_mov_b32 v10, 0"); e("v_mov_b32 v11, 0x3a800000")
    e("s_waitcnt vmcnt(1)")
    e("v_lshrrev_b32 v1, 1, v122"); e(f"v_add_u32 v1, {L_XR}, v1"); e("ds_write_b64 v1, v[110:111]")
    layernorm(g, 112, 110)
    e(f"ds_write_b128 v122, v[24:27] offset:{L_XN}")
    e("s_waitcnt lgkmcnt(0) vmcnt(0)")
    g.stamp(6)
    e("s_barrier")
    make_tag(g)
    masks(g)
    def ysetup(pbase):
        e("s_lshr_b32 s9, s5, 1")
        if pbase == 0:
            e("s_lshr_b32 s8, s5, 5"); e("s_lshl_b32 s8, s8, 21"); e("s_bfe_u32 s6, s5, 0x10001"); e("s_lshl_b32 s6, s6, 20"); e("s_add_u32 s8, s8, s6")
            e("s_bfe_u32 s6, s5, 0x30002"); e("s_lshl_b32 s6, s6, 15"); e("s_add_u32 s8, s8, s6"); e(f"s_mov_b32 s57, {116*2048}")
        else:
            e("s_lshl_b32 s8, s9, 17"); e("s_movk_i32 s57, 8192")
        e("s_and_b32 s6, s5, 1"); e("s_lshl_b32 s6, s6, 2")
        e(f"s_add_u32 s6, s6, s{S_WAVE}"); e("s_sub_u32 s6, s6, 4")
        e("s_lshl_b32 s7, s6, 8"); e("s_add_u32 s8, s8, s7")
        e(f"s_mul_i32 s59, s6, {8*RS}"); e(f"s_mul_i32 s9, s9, {PS}"); e("s_add_u32 s59, s59, s9"); e(f"s_add_u32 s59, s59, {WS_SP + pbase*PS}")
    e("s_cmp_ge_u32 s2, 128"); e("s_cbranch_scc1 L_YB2")
    mapAo(5); ysetup(0)
    e("s_mov_b32 s40, s24"); e("s_mov_b32 s41, s25"); e("s_mov_b32 s42, 0x800000")
    mapA(5)
    att_pre()
    e("s_branch L_att")
    def ystream(k0, W1, N1, W2, gate):
        for k in range(k0, 16):
            if gate and k == max(N1, k0): e("s_barrier")
            W = W1 if k < N1 else W2
            if k >= W: e(f"s_waitcnt vmcnt({W-1})")
            yload(k)
            if k >= W: tr(k + 1 - W)
        if gate and max(N1, k0) >= 16: e("s_barrier")
        if trace:
            for k in range(min(W, 16) - 1, -1, -1): e(f"s_waitcnt vmcnt({k})"); tr(16 - k)
    g.label("L_YB2")
    mapBd(5); ysetup(64)
    e("s_mov_b32 s40, s32"); e("s_mov_b32 s41, s33"); e("s_mov_b32 s42, 7340032")
    e("s_setprio 0")
    e("s_barrier")
    g.stamp(2)
    role("BY"); ystream(0, WYB, N1B, W2B, 0)
    e("s_branch L_YL3")
    g.label("L_YA2")
    e("s_setprio 0")
    role("AY"); ystream(NPRE, WYA, N1A, W2A, 0)
    g.label("L_YL3")
    g.stamp(3)
    rsetup()
    e("s_setprio 3")
    e("v_and_b32 v9, 56, v0"); e("v_lshlrev_b32 v9, 2, v9")
    e("s_barrier")
    g.stamp(4)
    for i in range(2):
        e(f"ds_read_b128 v[{V_XX+4*i}:{V_XX+4*i+3}], v9 offset:{L_OO + 16*i}")
    e("s_waitcnt lgkmcnt(1)")
    sel_half(g, 0, 0); sel_half(g, 0, 1)
    for i in range(16):
        gemv_pre(g, i, 16)
        e(f"s_waitcnt vmcnt({15-i})" + (" lgkmcnt(0)" if i == 4 else ""))
        gemv_mfma(g, i, V_W + 4 * i)
    gemv_fin(g)
    tagput(g, V_ACC)
    if not dbg & 16 and not nost & 8: e(f"buffer_store_dwordx4 v[{V_ACC}:{V_ACC+3}], v121, {WS}, s59 offen {ST}")
    e("s_mov_b64 exec, -1")
    g.stamp(9)

    g.label("L_R")
    e(f"s_cmp_ge_u32 s15, 64"); e("s_cbranch_scc1 L_fin")
    if dbg & 256: e("s_branch L_fin")
    if rack: e("s_waitcnt vmcnt(0)")
    e("s_barrier")
    g.stamp(13)
    def r_load(i): e(f"buffer_load_dwordx4 v[44:47], v122, {WS}, s9 offen {LD}")
    ipoll(g, 1, r_load, lambda i, dst: tagchk1(g, 44, dst), 44, noretry=bool(dbg & 8))
    g.note(15, 7)
    g.stamp(14)
    e("v_permlane32_swap_b32 v44, v46"); e("v_permlane32_swap_b32 v45, v47"); g.nop(1)
    e("v_add_f32 v44, v44, v46"); e("v_add_f32 v45, v45, v47"); g.nop(2)
    e("v_permlane16_swap_b32 v44, v45"); g.nop(1)
    e("v_add_f32 v44, v44, v45")
    for ror in (4, 8):
        g.nop(2); e(f"v_add_f32_dpp v44, v44, v44 row_ror:{ror} row_mask:0xf bank_mask:0xf")
    e(f"ds_write_b32 v123, v44 offset:{L_RED}")
    e("s_mov_b64 exec, 1")
    e(f"ds_add_rtn_u32 v43, v127, v43 offset:{L_CNT + 8}")
    e("s_mov_b64 exec, -1")
    e(f"ds_read_b128 v[28:31], v124 offset:{L_RED + 16}"); e(f"ds_read_b128 v[24:27], v124 offset:{L_RED}")
    e("s_waitcnt lgkmcnt(2)")
    e("v_readfirstlane_b32 s6, v43")
    e("s_waitcnt lgkmcnt(1)")
    e("s_cmp_lg_u32 s6, 7"); e("s_cbranch_scc1 L_fin")
    e("v_add_f32 v28, v28, v29"); e("v_add_f32 v30, v30, v31"); e("v_add_f32 v28, v28, v30")
    e("v_cvt_pk_bf16_f32 v28, v28, v28"); e("v_lshlrev_b32 v28, 16, v28")
    e("v_mul_f32 v10, 0xbfb8aa3b, v28"); e("v_exp_f32 v10, v10")
    e("s_waitcnt lgkmcnt(0)")
    e("v_add_f32 v24, v24, v25"); e("v_add_f32 v10, 1.0, v10"); e("v_rcp_f32 v10, v10")
    e("v_add_f32 v26, v26, v27"); e("v_add_f32 v24, v24, v26")
    e("v_mul_f32 v10, v28, v10")
    e("v_cvt_pk_bf16_f32 v10, v10, v24")
    e("v_and_b32 v24, 0xffff0000, v10"); e("v_lshlrev_b32 v10, 16, v10")
    e("v_mul_f32 v10, v24, v10")
    e("v_cvt_pk_bf16_f32 v10, v10, v10"); e("v_lshlrev_b32 v10, 16, v10")
    e("v_add_f32 v10, v126, v10")
    pol = ["", " sc1", " nt", " sc0 sc1"][ost & 3]
    e("s_mov_b64 exec, 0xffff")
    e("v_cvt_pk_bf16_f32 v10, v10, v10")
    e("buffer_store_short v10, v125, s[32:35], s8 offen" + pol)
    e("s_mov_b64 exec, -1")
    if probe and pidx < 0: e("s_waitcnt vmcnt(0)"); e("s_memrealtime s[96:97]")

    e("s_cmp_lg_u32 s5, 0"); e("s_cbranch_scc1 L_fin")
    e("s_mov_b64 exec, 1")
    e(f"v_mov_b32 v10, s{S_T[0]}")
    e(f"buffer_store_dword v10, off, {WS}, 0 offset:{WS_E} sc1")
    e("s_mov_b64 exec, -1")
    e("s_branch L_fin")

    g.label("L_C")
    e("s_getpc_b64 s[60:61]")
    g.label("L_pc")
    e(f"s_sub_u32 s60, s60, L_pc-{NAME}_kernel"); e("s_subb_u32 s61, s61, 0")
    e(f"s_lshl_b32 s6, s{S_WAVE}, 11"); e("v_lshl_add_u32 v9, v0, 5, s6")
    e(f"v_min_u32 v9, L_fail-{NAME}_kernel, v9")
    if cpf: e("global_load_dword v10, v9, s[60:61]")
    g.label("L_C0")
    if diag or pw:
        e("s_waitcnt lgkmcnt(0)"); ws_srd(); g.note(0, 98)
    if pw:
        if pwd:
            lpd = g.newlab("Lcd"); e(f"s_mov_b32 s7, {pwd}"); g.label(lpd); e("s_sleep 16"); e("s_sub_u32 s7, s7, 1"); e("s_cmp_lg_u32 s7, 0"); e(f"s_cbranch_scc1 {lpd}")
        e("s_and_b32 s5, s2, 7"); e("s_lshl_b32 s5, s5, 1"); e("s_bfe_u32 s6, s2, 0x10003"); e("s_add_u32 s5, s5, s6")
        e(f"s_lshl_b32 s5, s5, 3"); e(f"s_add_u32 s5, s5, s{S_WAVE}")
        e("v_lshlrev_b32 v1, 6, v0")
        if pw & 1:
            e("s_mul_i32 s6, s5, 3840"); e(f"s_add_u32 s6, s6, {WS_SP}"); e(f"buffer_load_dword v10, v1, {WS}, s6 offen")
        if pw & 2:
            e(f"s_mul_i32 s6, s5, {OS}"); e(f"s_add_u32 s6, s6, {WS_OP}"); e(f"buffer_load_dword v11, v1, {WS}, s6 offen")
    g.label("L_fin")
    if probe:
        def until(lab, base, t):
            g.label(lab); e("s_sleep 4"); e("s_memrealtime s[92:93]"); e("s_waitcnt lgkmcnt(0)"); e(f"s_sub_u32 s92, s92, {base}"); e(f"s_cmp_lt_u32 s92, {t}"); e(f"s_cbranch_scc1 {lab}")
        e("s_waitcnt lgkmcnt(0)")
        e(f"s_cmp_lt_u32 s2, {pw0}"); e("s_cselect_b32 s96, 0, s96"); e(f"s_cmp_ge_u32 s2, {pw1}"); e("s_cselect_b32 s96, 0, s96")
        e(f"s_cmp_lt_u32 s{S_WAVE}, {pv0}"); e("s_cselect_b32 s96, 0, s96"); e(f"s_cmp_ge_u32 s{S_WAVE}, {pv1}"); e("s_cselect_b32 s96, 0, s96")
        e("s_cmp_lg_u32 s96, 0"); e("s_cbranch_scc1 L_q5")
        e(f"s_cmp_lg_u32 s{S_WAVE}, 0"); e("s_cbranch_scc1 L_end")
        g.label("L_q5")
        e("s_load_dwordx2 s[90:91], s[0:1], 80")
        until("L_q0", "s98", 1600)
        e("s_not_b32 s6, s98"); e("s_atomic_umax s6, s[90:91], 128")
        e("s_mov_b32 s6, s96"); e("s_atomic_umax s6, s[90:91], 192")
        e("s_cmp_lg_u32 s2, 100"); e("s_cbranch_scc1 L_end"); e(f"s_cmp_lg_u32 s{S_WAVE}, 0"); e("s_cbranch_scc1 L_end")
        until("L_q3", "s98", 4000 if pidx < 0 else 7000)
        e("s_load_dword s8, s[90:91], 128 glc"); e("s_load_dword s9, s[90:91], 192 glc"); e("s_waitcnt lgkmcnt(0)")
        e("s_not_b32 s8, s8"); e("s_sub_u32 s9, s9, s8"); e("s_min_u32 s9, s9, 3000"); e("s_mul_i32 s9, s9, 10"); e(f"s_add_u32 s9, s9, {0 if pidx < 0 else 8000}")
        g.label("L_q4"); e("s_memrealtime s[92:93]"); e("s_waitcnt lgkmcnt(0)"); e("s_sub_u32 s92, s92, s8"); e("s_cmp_lt_u32 s92, s9"); e("s_cbranch_scc1 L_q4")
    if diag:
        e("s_waitcnt vmcnt(0)")
        g.stamp(10)
        e("s_lshl_b32 s6, s2, 3"); e(f"s_add_u32 s6, s6, s{S_WAVE}"); e("s_lshl_b32 s6, s6, 8"); e(f"s_add_u32 s6, s6, {WS_DIAG}")
        e("v_lshlrev_b32 v1, 2, v0")
        e(f"buffer_store_dword v128, v1, {WS}, s6 offen")
    g.label("L_end")
    e("s_endpgm")
    g.L += g.tail
    g.label("L_fail")
    e("s_endpgm")
    nv = 136 if diag else 128
    g.L += ['.section .rodata,"a"', ".p2align 6", f".amdhsa_kernel {NAME}_kernel",
            f"  .amdhsa_next_free_vgpr {nv}", f"  .amdhsa_next_free_sgpr {64 if final else 102}", f"  .amdhsa_accum_offset {nv}",
            "  .amdhsa_group_segment_fixed_size 0", "  .amdhsa_kernarg_size 96", "  .amdhsa_user_sgpr_count 2",
            "  .amdhsa_user_sgpr_kernarg_segment_ptr 1", "  .amdhsa_system_sgpr_workgroup_id_x 1",
            ".end_amdhsa_kernel"]
    if heads:
        L = g.L
        def cut(a, b):
            i = L.index(a); j = L.index(b); blk = L[i:j]; del L[i:j]; return blk
        bh = cut("L_BX:", "L_BX2:") + ["  s_branch L_BX2"]
        i = L.index("L_AX2:"); L[i:i] = ["  s_branch L_AX2"] + bh
        ch = cut("L_C:", "L_C0:") + ["  s_branch L_C0"]
        i = L.index("L_X:")
        if grid > 240: L[i:i] = ch
    out = "\n".join(x for x in g.L if x is not None) + "\n"
    if not diag and not probe: out = out.replace("  s_branch L_fin\n", "  s_endpgm\n")
    return out

F = [("AX:st",0,128,0,4,0),("wq",0,128,0,4,3),("ba",0,128,0,4,1),("gotq",0,128,0,8,2),("bq",0,128,0,4,5),("sm",64,128,0,8,13),("bp",64,128,0,8,14),("pubo",0,128,0,8,7),("gath",0,128,0,4,6),("goto",0,128,0,4,8),
     ("AY:ln",0,128,4,8,6),("iss",0,128,4,8,3),("bo",0,128,4,8,4),("pub",0,128,4,8,9),
     ("BX:gu",128,240,0,4,3),("gath",128,240,0,4,6),("goth",128,240,0,4,5),
     ("BY:go",128,240,4,8,2),("iss",128,240,4,8,3),("bo",128,240,4,8,4),("pub",128,240,4,8,9),
     ("R:go",128,192,0,8,13),("got",128,192,0,8,14),("end",0,240,0,8,10)]
POLLS = [("q", 0, 128, 0, 8, 11), ("o", 0, 128, 0, 4, 12), ("h", 128, 240, 0, 4, 11), ("fin", 128, 192, 0, 8, 15)]

def valid(c):
    return c.get("npe", 4) + c.get("nv", 0) + c.get("nm", 0) + c.get("np_", 0) <= c.get("NPRE", 4) <= 12 and c.get("WA", 8) <= 14

def parse(cfg):
    kw = {}
    for t in cfg.split(","):
        if not t: continue
        k, v = t.split("=")
        kw[k] = v if k in ("NT",) else int(v)
    return kw

if __name__ == "__main__":
    open(sys.argv[1], "w").write(gen(**parse(sys.argv[2] if len(sys.argv) > 2 else "")))
```

```python
import sys
NAME = "recurrent_scan__sliding_block_cached__glu_gated_glu__decode"
HEADER = open("cdna_kernels/" + NAME + ".s.ref").read().split("; @launch")[0]
NEWDIAG = 1

WS_E  = 0x0
WS_QP = 0x1000
WS_GP = 0x21000
WS_OP = 0x60000
WS_SP = 0xE8000
WS_USED = 0x168000
WS_DIAG = 0x1000000
L_CNT = 0
L_M   = 64
L_OO  = 512
L_RED = 2048
L_Q   = 4096
L_XN  = 8192
L_P   = 8192
L_K   = 12288
L_V   = 45056
L_XR  = 77824
LDS_BYTES = 79872
SPIN = 200000
SPIN_FINAL = 4000000

DOC = """\
; ---------------------------------------------------------------------------------------------------------
;
; ---------------------------------------------------------------------------------------------------------
"""

class G:
    def __init__(s, diag):
        s.L = []; s.tail = []; s.pidx = -1; s.diag = diag; s.lab = 0
    def e(s, t): s.L.append("  " + t)
    def label(s, n): s.L.append(n + ":")
    def newlab(s, p="L"):
        s.lab += 1; return f"{p}_{s.lab}"
    def nop(s, n):
        while n > 0:
            k = min(n, 16); s.e(f"s_nop {k-1}"); n -= k
    def stamp(s, i):
        if i == s.pidx: s.e("s_memrealtime s[96:97]")
        if s.diag:
            s.e("s_memrealtime s[100:101]"); s.e("s_waitcnt lgkmcnt(0)"); s.e(f"v_writelane_b32 v128, s100, {i}")
    def note(s, i, sreg):
        if s.diag: s.e(f"v_writelane_b32 v128, s{sreg}, {i}")
    def srd(s, d, lo, size):
        s.e(f"s_mov_b32 s{d}, s{lo}"); s.e(f"s_mov_b32 s{d+1}, s{lo+1}")
        s.e(f"s_mov_b32 s{d+2}, {size:#x}"); s.e(f"s_mov_b32 s{d+3}, 0x20000")

S_WAVE = 4
S_T = [10]
S_N = [11, 12, 13, 14]
WS = "s[36:39]"; WSP = "s[36:37]"
SLOTS = [16, 48, 64, 80]
V_M = 4; V_FF = 8; V_TMP = 12; V_ACC = 20; V_XX = 24; V_ACC1 = 48; V_W = 56

def tagput(g, r):
    for i in range(4): g.e(f"v_add_u32 v{r+i}, 8, v{r+i}")
    for i in range(4): g.e(f"v_bfi_b32 v{r+i}, 15, s{S_N[i]}, v{r+i}")

def wave_sum(g, v, sdst, fill=()):
    fill = list(fill)
    def pad(n):
        for _ in range(n):
            if fill: g.e(fill.pop(0))
            else: g.nop(1)
    for ror in (8, 4, 2, 1):
        pad(2); g.e(f"v_add_f32_dpp v{v}, v{v}, v{v} row_ror:{ror} row_mask:0xf bank_mask:0xf")
    pad(2); g.e(f"v_add_f32_dpp v{v}, v{v}, v{v} row_bcast:15 row_mask:0xa bank_mask:0xf")
    pad(2); g.e(f"v_add_f32_dpp v{v}, v{v}, v{v} row_bcast:31 row_mask:0xc bank_mask:0xf")
    pad(1); g.e(f"v_readlane_b32 s{sdst}, v{v}, 63")
    pad(2)
    for f in fill: g.e(f)

def xreduce(g, op, regs, tmps, steps=(16, 32)):
    for st in steps:
        for r, t in zip(regs, tmps): g.e(f"v_mov_b32 v{t}, v{r}")
        if len(regs) < 3: g.nop(3 - len(regs))
        for r, t in zip(regs, tmps): g.e(f"v_permlane{st}_swap_b32 v{t}, v{r}")
        if len(regs) < 2: g.nop(1)
        for r, t in zip(regs, tmps): g.e(f"{op} v{r}, v{t}, v{r}")

def layernorm(g, xr, xm):
    U = 28
    for i in range(8): g.e(f"v_dot2c_f32_bf16 v{9 + (i & 1)}, v12, v{xr+i}")
    unp = []
    for i in range(8):
        unp += [f"v_lshlrev_b32 v{U+2*i}, 16, v{xr+i}", f"v_and_b32 v{U+2*i+1}, 0xffff0000, v{xr+i}"]
    for _ in range(3): g.e(unp.pop(0))
    g.e("v_add_f32 v9, v9, v10")
    wave_sum(g, 9, 6, unp)
    g.e("v_mul_f32 v2, s6, v11"); g.e("v_mul_f32 v3, s6, v11")
    for i in range(0, 16, 2):
        g.e(f"v_pk_add_f32 v[{U+i}:{U+i+1}], v[{U+i}:{U+i+1}], v[2:3] neg_lo:[0,1] neg_hi:[0,1]")
    for i in range(0, 16, 2):
        a = 44 + 2 * ((i >> 1) & 1)
        g.e(f"v_pk_fma_f32 v[{a}:{a+1}], v[{U+i}:{U+i+1}], v[{U+i}:{U+i+1}], v[{a}:{a+1}]")
    g.e("v_pk_add_f32 v[44:45], v[44:45], v[46:47]")
    g.e("v_add_f32 v9, v44, v45")
    fill = [f"v_lshlrev_b32 v24, 16, v{xm}", f"v_and_b32 v25, 0xffff0000, v{xm}", f"v_lshlrev_b32 v26, 16, v{xm+1}", f"v_and_b32 v27, 0xffff0000, v{xm+1}",
            "v_cvt_pk_bf16_f32 v3, v3, v3", "v_lshlrev_b32 v3, 16, v3"] + [f"v_sub_f32 v{24+i}, v{24+i}, v3" for i in range(4)] + \
           ["v_cvt_pk_bf16_f32 v10, v24, v25", "v_cvt_pk_bf16_f32 v2, v26, v27", "v_lshlrev_b32 v24, 16, v10", "v_and_b32 v25, 0xffff0000, v10", "v_lshlrev_b32 v26, 16, v2"]
    wave_sum(g, 9, 6, fill)
    g.e("v_mul_f32 v9, s6, v11")
    g.e("v_cvt_pk_bf16_f32 v9, v9, v9"); g.e("v_lshlrev_b32 v9, 16, v9")
    g.e("v_add_f32 v9, 0x3727c5ac, v9")
    g.e("v_cvt_pk_bf16_f32 v9, v9, v9"); g.e("v_lshlrev_b32 v9, 16, v9")
    g.e("v_sqrt_f32 v9, v9")
    g.e("v_and_b32 v27, 0xffff0000, v2")
    g.e("v_cvt_pk_bf16_f32 v9, v9, v9"); g.e("v_lshlrev_b32 v9, 16, v9")
    g.e("v_rcp_f32 v9, v9"); g.nop(1)
    for i in range(4): g.e(f"v_mul_f32 v{24+i}, v{24+i}, v9")
    for i in range(4): g.e(f"v_cvt_pk_bf16_f32 v{24+i}, v{24+i}, v{24+i}")

def sel_half(g, m, h):
    t = V_TMP + 4 * (m & 1)
    for r in (2 * h, 2 * h + 1): g.e(f"v_and_b32 v{t+r}, v{V_XX+m}, v{V_M+r}")
def gemv_mfma(g, i, w):
    t = V_TMP + 4 * ((i >> 1) & 1); a = V_ACC1 if i & 1 else V_ACC
    c = "0" if i < 2 else f"v[{a}:{a+3}]"
    g.e(f"v_mfma_f32_16x16x32_bf16 v[{a}:{a+3}], v[{t}:{t+3}], v[{w}:{w+3}], {c}")
def gemv_pre(g, i, n):
    m = (i >> 1) + 1
    if 2 * m < n: sel_half(g, m, i & 1)
def gemv_fin(g, pad=8):
    g.nop(pad)
    for r in range(4): g.e(f"v_permlane32_swap_b32 v{V_ACC1+r}, v{V_XX+r}")
    g.e("s_mov_b32 exec_hi, 0")
    for r in (0, 2): g.e(f"v_pk_add_f32 v[{V_ACC+r}:{V_ACC+r+1}], v[{V_ACC+r}:{V_ACC+r+1}], v[{V_XX+r}:{V_XX+r+1}]")

def mpoll(g, n, load, check, sbase, first=None, noretry=False):
    e = g.e
    rt = g.newlab("Lrt"); lp = g.newlab("Lrl"); ok = g.newlab("Lok")
    M = lambda i: f"s[{sbase+2*i}:{sbase+2*i+1}]"
    def anymiss():
        if n == 1: e(f"s_cmp_lg_u64 {M(0)}, 0")
        else:
            e(f"s_or_b64 vcc, {M(0)}, {M(1)}")
            for i in range(2, n): e(f"s_or_b64 vcc, vcc, {M(i)}")
    for i in range(n): load(i)
    if g.diag: e(f"s_mov_b32 s7, {SPIN}")
    if first: first()
    else: e("s_waitcnt vmcnt(0)")
    for i in range(n): check(i, M(i))
    anymiss()
    if not noretry: e(f"s_cbranch_scc1 {rt}")
    g.label(ok)
    main = g.L; g.L = g.tail
    g.label(rt)
    e(f"s_mov_b32 s7, {SPIN}")
    g.label(lp)
    for i in range(n):
        e(f"s_wqm_b64 exec, {M(i)}")
        if n > 1:
            sk = g.newlab("Lms"); e(f"s_cbranch_execz {sk}"); load(i); g.label(sk)
        else: load(i)
    e("s_sub_u32 s7, s7, 1"); e("s_cbranch_scc1 L_fail")
    e("s_waitcnt vmcnt(0)")
    for i in range(n):
        if n > 1: e(f"s_wqm_b64 exec, {M(i)}")
        check(i, M(i))
    anymiss()
    e(f"s_cbranch_scc1 {lp}")
    e("s_mov_b64 exec, -1")
    e(f"s_branch {ok}")
    g.L = main

def ipoll(g, n, load, check, sbase, noretry=False):
    e = g.e
    lp = g.newlab("Lil")
    M = lambda i: f"s[{sbase+2*i}:{sbase+2*i+1}]"
    g.label(lp)
    for i in range(n):
        e(f"s_wqm_b64 exec, {M(i)}")
        if n > 1:
            sk = g.newlab("Lms"); e(f"s_cbranch_execz {sk}"); load(i); g.label(sk)
        else: load(i)
    e("s_sub_u32 s7, s7, 1"); e("s_cbranch_scc1 L_fail")
    e("s_waitcnt vmcnt(0)")
    for i in reversed(range(n)):
        if i < n - 1: e(f"s_wqm_b64 exec, {M(i)}")
        check(i, M(i))
    e("s_mov_b64 exec, -1")
    if n == 1: e(f"s_cmp_lg_u64 {M(0)}, 0")
    else: e(f"s_or_b64 vcc, {M(0)}, {M(1)}")
    if not noretry: e(f"s_cbranch_scc1 {lp}")

def tagchk1(g, r, dst):
    for i in range(4): g.e(f"v_xor_b32 v{r+i}, s{S_N[i]}, v{r+i}")
    g.e(f"v_or3_b32 v9, v{r}, v{r+1}, v{r+2}")
    g.e(f"v_bitop3_b32 v9, v9, v{r+3}, 15 bitop3:0xa8")
    g.e(f"v_cmp_ne_u32 {dst}, 0, v9")

def make_tag(g):
    g.e(f"v_readfirstlane_b32 s{S_T[0]}, v124")
    g.nop(1)
    g.e(f"s_add_u32 s{S_T[0]}, s{S_T[0]}, 0x9e3779b9")
    for i in range(4): g.e(f"s_bfe_u32 s{S_N[i]}, s{S_T[0]}, {0x40000 + 4*i:#x}")

def masks(g):
    e = g.e
    e("v_and_b32 v9, 1, v0"); e("v_lshlrev_b32 v9, 4, v9"); e("v_mov_b32 v10, 0xffff"); e("v_lshlrev_b32 v10, v9, v10")
    e("v_bfe_u32 v9, v0, 1, 2")
    for r in range(4):
        e(f"v_cmp_eq_u32 vcc, {r}, v9"); g.nop(2); e(f"v_cndmask_b32 v{V_M+r}, 0, v10, vcc")

def gen(diag=False, WA=8, WB1=5, WB2=8, WBsw=14, WYA=6, WYB=6, HB=3, NT=" nt", dbg=0, ackw=0,
        PREA=6, PREB=4, QW=4, NPRE=4, npe=4, cpf=1, cbo=0, obo=0, hbo=0,
        N1A=16, W2A=8, GA=0, N1B=16, W2B=8, GB=0, oslp=20, hslp=24, cwait=1, trace=0, pair=0, rotg=2,
        sfo=1, sfh=1, limo=2, limh=4, sfc=0, limc=1, nost=0, OS=4224, GS=14464, nv=0, nm=0, np_=0, heads=1, ost=3, slay=0, rrole=0, sfr=0, limr=4, rbo=0, rslp=0, pw=0, pwd=0, WB3=0, WBsw3=99, WA2=0, JV=4, vb=2, rack=0, probe=0, grid=256, final=0, rlast=1, pidx=-1, pw0=0, pw1=256, pv0=0, pv1=8):
    global SPIN
    SPIN = SPIN_FINAL if final else 200000
    KE = QW <= JV
    WA2 = WA2 or WA
    RS = 7680 if slay == 0 else 64; PS = 64 if slay == 0 else 4224
    NQ = NPRE - npe - nv - nm - np_; assert NQ >= 0 and NPRE <= 12
    global TR
    TR = {}; cur = [None]
    g = G(diag); e = g.e
    g.pidx = pidx
    def role(n): cur[0] = n; TR.setdefault(n, [])
    def tr(landed):
        if not trace: return
        i = len(TR[cur[0]]); TR[cur[0]].append(landed); g.stamp(16 + i)
    ST = "sc1"; LD = "sc1"
    wssize = WS_DIAG + 0x100000 if diag else WS_USED
    g.L.append(HEADER.rstrip("\n"))
    g.L.append(f"; @launch grid=({grid},1,1) block=(512,1,1) lds={LDS_BYTES}")
    g.L.append(DOC.rstrip("\n"))
    g.L.append('.amdgcn_target "amdgcn-amd-amdhsa--gfx950"')
    g.L += [".text", f".globl {NAME}_kernel", ".p2align 8", f".type {NAME}_kernel,@function", f"{NAME}_kernel:"]
    def mapA(dst):
        e(f"s_and_b32 s{dst}, s2, 7"); e(f"s_lshl_b32 s{dst}, s{dst}, 4"); e("s_lshr_b32 s6, s2, 3"); e(f"s_add_u32 s{dst}, s{dst}, s6")
    def mapAq(dst, a):
        e(f"s_add_u32 s{dst}, s{a}, 32"); e(f"s_and_b32 s{dst}, s{dst}, 127")
    def mapAo(dst):
        if pair & 1:
            e(f"s_and_b32 s{dst}, s2, 7"); e(f"s_xor_b32 s{dst}, s{dst}, 4"); e(f"s_lshl_b32 s{dst}, s{dst}, 4"); e("s_lshr_b32 s6, s2, 3"); e(f"s_add_u32 s{dst}, s{dst}, s6")
        else:
            e("s_bfe_u32 s6, s2, 0x10002"); e(f"s_lshl_b32 s{dst}, s6, 1"); e(f"s_add_u32 s{dst}, s{dst}, s2"); e(f"s_add_u32 s{dst}, s{dst}, 1")
            e(f"s_and_b32 s{dst}, s{dst}, 3"); e(f"s_lshl_b32 s{dst}, s{dst}, 4"); e("s_lshr_b32 s7, s2, 3"); e(f"s_add_u32 s{dst}, s{dst}, s7")
            e(f"s_lshl_b32 s{dst}, s{dst}, 1"); e(f"s_add_u32 s{dst}, s{dst}, s6")
    def mapB(dst):
        e("s_sub_u32 s6, s2, 128"); e(f"s_and_b32 s{dst}, s6, 7"); e(f"s_mul_i32 s{dst}, s{dst}, 14"); e("s_lshr_b32 s6, s6, 3"); e(f"s_add_u32 s{dst}, s{dst}, s6")
    JT = [1, 2, 3, 0, 3, 0, 1, 2]
    JTAB = sum(j << (4 * x) for x, j in enumerate(JT))
    def mapBd(dst):
        if pair & 2:
            e(f"s_and_b32 s{dst}, s2, 7"); e(f"s_xor_b32 s{dst}, s{dst}, 4"); e(f"s_mul_i32 s{dst}, s{dst}, 14"); e("s_sub_u32 s6, s2, 128"); e("s_lshr_b32 s6, s6, 3"); e(f"s_add_u32 s{dst}, s{dst}, s6")
        else:
            e("s_and_b32 s6, s2, 7"); e("s_lshl_b32 s6, s6, 2"); e(f"s_lshr_b32 s{dst}, {JTAB:#x}, s6"); e(f"s_and_b32 s{dst}, s{dst}, 3")
            e(f"s_mul_i32 s{dst}, s{dst}, 14"); e("s_sub_u32 s7, s2, 128"); e("s_lshr_b32 s7, s7, 3"); e(f"s_add_u32 s{dst}, s{dst}, s7")
            e(f"s_lshl_b32 s{dst}, s{dst}, 1"); e("s_bfe_u32 s6, s2, 0x10002"); e(f"s_add_u32 s{dst}, s{dst}, s6")
    def mapC(dst):
        e(f"s_and_b32 s{dst}, s2, 7"); e(f"s_xor_b32 s{dst}, s{dst}, 4"); e(f"s_lshl_b32 s{dst}, s{dst}, 1"); e("s_bfe_u32 s6, s2, 0x10003"); e(f"s_add_u32 s{dst}, s{dst}, s6")
    def ws_srd():
        e("s_mov_b32 s36, s38"); e("s_mov_b32 s37, s39"); e(f"s_mov_b32 s38, {wssize:#x}"); e("s_mov_b32 s39, 0x20000")
    def epoch():
        e(f"buffer_load_dword v124, off, {WS}, 0 offset:{WS_E} sc1")
    def oo_addr(dst, isA):
        e("v_and_b32 v9, 3, v0")
        if isA:
            e("v_lshlrev_b32 v9, 3, v9"); e("v_and_b32 v10, 48, v0"); e("v_lshl_add_u32 v9, v10, 2, v9")
            e(f"s_and_b32 s6, s{S_WAVE}, 1"); e("s_lshl_b32 s6, s6, 5"); e(f"s_and_b32 s7, s{S_WAVE}, 2"); e("s_lshl_b32 s7, s7, 1"); e("s_add_u32 s6, s6, s7")
        else:
            e("v_lshlrev_b32 v9, 2, v9"); e("v_and_b32 v10, 16, v0"); e("v_lshl_add_u32 v9, v10, 3, v9"); e("v_and_b32 v10, 32, v0"); e("v_lshl_add_u32 v9, v10, 1, v9")
            e(f"s_lshl_b32 s6, s{S_WAVE}, 4")
        e(f"v_add_u32 v{dst}, s6, v9")

    def rsetup():
        sk = g.newlab("Lrs")
        e(f"s_sub_u32 s15, s2, {0 if rrole == 0 else 128}")
        g.srd(32, 34, 2048)
        e("v_lshrrev_b32 v122, 2, v0"); e(f"v_mul_u32_u24 v122, {PS}, v122"); e("v_and_b32 v9, 3, v0"); e("v_lshl_add_u32 v122, v9, 4, v122")
        e("v_and_b32 v11, 15, v0"); e("v_and_b32 v10, 12, v0"); e("v_add_u32 v125, v11, v10"); e("v_lshlrev_b32 v125, 1, v125")
        e("s_cmp_ge_u32 s15, 64"); e(f"s_cbranch_scc1 {sk}")
        e("s_lshr_b32 s7, s15, 3"); e("s_and_b32 s5, s15, 7"); e("s_xor_b32 s5, s5, 4"); e("s_lshl_b32 s5, s5, 3"); e("s_add_u32 s5, s5, s7")
        e(f"s_lshl_b32 s6, s{S_WAVE}, 4"); e(f"s_mul_i32 s7, s{S_WAVE}, 14"); e("s_add_u32 s7, s7, 8")
        e(f"s_cmp_lt_u32 s{S_WAVE}, 4"); e("s_cselect_b32 s6, s6, s7"); e("s_cselect_b32 s45, -1, 0x00ffffff"); e("s_mov_b32 s44, -1")
        e(f"s_mul_i32 s6, s6, {PS}"); e(f"s_mul_i32 s9, s5, {RS}"); e("s_add_u32 s9, s9, s6"); e(f"s_add_u32 s9, s9, {WS_SP}")
        e("s_lshr_b32 s8, s5, 3"); e("s_lshl_b32 s8, s8, 8"); e("s_and_b32 s6, s5, 3"); e("s_lshl_b32 s6, s6, 6"); e("s_add_u32 s8, s8, s6")
        e("s_and_b32 s6, s5, 4"); e("s_lshl_b32 s6, s6, 1"); e("s_add_u32 s8, s8, s6")
        e(f"s_add_u32 s6, s8, {L_XR}"); e("v_add_u32 v10, s6, v125"); e("ds_read_u16 v126, v10")
        for r in range(4): e(f"v_mov_b32 v{44+r}, 0")
        e("v_lshrrev_b32 v10, 4, v0"); e("v_lshl_add_u32 v9, v9, 2, v10"); e("v_mul_u32_u24 v123, 48, v9"); e(f"s_lshl_b32 s6, s{S_WAVE}, 2"); e("v_add_u32 v123, s6, v123")
        e("v_mul_u32_u24 v124, 48, v11"); e("v_mov_b32 v127, 0"); e("v_mov_b32 v43, 1")
        e(f"s_mov_b32 s7, {SPIN + 1}")
        e("s_waitcnt lgkmcnt(0)")
        e("v_lshlrev_b32 v126, 16, v126")
        g.label(sk)
    if diag or probe: e("s_memrealtime s[98:99]")
    if probe: e("s_mov_b32 s96, 0")
    e(f"s_cmp_ge_u32 s2, {grid}"); e("s_cbranch_scc1 L_end")
    e("s_load_dwordx16 s[16:31], s[0:1], 0"); e("s_load_dwordx8 s[32:39], s[0:1], 64")
    e("v_lshrrev_b32 v1, 6, v0"); e("v_and_b32 v0, 63, v0")
    e(f"v_readfirstlane_b32 s{S_WAVE}, v1")
    e("s_mov_b32 s43, 0x20000")
    e("v_lshrrev_b32 v2, 4, v0"); e("v_and_b32 v3, 15, v0")
    if grid > 240: e("s_cmp_ge_u32 s2, 240"); e("s_cbranch_scc1 L_C")
    e(f"s_cmp_lt_u32 s{S_WAVE}, 4"); e("s_cbranch_scc1 L_X")

    e("s_setprio 3")
    e("v_lshlrev_b32 v1, 5, v0")
    e(f"s_lshl_b32 s9, s{S_WAVE}, 9"); e("s_sub_u32 s9, s9, 2048"); e("v_lshlrev_b32 v9, 3, v0")
    e("s_mov_b32 s42, 2048")
    e("s_waitcnt lgkmcnt(0)")
    e("s_mov_b32 s40, s16"); e("s_mov_b32 s41, s17")
    e("buffer_load_dwordx4 v[112:115], v1, s[40:43], 0 offen")
    e("buffer_load_dwordx4 v[116:119], v1, s[40:43], 0 offen offset:16")
    e("buffer_load_dwordx2 v[110:111], v9, s[40:43], s9 offen")
    ws_srd(); epoch()
    e("s_branch L_Y")

    g.label("L_X")
    e("s_cmp_ge_u32 s2, 128"); e("s_cbranch_scc1 L_BX")
    mapA(5); mapAq(59, 5)
    e("v_lshlrev_b32 v1, 17, v2"); e("v_lshl_add_u32 v1, v3, 4, v1")
    e("s_and_b32 s6, s59, 7"); e("s_lshl_b32 s6, s6, 1"); e(f"s_lshr_b32 s7, s{S_WAVE}, 1"); e("s_add_u32 s6, s6, s7")
    e("s_lshr_b32 s57, s59, 3"); e("s_lshl_b32 s57, s57, 1"); e(f"s_and_b32 s7, s{S_WAVE}, 1"); e("s_add_u32 s57, s57, s7")
    e("s_lshl_b32 s8, s6, 19"); e("s_lshl_b32 s7, s57, 8"); e("s_add_u32 s8, s8, s7")
    e("s_lshl_b32 s9, s6, 8")
    e("s_mov_b32 s42, 0x800000")
    e("s_waitcnt lgkmcnt(0)")
    e("s_mov_b32 s40, s22"); e("s_mov_b32 s41, s23")
    def issue_A(k):
        if k < 16:
            e(f"buffer_load_dwordx4 v[{V_W+4*k}:{V_W+4*k+3}], v1, s[40:43], s8 offen{NT}")
            if k < 15: e(f"s_add_u32 s8, s8, {8*8192}" if k % 2 == 0 else f"s_sub_u32 s8, s8, {7*8192}")
        else:
            isK = k < 24; late = k >= 24 + JV
            e(f"s_add_u32 m0, s50, s{58 if isK else 51}")
            e(f"s_add_u32 s49, s50, s{52 if late else 56}")
            e(f"buffer_load_dwordx4 v{121 if isK or late else 122}, {'s[44:47]' if isK else 's[60:63]'}, s49 offen{NT} lds")
            if k < 31: e("s_add_u32 s50, s50, 4096"); e("s_and_b32 s50, s50, 0x7000")
    for k in range(WA): issue_A(k)
    g.label("L_AX2")
    ws_srd(); epoch()
    e("s_setprio 3")
    g.note(0, 98)
    e("v_lshrrev_b32 v9, 3, v0"); e("v_lshl_add_u32 v120, v9, 5, s9")
    masks(g)
    g.srd(44, 18, 67108864); g.srd(60, 20, 67108864)
    e("s_lshr_b32 s56, s5, 5"); e(f"s_mul_i32 s50, s56, {rotg*4096}"); e("s_and_b32 s50, s50, 0x7000")
    e("s_lshl_b32 s56, s56, 24"); e("s_and_b32 s7, s5, 31"); e("s_lshl_b32 s7, s7, 15"); e("s_add_u32 s56, s56, s7")
    e(f"s_lshl_b32 s7, s{S_WAVE}, 10"); e("s_add_u32 s56, s56, s7"); e(f"s_add_u32 s56, s56, {61440*256}")
    e(f"s_add_u32 s58, s7, {L_K}"); e(f"s_add_u32 s51, s7, {L_V}")
    e(f"s_lshl_b32 s7, s{S_WAVE}, 2"); e("v_add_u32 v9, s7, v2")
    e("v_xor_b32 v10, v9, v3"); e("v_lshlrev_b32 v10, 4, v10"); e("v_lshl_add_u32 v121, v2, 8, v10")
    e("v_and_b32 v9, 7, v9"); e("v_lshlrev_b32 v10, 1, v9"); e("v_xor_b32 v10, v10, v3"); e("v_lshlrev_b32 v10, 4, v10")
    e("v_lshl_add_u32 v122, v2, 8, v10")
    e("s_lshr_b32 s6, s57, 3"); e("s_lshl_b32 s6, s6, 15"); e("s_and_b32 s57, s57, 7"); e("s_lshl_b32 s57, s57, 9"); e("s_add_u32 s57, s57, s6")
    e("s_and_b32 s6, s59, 7"); e("s_lshl_b32 s6, s6, 12"); e("s_add_u32 s57, s57, s6"); e(f"s_add_u32 s57, s57, {WS_QP}")
    e("v_lshlrev_b32 v125, 4, v0")
    e(f"s_lshl_b32 s6, s{S_WAVE}, 9"); e("v_add_u32 v126, s6, v125"); e("v_xor_b32 v127, 0x400, v126")
    def pos(k): return k if k < WA else k + 1
    nis = WA
    PRE = min(32, WA + PREA)
    role("AX")
    while nis < PRE:
        e(f"s_waitcnt vmcnt({WA-1})"); issue_A(nis); nis += 1; tr(nis - WA)
    e("s_barrier")
    for i in range(2):
        e(f"ds_read_b128 v[{V_XX+4*i}:{V_XX+4*i+3}], v120 offset:{L_XN + 16*i}")
    e("s_waitcnt lgkmcnt(1)")
    sel_half(g, 0, 0); sel_half(g, 0, 1)
    for i in range(16):
        if i == 4: e("s_waitcnt lgkmcnt(0)")
        gemv_pre(g, i, 16)
        e(f"s_waitcnt vmcnt({pos(nis-1) - pos(i)})")
        while nis < i + 1 + (WA if nis < 16 else WA2) and nis < 24 + JV:
            issue_A(nis); nis += 1
        gemv_mfma(g, i, V_W + 4 * i)
        if i + 1 > PRE - WA: tr(i + 1)
        if i == 14: make_tag(g)
    g.stamp(3)
    e(f"s_and_b32 s6, s{S_WAVE}, 1"); e("s_lshl_b32 s6, s6, 2"); e("v_mov_b32 v9, s6"); e("v_mov_b32 v10, 1")
    gemv_fin(g, 4)
    e(f"ds_write_b128 v126, v[{V_ACC}:{V_ACC+3}] offset:{L_RED}")
    e("s_mov_b32 exec_lo, 1")
    e(f"ds_add_rtn_u32 v10, v9, v10 offset:{L_CNT}")
    e("s_mov_b32 exec_lo, -1")
    e(f"ds_read_b128 v[24:27], v127 offset:{L_RED}")
    e("s_waitcnt lgkmcnt(1)")
    e("v_readfirstlane_b32 s6, v10")
    skip = g.newlab("Lnl")
    e("s_cmp_eq_u32 s6, 0"); e(f"s_cbranch_scc1 {skip}")
    e("s_waitcnt lgkmcnt(0)")
    for r in range(0, 4, 2): e(f"v_pk_add_f32 v[{20+r}:{21+r}], v[{20+r}:{21+r}], v[{24+r}:{25+r}]")
    tagput(g, V_ACC)
    if not dbg & 16 and not nost & 1: e(f"buffer_store_dwordx4 v[{V_ACC}:{V_ACC+3}], v125, {WS}, s57 offen {ST}")
    g.label(skip)
    e("s_mov_b64 exec, -1")
    while nis < 24 + JV:
        e(f"s_waitcnt vmcnt({WA2-1})"); issue_A(nis); nis += 1; tr(nis - WA2)
    e("v_mov_b32 v121, v122"); e("s_mov_b32 s52, s56")

    def att_pre():
        e("v_lshrrev_b32 v2, 4, v0"); e("v_and_b32 v3, 15, v0")
        e("v_xor_b32 v10, v2, v3"); e("v_lshlrev_b32 v10, 4, v10"); e("v_lshl_add_u32 v1, v3, 8, v10")
        e(f"s_lshl_b32 s6, s{S_WAVE}, 12")
        for s in range(4):
            e(f"v_xor_b32 v10, {64*s}, v1"); e(f"v_add_u32 v{43+4*s}, s6, v10")
        e("v_lshrrev_b32 v1, 2, v0"); e("v_and_b32 v9, 7, v1"); e(f"v_xor_b32 v9, s{S_WAVE}, v9"); e("v_lshlrev_b32 v9, 5, v9")
        e("v_and_b32 v10, 3, v0"); e("v_lshl_add_u32 v9, v10, 3, v9"); e("v_lshl_add_u32 v9, v1, 8, v9"); e(f"v_add_u32 v122, {L_V}, v9")
        e("v_and_b32 v1, 7, v0"); e("v_mul_u32_u24 v123, 272, v1"); e("v_lshl_add_u32 v123, v2, 4, v123")
        e("v_lshlrev_b32 v124, 2, v3")
        e(f"s_lshr_b32 s6, s{S_WAVE}, 1"); e("s_lshl_b32 s6, s6, 10"); e(f"s_and_b32 s7, s{S_WAVE}, 1"); e("s_lshl_b32 s7, s7, 3"); e("s_add_u32 s6, s6, s7")
        e("v_lshlrev_b32 v125, 4, v0"); e("v_add_u32 v126, s6, v125")
        e("v_lshlrev_b32 v127, 4, v3"); e("v_lshl_add_u32 v127, v2, 7, v127")
        e(f"s_mul_i32 s58, s5, {OS}"); e(f"s_lshl_b32 s7, s{S_WAVE}, 9"); e("s_add_u32 s58, s58, s7"); e(f"s_add_u32 s58, s58, {WS_OP}")
        e("v_mov_b32 v12, 0x3f803f80"); e("v_mov_b32 v13, v12"); e("v_mov_b32 v14, v12"); e("v_mov_b32 v15, v12")
        e("s_lshr_b32 s9, s5, 5"); e("s_lshl_b32 s9, s9, 15"); e("s_add_u32 s9, s9, s7"); e(f"s_add_u32 s9, s9, {WS_QP}")
        e("s_add_u32 s56, s9, 8192")
        e("v_lshrrev_b32 v9, 5, v0"); e("v_and_b32 v10, 31, v0"); e("v_lshlrev_b32 v16, 12, v9"); e("v_lshl_add_u32 v16, v10, 4, v16")
        e("v_add_u32 v17, 16384, v16")
        e(f"s_mul_i32 s6, s{S_WAVE}, 272"); e("v_lshlrev_b32 v18, 4, v3"); e("v_lshl_add_u32 v18, v9, 2, v18"); e("v_and_b32 v10, 1, v2")
        e("v_lshl_add_u32 v18, v10, 3, v18"); e("v_add_u32 v18, s6, v18")
    att_pre()
    if trace:
        for k in range(WA2 - 1, QW - 1, -1): e(f"s_waitcnt vmcnt({k})"); tr(24 + JV - k)
    e(f"s_waitcnt vmcnt({QW}) lgkmcnt(0)")
    g.label("L_att")
    e("s_barrier")
    g.stamp(1)
    def yload(k):
        e(f"buffer_load_dwordx4 v[{V_W+4*k}:{V_W+4*k+3}], v120, s[40:43], s8 offen{NT}")
        if k < 15: e("s_add_u32 s8, s8, 8192" if k % 4 != 3 else "s_add_u32 s8, s8, s57")
    ny = [0]
    def yissue(n):
        if not n: return
        lx = g.newlab("Lxp")
        e(f"s_cmp_lt_u32 s{S_WAVE}, 4"); e(f"s_cbranch_scc1 {lx}")
        for k in range(ny[0], ny[0] + n): yload(k)
        ny[0] += n
        g.label(lx)
    nq = 0 if dbg & 1 else 4
    def q_load(i):
        if nq: e(f"buffer_load_dwordx4 v[{24+4*i}:{27+4*i}], v{16 + (i >> 1)}, {WS}, {'s56' if i & 1 else 's9'} offen {LD}")
    def k_reads():
        for s in range(4): e(f"ds_read_b128 v[{40+4*s}:{43+4*s}], v{43+4*s} offset:{L_K}")
    def v_reads():
        for sg in range(4):
            for u in range(2):
                e(f"ds_read_b64_tr_b16 v[{104+4*sg+2*u}:{105+4*sg+2*u}], v122 offset:{8192*sg + 4096*u}")
    def v_wait():
        lx = g.newlab("Lxv")
        e(f"s_cmp_ge_u32 s{S_WAVE}, 4"); e(f"s_cbranch_scc1 {lx}")
        e("s_waitcnt vmcnt(0)")
        g.label(lx)
    def q_first():
        e("s_barrier")
        lx = g.newlab("Lxp"); ly = g.newlab("Lxq")
        e(f"s_cmp_lt_u32 s{S_WAVE}, 4"); e(f"s_cbranch_scc1 {lx}")
        for k in range(npe): yload(k)
        ny[0] = npe
        if KE: k_reads()
        e(f"s_waitcnt vmcnt({npe})")
        e(f"s_branch {ly}")
        g.label(lx)
        for k in range(24 + JV, 32): issue_A(k)
        if KE: k_reads()
        e(f"s_waitcnt vmcnt({8 - JV})")
        g.label(ly)
        yissue(nv)
    mpoll(g, 4, q_load, lambda i, dst: tagchk1(g, 24 + 4 * i, dst), 16, first=q_first, noretry=bool(dbg & 33))
    g.note(11, 7)
    g.stamp(2)
    for st in (8, 4):
        for r in range(0, st, 2): e(f"v_pk_add_f32 v[{24+r}:{25+r}], v[{24+r}:{25+r}], v[{24+st+r}:{25+st+r}]")
    g.nop(2)
    e("v_permlane32_swap_b32 v24, v26"); e("v_permlane32_swap_b32 v25, v27"); g.nop(1)
    e("v_pk_add_f32 v[24:25], v[24:25], v[26:27]")
    e("v_cvt_pk_bf16_f32 v24, v24, v25")
    e(f"ds_write_b32 v18, v24 offset:{L_Q}")
    yissue(NQ)
    e("s_waitcnt lgkmcnt(0)")
    e("s_barrier")
    g.stamp(5)
    if not KE: k_reads()
    for s in range(4):
        e(f"ds_read_b128 v[{24+4*s}:{27+4*s}], v123 offset:{L_Q + 64*s}")
    e("s_mov_b32 s6, 0x3db504f3")
    e("s_mov_b32 s7, 0x3fb8aa3b")
    for s in range(4):
        e(f"s_waitcnt lgkmcnt({3 - s})")
        c = "0" if s == 0 else "v[20:23]"
        e(f"v_mfma_f32_16x16x32_bf16 v[20:23], v[{40+4*s}:{43+4*s}], v[{24+4*s}:{27+4*s}], {c}")
    g.nop(8)
    e("v_max3_f32 v11, v20, v21, v22"); e("v_cvt_pk_bf16_f32 v9, v20, v21"); e("v_max_f32 v11, v11, v23")
    e(f"ds_max_f32 v124, v11 offset:{L_M}")
    e("v_cvt_pk_bf16_f32 v10, v22, v23")
    e("v_lshlrev_b32 v20, 16, v9"); e("v_and_b32 v21, 0xffff0000, v9"); e("v_lshlrev_b32 v22, 16, v10"); e("v_and_b32 v23, 0xffff0000, v10")
    for i in range(4): e(f"v_mul_f32 v{20+i}, s6, v{20+i}")
    yissue(nm)
    if vb == 1: v_wait()
    e("s_waitcnt lgkmcnt(0)")
    e("s_barrier")
    e(f"ds_read_b32 v11, v124 offset:{L_M}")
    if vb == 1: v_reads()
    e("v_cvt_pk_bf16_f32 v9, v20, v21"); e("v_cvt_pk_bf16_f32 v10, v22, v23")
    e("v_lshlrev_b32 v20, 16, v9"); e("v_and_b32 v21, 0xffff0000, v9"); e("v_lshlrev_b32 v22, 16, v10"); e("v_and_b32 v23, 0xffff0000, v10")
    e(f"s_waitcnt lgkmcnt({8 if vb == 1 else 0})")
    e("v_cvt_pk_bf16_f32 v11, v11, v11"); e("v_lshlrev_b32 v11, 16, v11"); e("v_mul_f32 v11, s6, v11")
    e("v_cvt_pk_bf16_f32 v11, v11, v11"); e("v_lshlrev_b32 v11, 16, v11")
    e("v_mul_f32 v11, s7, v11")
    for i in range(4): e(f"v_fma_f32 v{20+i}, v{20+i}, s7, -v11")
    for i in range(4): e(f"v_exp_f32 v{20+i}, v{20+i}")
    e("v_cvt_pk_bf16_f32 v20, v20, v21"); e("v_cvt_pk_bf16_f32 v21, v22, v23")
    e(f"ds_write_b64 v126, v[20:21] offset:{L_P}")
    yissue(np_)
    g.stamp(13)
    if vb == 2: v_wait()
    e("s_waitcnt lgkmcnt(0)")
    e("s_barrier")
    g.stamp(14)
    for sg in range(4):
        e(f"ds_read_b128 v[{40+4*sg}:{43+4*sg}], v125 offset:{L_P + 1024*sg}")
        if vb == 2:
            for u in range(2):
                e(f"ds_read_b64_tr_b16 v[{104+4*sg+2*u}:{105+4*sg+2*u}], v122 offset:{8192*sg + 4096*u}")
    e(f"v_mov_b32 v23, s{S_T[0]}")
    for sg in range(4):
        e(f"s_waitcnt lgkmcnt({(3 - sg) * (3 if vb == 2 else 1)})")
        e(f"v_mfma_f32_16x16x32_bf16 v[24:27], v[12:15], v[{40+4*sg}:{43+4*sg}], " + ("0" if sg == 0 else "v[24:27]"))
        e(f"v_mfma_f32_16x16x32_bf16 v[16:19], v[{104+4*sg}:{107+4*sg}], v[{40+4*sg}:{43+4*sg}], " + ("0" if sg == 0 else "v[16:19]"))
    e("s_mov_b32 exec_lo, 0x00ff00ff"); e("s_mov_b32 exec_hi, 0x00ff00ff")
    g.nop(5)
    e("v_rcp_f32 v9, v24"); e("v_log_f32 v10, v24")
    for r in range(4): e(f"v_mul_f32 v{16+r}, v9, v{16+r}")
    e("v_add_f32 v22, v11, v10")
    e("v_cvt_pk_bf16_f32 v20, v16, v17"); e("v_cvt_pk_bf16_f32 v21, v18, v19")
    if not dbg & 16 and not nost & 2: e(f"buffer_store_dwordx4 v[20:23], v127, {WS}, s58 offen {ST}")
    e("s_mov_b64 exec, -1")
    g.stamp(7)
    e(f"s_cmp_ge_u32 s{S_WAVE}, 4"); e("s_cbranch_scc1 L_YA2")
    mapAo(5)
    e("s_lshr_b32 s8, s5, 5"); e(f"s_mul_i32 s8, s8, {32*OS}"); e("s_bfe_u32 s6, s5, 0x30002"); e("s_lshl_b32 s6, s6, 9"); e("s_add_u32 s8, s8, s6")
    e("s_bfe_u32 s6, s5, 0x10001"); e("s_lshl_b32 s6, s6, 6"); e("s_add_u32 s8, s8, s6"); e(f"s_lshl_b32 s6, s{S_WAVE}, 7"); e("s_add_u32 s8, s8, s6")
    e(f"s_add_u32 s8, s8, {WS_OP}"); e(f"s_add_u32 s9, s8, {16*OS}")
    e("v_lshrrev_b32 v125, 2, v0"); e(f"v_mul_u32_u24 v125, {OS}, v125"); e("v_and_b32 v9, 3, v0"); e("v_lshl_add_u32 v125, v9, 4, v125")
    oo_addr(2, True)
    e("s_mov_b64 s[44:45], -1"); e("s_mov_b64 s[46:47], -1"); e(f"s_mov_b32 s7, {SPIN + 1}")
    if ackw & 1: e("s_waitcnt vmcnt(0)")
    g.stamp(6)
    def o_load(i):
        if not dbg & 2: e(f"buffer_load_dwordx4 v[{24+4*i}:{27+4*i}], v125, {WS}, s{8+i} offen {LD}")
    def o_check(i, dst): e(f"v_cmp_ne_u32 {dst}, s{S_T[0]}, v{27+4*i}")
    ipoll(g, 2, o_load, o_check, 44, noretry=bool(dbg & 34))
    g.note(12, 7)
    g.stamp(8)
    e("v_max_f32 v16, v26, v30")
    e("v_lshlrev_b32 v32, 16, v24"); e("v_and_b32 v33, 0xffff0000, v24")
    e("v_max_f32_dpp v16, v16, v16 row_ror:4 row_mask:0xf bank_mask:0xf")
    e("v_lshlrev_b32 v34, 16, v25"); e("v_and_b32 v35, 0xffff0000, v25")
    e("v_max_f32_dpp v16, v16, v16 row_ror:8 row_mask:0xf bank_mask:0xf")
    e("v_mov_b32 v9, v16")
    e("v_lshlrev_b32 v40, 16, v28"); e("v_and_b32 v41, 0xffff0000, v28")
    e("v_permlane16_swap_b32 v9, v16")
    g.nop(1)
    e("v_max_f32 v16, v9, v16")
    e("v_mov_b32 v9, v16")
    e("v_lshlrev_b32 v42, 16, v29"); e("v_and_b32 v43, 0xffff0000, v29")
    e("v_permlane32_swap_b32 v9, v16"); g.nop(1); e("v_max_f32 v16, v9, v16")
    e("v_sub_f32 v26, v26, v16"); e("v_sub_f32 v30, v30, v16")
    e("v_exp_f32 v26, v26"); e("v_exp_f32 v30, v30"); g.nop(1)
    e("v_add_f32 v36, v26, v30")
    for r in range(4): e(f"v_mul_f32 v{32+r}, v26, v{32+r}")
    for r in range(4): e(f"v_fmac_f32 v{32+r}, v30, v{40+r}")
    e("v_mov_b32 v37, v36"); g.nop(1)
    e("v_permlane32_swap_b32 v32, v34"); e("v_permlane32_swap_b32 v33, v35"); e("v_permlane32_swap_b32 v37, v36")
    e("v_add_f32 v32, v32, v34"); e("v_add_f32 v33, v33, v35"); e("v_add_f32 v36, v36, v37")
    e("v_mov_b32 v37, v36"); g.nop(1)
    e("v_permlane16_swap_b32 v32, v33"); e("v_permlane16_swap_b32 v37, v36"); g.nop(1)
    e("v_add_f32 v32, v32, v33"); e("v_add_f32 v36, v36, v37")
    for ror in (4, 8):
        g.nop(1)
        for r in (32, 36): e(f"v_add_f32_dpp v{r}, v{r}, v{r} row_ror:{ror} row_mask:0xf bank_mask:0xf")
    e("v_rcp_f32 v36, v36"); g.nop(1)
    e("v_mul_f32 v32, v36, v32")
    g.label("L_oo")
    e("v_cvt_pk_bf16_f32 v32, v32, v32")
    e(f"ds_write_b32 v2, v32 offset:{L_OO}")
    e("s_waitcnt lgkmcnt(0)")
    e("s_barrier")
    g.stamp(9)
    rsetup()
    e("s_branch L_R")

    g.label("L_BX")
    mapB(5)
    e(f"s_mov_b32 s6, {32*7168}"); e("v_mul_lo_u32 v1, v2, s6"); e("v_lshl_add_u32 v1, v3, 4, v1")
    e("s_bfe_u32 s9, s5, 0x30001")
    e(f"s_mul_i32 s8, s9, {128*7168}"); e("s_lshr_b32 s7, s5, 4"); e("s_lshl_b32 s7, s7, 2"); e(f"s_add_u32 s7, s7, s{S_WAVE}")
    e("s_lshl_b32 s56, s7, 9")
    e("s_lshl_b32 s7, s7, 8"); e("s_add_u32 s8, s8, s7")
    e("s_mov_b32 s42, 7340032")
    e("s_and_b32 s6, s5, 1"); e("s_cmp_eq_u32 s6, 0")
    e("s_waitcnt lgkmcnt(0)")
    e("s_cselect_b32 s40, s28, s30"); e("s_cselect_b32 s41, s29, s31")
    def issue_B(k):
        r = V_W + 4 * (k & 15)
        e(f"buffer_load_dwordx4 v[{r}:{r+3}], v1, s[40:43], s8 offen{NT}")
        if k < 31: e(f"s_add_u32 s8, s8, {16*7168}" if k % 2 == 0 else f"s_sub_u32 s8, s8, {15*7168}")
    for k in range(WB1): issue_B(k)
    g.label("L_BX2")
    ws_srd(); epoch()
    e("s_setprio 3")
    g.note(0, 98)
    e("s_lshl_b32 s7, s9, 9"); e("v_lshrrev_b32 v9, 3, v0"); e("v_lshl_add_u32 v120, v9, 6, s7")
    masks(g)
    e("s_lshl_b32 s6, s6, 3"); e("s_add_u32 s6, s6, s9"); e(f"s_mul_i32 s6, s6, {GS}"); e("s_add_u32 s56, s56, s6"); e(f"s_add_u32 s56, s56, {WS_GP}")
    e("v_lshlrev_b32 v121, 4, v0")
    e("v_lshrrev_b32 v122, 2, v0"); e(f"v_mul_u32_u24 v122, {GS}, v122"); e("v_and_b32 v9, 3, v0"); e("v_lshl_add_u32 v122, v9, 4, v122")
    mapBd(9)
    e("s_bfe_u32 s6, s9, 0x10001"); e("s_lshl_b32 s6, s6, 7"); e("s_lshr_b32 s9, s9, 2"); e("s_lshl_b32 s9, s9, 9"); e("s_add_u32 s9, s9, s6")
    e(f"s_and_b32 s6, s{S_WAVE}, 2"); e("s_lshl_b32 s6, s6, 7"); e("s_add_u32 s9, s9, s6"); e(f"s_and_b32 s6, s{S_WAVE}, 1"); e("s_lshl_b32 s6, s6, 6"); e("s_add_u32 s9, s9, s6")
    e(f"s_add_u32 s9, s9, {WS_GP}")
    oo_addr(2, False)
    def posb(k): return k if k < WB1 else k + 1
    nis = WB1
    PRE = min(15, WB1 + PREB)
    role("BX")
    while nis < PRE:
        e(f"s_waitcnt vmcnt({WB1-1})"); issue_B(nis); nis += 1; tr(nis - WB1)
    e("s_barrier")
    for i in range(4):
        e(f"ds_read_b128 v[{V_XX+4*i}:{V_XX+4*i+3}], v120 offset:{L_XN + 16*i}")
    e("s_waitcnt lgkmcnt(3)")
    sel_half(g, 0, 0); sel_half(g, 0, 1)
    b2done = False
    for i in range(32):
        if i == 4: e("s_waitcnt lgkmcnt(0)")
        gemv_pre(g, i, 32)
        e(f"s_waitcnt vmcnt({posb(nis-1) - posb(i)})")
        W = WB1 if i < WBsw else (WB2 if i < WBsw3 else WB3)
        while nis < 32 and nis < i + 1 + W:
            issue_B(nis); nis += 1
        if nis == 32 and not b2done and 31 - i <= HB:
            e("s_barrier"); b2done = True
        gemv_mfma(g, i, V_W + 4 * (i & 15))
        if i + 1 > PRE - WB1: tr(i + 1)
        if i == 20: make_tag(g)
    g.stamp(3)
    gemv_fin(g)
    tagput(g, V_ACC)
    if not dbg & 16 and not nost & 4: e(f"buffer_store_dwordx4 v[20:23], v121, {WS}, s56 offen {ST}")
    e("s_mov_b64 exec, -1")
    if not b2done: e("s_barrier")
    e("s_mov_b64 s[44:45], -1"); e(f"s_mov_b32 s7, {SPIN + 1}")
    if ackw & 2: e("s_waitcnt vmcnt(0)")
    g.stamp(6)
    def h_load(i):
        if not dbg & 4: e(f"buffer_load_dwordx4 v[28:31], v122, {WS}, s9 offen {LD}")
    ipoll(g, 1, h_load, lambda i, dst: tagchk1(g, 28, dst), 44, noretry=bool(dbg & 36))
    g.note(11, 7)
    g.stamp(5)
    e("v_permlane16_swap_b32 v28, v30"); e("v_permlane16_swap_b32 v29, v31"); g.nop(1)
    e("v_add_f32 v28, v28, v30"); e("v_add_f32 v29, v29, v31")
    for ror in (4, 8):
        g.nop(1)
        for r in (28, 29): e(f"v_add_f32_dpp v{r}, v{r}, v{r} row_ror:{ror} row_mask:0xf bank_mask:0xf")
    g.nop(2)
    e("v_permlane32_swap_b32 v28, v29")
    g.nop(1)
    e("v_cvt_pk_bf16_f32 v28, v28, v29")
    e("v_lshlrev_b32 v32, 16, v28"); e("v_mul_f32 v32, 0xbfb8aa3b, v32"); e("v_exp_f32 v32, v32")
    e("v_and_b32 v29, 0xffff0000, v28")
    e("v_add_f32 v32, 1.0, v32"); e("v_rcp_f32 v32, v32"); g.nop(1)
    e("v_cvt_pk_bf16_f32 v32, v32, v32"); e("v_lshlrev_b32 v32, 16, v32")
    e("v_mul_f32 v32, v32, v29")
    e("s_branch L_oo")

    g.label("L_Y")
    g.note(0, 98)
    e("s_lshl_b32 s9, s9, 1"); e("v_lshl_add_u32 v122, v0, 4, s9")
    e("v_mov_b32 v9, 0"); e("v_mov_b32 v44, 0"); e("v_mov_b32 v45, 0"); e("v_mov_b32 v46, 0"); e("v_mov_b32 v47, 0")
    e(f"ds_write_b128 v9, v[44:47] offset:{L_CNT}")
    e("v_lshlrev_b32 v10, 2, v3"); e("v_mov_b32 v11, 0xff800000"); e(f"ds_write_b32 v10, v11 offset:{L_M}")
    e("v_lshlrev_b32 v120, 11, v2"); e("v_lshl_add_u32 v120, v3, 4, v120")
    e("v_lshrrev_b32 v121, 2, v0"); e(f"v_mul_u32_u24 v121, {RS}, v121"); e("v_and_b32 v10, 3, v0"); e("v_lshl_add_u32 v121, v10, 4, v121")
    e("v_mov_b32 v12, 0x3f803f80"); e("v_mov_b32 v10, 0"); e("v_mov_b32 v11, 0x3a800000")
    e("s_waitcnt vmcnt(1)")
    e("v_lshrrev_b32 v1, 1, v122"); e(f"v_add_u32 v1, {L_XR}, v1"); e("ds_write_b64 v1, v[110:111]")
    layernorm(g, 112, 110)
    e(f"ds_write_b128 v122, v[24:27] offset:{L_XN}")
    e("s_waitcnt lgkmcnt(0) vmcnt(0)")
    g.stamp(6)
    e("s_barrier")
    make_tag(g)
    masks(g)
    def ysetup(pbase):
        e("s_lshr_b32 s9, s5, 1")
        if pbase == 0:
            e("s_lshr_b32 s8, s5, 5"); e("s_lshl_b32 s8, s8, 21"); e("s_bfe_u32 s6, s5, 0x10001"); e("s_lshl_b32 s6, s6, 20"); e("s_add_u32 s8, s8, s6")
            e("s_bfe_u32 s6, s5, 0x30002"); e("s_lshl_b32 s6, s6, 15"); e("s_add_u32 s8, s8, s6"); e(f"s_mov_b32 s57, {116*2048}")
        else:
            e("s_lshl_b32 s8, s9, 17"); e("s_movk_i32 s57, 8192")
        e("s_and_b32 s6, s5, 1"); e("s_lshl_b32 s6, s6, 2")
        e(f"s_add_u32 s6, s6, s{S_WAVE}"); e("s_sub_u32 s6, s6, 4")
        e("s_lshl_b32 s7, s6, 8"); e("s_add_u32 s8, s8, s7")
        e(f"s_mul_i32 s59, s6, {8*RS}"); e(f"s_mul_i32 s9, s9, {PS}"); e("s_add_u32 s59, s59, s9"); e(f"s_add_u32 s59, s59, {WS_SP + pbase*PS}")
    e("s_cmp_ge_u32 s2, 128"); e("s_cbranch_scc1 L_YB2")
    mapAo(5); ysetup(0)
    e("s_mov_b32 s40, s24"); e("s_mov_b32 s41, s25"); e("s_mov_b32 s42, 0x800000")
    mapA(5)
    att_pre()
    e("s_branch L_att")
    def ystream(k0, W1, N1, W2, gate):
        for k in range(k0, 16):
            if gate and k == max(N1, k0): e("s_barrier")
            W = W1 if k < N1 else W2
            if k >= W: e(f"s_waitcnt vmcnt({W-1})")
            yload(k)
            if k >= W: tr(k + 1 - W)
        if gate and max(N1, k0) >= 16: e("s_barrier")
        if trace:
            for k in range(min(W, 16) - 1, -1, -1): e(f"s_waitcnt vmcnt({k})"); tr(16 - k)
    g.label("L_YB2")
    mapBd(5); ysetup(64)
    e("s_mov_b32 s40, s32"); e("s_mov_b32 s41, s33"); e("s_mov_b32 s42, 7340032")
    e("s_setprio 0")
    e("s_barrier")
    g.stamp(2)
    role("BY"); ystream(0, WYB, N1B, W2B, 0)
    e("s_branch L_YL3")
    g.label("L_YA2")
    e("s_setprio 0")
    role("AY"); ystream(NPRE, WYA, N1A, W2A, 0)
    g.label("L_YL3")
    g.stamp(3)
    rsetup()
    e("s_setprio 3")
    e("v_and_b32 v9, 56, v0"); e("v_lshlrev_b32 v9, 2, v9")
    e("s_barrier")
    g.stamp(4)
    for i in range(2):
        e(f"ds_read_b128 v[{V_XX+4*i}:{V_XX+4*i+3}], v9 offset:{L_OO + 16*i}")
    e("s_waitcnt lgkmcnt(1)")
    sel_half(g, 0, 0); sel_half(g, 0, 1)
    for i in range(16):
        gemv_pre(g, i, 16)
        e(f"s_waitcnt vmcnt({15-i})" + (" lgkmcnt(0)" if i == 4 else ""))
        gemv_mfma(g, i, V_W + 4 * i)
    gemv_fin(g)
    tagput(g, V_ACC)
    if not dbg & 16 and not nost & 8: e(f"buffer_store_dwordx4 v[{V_ACC}:{V_ACC+3}], v121, {WS}, s59 offen {ST}")
    e("s_mov_b64 exec, -1")
    g.stamp(9)

    g.label("L_R")
    e(f"s_cmp_ge_u32 s15, 64"); e("s_cbranch_scc1 L_fin")
    if dbg & 256: e("s_branch L_fin")
    if rack: e("s_waitcnt vmcnt(0)")
    e("s_barrier")
    g.stamp(13)
    def r_load(i): e(f"buffer_load_dwordx4 v[44:47], v122, {WS}, s9 offen {LD}")
    ipoll(g, 1, r_load, lambda i, dst: tagchk1(g, 44, dst), 44, noretry=bool(dbg & 8))
    g.note(15, 7)
    g.stamp(14)
    e("v_permlane32_swap_b32 v44, v46"); e("v_permlane32_swap_b32 v45, v47"); g.nop(1)
    e("v_add_f32 v44, v44, v46"); e("v_add_f32 v45, v45, v47"); g.nop(2)
    e("v_permlane16_swap_b32 v44, v45"); g.nop(1)
    e("v_add_f32 v44, v44, v45")
    for ror in (4, 8):
        g.nop(2); e(f"v_add_f32_dpp v44, v44, v44 row_ror:{ror} row_mask:0xf bank_mask:0xf")
    e(f"ds_write_b32 v123, v44 offset:{L_RED}")
    e("s_mov_b64 exec, 1")
    e(f"ds_add_rtn_u32 v43, v127, v43 offset:{L_CNT + 8}")
    e("s_mov_b64 exec, -1")
    e(f"ds_read_b128 v[28:31], v124 offset:{L_RED + 16}"); e(f"ds_read_b128 v[24:27], v124 offset:{L_RED}")
    e("s_waitcnt lgkmcnt(2)")
    e("v_readfirstlane_b32 s6, v43")
    e("s_waitcnt lgkmcnt(1)")
    e("s_cmp_lg_u32 s6, 7"); e("s_cbranch_scc1 L_fin")
    e("v_add_f32 v28, v28, v29"); e("v_add_f32 v30, v30, v31"); e("v_add_f32 v28, v28, v30")
    e("v_cvt_pk_bf16_f32 v28, v28, v28"); e("v_lshlrev_b32 v28, 16, v28")
    e("v_mul_f32 v10, 0xbfb8aa3b, v28"); e("v_exp_f32 v10, v10")
    e("s_waitcnt lgkmcnt(0)")
    e("v_add_f32 v24, v24, v25"); e("v_add_f32 v10, 1.0, v10"); e("v_rcp_f32 v10, v10")
    e("v_add_f32 v26, v26, v27"); e("v_add_f32 v24, v24, v26")
    e("v_mul_f32 v10, v28, v10")
    e("v_cvt_pk_bf16_f32 v10, v10, v24")
    e("v_and_b32 v24, 0xffff0000, v10"); e("v_lshlrev_b32 v10, 16, v10")
    e("v_mul_f32 v10, v24, v10")
    e("v_cvt_pk_bf16_f32 v10, v10, v10"); e("v_lshlrev_b32 v10, 16, v10")
    e("v_add_f32 v10, v126, v10")
    pol = ["", " sc1", " nt", " sc0 sc1"][ost & 3]
    e("s_mov_b64 exec, 0xffff")
    e("v_cvt_pk_bf16_f32 v10, v10, v10")
    e("buffer_store_short v10, v125, s[32:35], s8 offen" + pol)
    e("s_mov_b64 exec, -1")
    if probe and pidx < 0: e("s_waitcnt vmcnt(0)"); e("s_memrealtime s[96:97]")

    e("s_cmp_lg_u32 s5, 0"); e("s_cbranch_scc1 L_fin")
    e("s_mov_b64 exec, 1")
    e(f"v_mov_b32 v10, s{S_T[0]}")
    e(f"buffer_store_dword v10, off, {WS}, 0 offset:{WS_E} sc1")
    e("s_mov_b64 exec, -1")
    e("s_branch L_fin")

    g.label("L_C")
    e("s_getpc_b64 s[60:61]")
    g.label("L_pc")
    e(f"s_sub_u32 s60, s60, L_pc-{NAME}_kernel"); e("s_subb_u32 s61, s61, 0")
    e(f"s_lshl_b32 s6, s{S_WAVE}, 11"); e("v_lshl_add_u32 v9, v0, 5, s6")
    e(f"v_min_u32 v9, L_fail-{NAME}_kernel, v9")
    if cpf: e("global_load_dword v10, v9, s[60:61]")
    g.label("L_C0")
    if diag or pw:
        e("s_waitcnt lgkmcnt(0)"); ws_srd(); g.note(0, 98)
    if pw:
        if pwd:
            lpd = g.newlab("Lcd"); e(f"s_mov_b32 s7, {pwd}"); g.label(lpd); e("s_sleep 16"); e("s_sub_u32 s7, s7, 1"); e("s_cmp_lg_u32 s7, 0"); e(f"s_cbranch_scc1 {lpd}")
        e("s_and_b32 s5, s2, 7"); e("s_lshl_b32 s5, s5, 1"); e("s_bfe_u32 s6, s2, 0x10003"); e("s_add_u32 s5, s5, s6")
        e(f"s_lshl_b32 s5, s5, 3"); e(f"s_add_u32 s5, s5, s{S_WAVE}")
        e("v_lshlrev_b32 v1, 6, v0")
        if pw & 1:
            e("s_mul_i32 s6, s5, 3840"); e(f"s_add_u32 s6, s6, {WS_SP}"); e(f"buffer_load_dword v10, v1, {WS}, s6 offen")
        if pw & 2:
            e(f"s_mul_i32 s6, s5, {OS}"); e(f"s_add_u32 s6, s6, {WS_OP}"); e(f"buffer_load_dword v11, v1, {WS}, s6 offen")
    g.label("L_fin")
    if probe:
        def until(lab, base, t):
            g.label(lab); e("s_sleep 4"); e("s_memrealtime s[92:93]"); e("s_waitcnt lgkmcnt(0)"); e(f"s_sub_u32 s92, s92, {base}"); e(f"s_cmp_lt_u32 s92, {t}"); e(f"s_cbranch_scc1 {lab}")
        e("s_waitcnt lgkmcnt(0)")
        e(f"s_cmp_lt_u32 s2, {pw0}"); e("s_cselect_b32 s96, 0, s96"); e(f"s_cmp_ge_u32 s2, {pw1}"); e("s_cselect_b32 s96, 0, s96")
        e(f"s_cmp_lt_u32 s{S_WAVE}, {pv0}"); e("s_cselect_b32 s96, 0, s96"); e(f"s_cmp_ge_u32 s{S_WAVE}, {pv1}"); e("s_cselect_b32 s96, 0, s96")
        e("s_cmp_lg_u32 s96, 0"); e("s_cbranch_scc1 L_q5")
        e(f"s_cmp_lg_u32 s{S_WAVE}, 0"); e("s_cbranch_scc1 L_end")
        g.label("L_q5")
        e("s_load_dwordx2 s[90:91], s[0:1], 80")
        until("L_q0", "s98", 1600)
        e("s_not_b32 s6, s98"); e("s_atomic_umax s6, s[90:91], 128")
        e("s_mov_b32 s6, s96"); e("s_atomic_umax s6, s[90:91], 192")
        e("s_cmp_lg_u32 s2, 100"); e("s_cbranch_scc1 L_end"); e(f"s_cmp_lg_u32 s{S_WAVE}, 0"); e("s_cbranch_scc1 L_end")
        until("L_q3", "s98", 4000 if pidx < 0 else 7000)
        e("s_load_dword s8, s[90:91], 128 glc"); e("s_load_dword s9, s[90:91], 192 glc"); e("s_waitcnt lgkmcnt(0)")
        e("s_not_b32 s8, s8"); e("s_sub_u32 s9, s9, s8"); e("s_min_u32 s9, s9, 3000"); e("s_mul_i32 s9, s9, 10"); e(f"s_add_u32 s9, s9, {0 if pidx < 0 else 8000}")
        g.label("L_q4"); e("s_memrealtime s[92:93]"); e("s_waitcnt lgkmcnt(0)"); e("s_sub_u32 s92, s92, s8"); e("s_cmp_lt_u32 s92, s9"); e("s_cbranch_scc1 L_q4")
    if diag:
        e("s_waitcnt vmcnt(0)")
        g.stamp(10)
        e("s_lshl_b32 s6, s2, 3"); e(f"s_add_u32 s6, s6, s{S_WAVE}"); e("s_lshl_b32 s6, s6, 8"); e(f"s_add_u32 s6, s6, {WS_DIAG}")
        e("v_lshlrev_b32 v1, 2, v0")
        e(f"buffer_store_dword v128, v1, {WS}, s6 offen")
    g.label("L_end")
    e("s_endpgm")
    g.L += g.tail
    g.label("L_fail")
    e("s_endpgm")
    nv = 136 if diag else 128
    g.L += ['.section .rodata,"a"', ".p2align 6", f".amdhsa_kernel {NAME}_kernel",
            f"  .amdhsa_next_free_vgpr {nv}", f"  .amdhsa_next_free_sgpr {64 if final else 102}", f"  .amdhsa_accum_offset {nv}",
            "  .amdhsa_group_segment_fixed_size 0", "  .amdhsa_kernarg_size 96", "  .amdhsa_user_sgpr_count 2",
            "  .amdhsa_user_sgpr_kernarg_segment_ptr 1", "  .amdhsa_system_sgpr_workgroup_id_x 1",
            ".end_amdhsa_kernel"]
    if heads:
        L = g.L
        def cut(a, b):
            i = L.index(a); j = L.index(b); blk = L[i:j]; del L[i:j]; return blk
        bh = cut("L_BX:", "L_BX2:") + ["  s_branch L_BX2"]
        i = L.index("L_AX2:"); L[i:i] = ["  s_branch L_AX2"] + bh
        ch = cut("L_C:", "L_C0:") + ["  s_branch L_C0"]
        i = L.index("L_X:")
        if grid > 240: L[i:i] = ch
    out = "\n".join(x for x in g.L if x is not None) + "\n"
    if not diag and not probe: out = out.replace("  s_branch L_fin\n", "  s_endpgm\n")
    return out

F = [("AX:st",0,128,0,4,0),("wq",0,128,0,4,3),("ba",0,128,0,4,1),("gotq",0,128,0,8,2),("bq",0,128,0,4,5),("sm",64,128,0,8,13),("bp",64,128,0,8,14),("pubo",0,128,0,8,7),("gath",0,128,0,4,6),("goto",0,128,0,4,8),
     ("AY:ln",0,128,4,8,6),("iss",0,128,4,8,3),("bo",0,128,4,8,4),("pub",0,128,4,8,9),
     ("BX:gu",128,240,0,4,3),("gath",128,240,0,4,6),("goth",128,240,0,4,5),
     ("BY:go",128,240,4,8,2),("iss",128,240,4,8,3),("bo",128,240,4,8,4),("pub",128,240,4,8,9),
     ("R:go",128,192,0,8,13),("got",128,192,0,8,14),("end",0,240,0,8,10)]
POLLS = [("q", 0, 128, 0, 8, 11), ("o", 0, 128, 0, 4, 12), ("h", 128, 240, 0, 4, 11), ("fin", 128, 192, 0, 8, 15)]

def valid(c):
    return c.get("npe", 4) + c.get("nv", 0) + c.get("nm", 0) + c.get("np_", 0) <= c.get("NPRE", 4) <= 12 and c.get("WA", 8) <= 14

def parse(cfg):
    kw = {}
    for t in cfg.split(","):
        if not t: continue
        k, v = t.split("=")
        kw[k] = v if k in ("NT",) else int(v)
    return kw

if __name__ == "__main__":
    open(sys.argv[1], "w").write(gen(**parse(sys.argv[2] if len(sys.argv) > 2 else "")))
```

```python
import sys
NAME = "recurrent_scan__sliding_block_cached__glu_gated_glu__decode"
HEADER = open("cdna_kernels/" + NAME + ".s.ref").read().split("; @launch")[0]
NEWDIAG = 1

WS_E  = 0x0
WS_QP = 0x1000
WS_GP = 0x21000
WS_OP = 0x60000
WS_SP = 0xE8000
WS_USED = 0x168000
WS_DIAG = 0x1000000
L_CNT = 0
L_M   = 64
L_OO  = 512
L_RED = 2048
L_Q   = 4096
L_XN  = 8192
L_P   = 8192
L_K   = 12288
L_V   = 45056
L_XR  = 77824
LDS_BYTES = 79872
SPIN = 200000
SPIN_FINAL = 4000000

DOC = """\
; ---------------------------------------------------------------------------------------------------------
;
; ---------------------------------------------------------------------------------------------------------
"""

class G:
    def __init__(s, diag):
        s.L = []; s.tail = []; s.pidx = -1; s.diag = diag; s.lab = 0
    def e(s, t): s.L.append("  " + t)
    def label(s, n): s.L.append(n + ":")
    def newlab(s, p="L"):
        s.lab += 1; return f"{p}_{s.lab}"
    def nop(s, n):
        while n > 0:
            k = min(n, 16); s.e(f"s_nop {k-1}"); n -= k
    def stamp(s, i):
        if i == s.pidx: s.e("s_memrealtime s[96:97]")
        if s.diag:
            s.e("s_memrealtime s[100:101]"); s.e("s_waitcnt lgkmcnt(0)"); s.e(f"v_writelane_b32 v128, s100, {i}")
    def note(s, i, sreg):
        if s.diag: s.e(f"v_writelane_b32 v128, s{sreg}, {i}")
    def srd(s, d, lo, size):
        s.e(f"s_mov_b32 s{d}, s{lo}"); s.e(f"s_mov_b32 s{d+1}, s{lo+1}")
        s.e(f"s_mov_b32 s{d+2}, {size:#x}"); s.e(f"s_mov_b32 s{d+3}, 0x20000")

S_WAVE = 4
S_T = [10]
S_N = [11, 12, 13, 14]
WS = "s[36:39]"; WSP = "s[36:37]"
SLOTS = [16, 48, 64, 80]
V_M = 4; V_FF = 8; V_TMP = 12; V_ACC = 20; V_XX = 24; V_ACC1 = 48; V_W = 56

def tagput(g, r):
    for i in range(4): g.e(f"v_add_u32 v{r+i}, 8, v{r+i}")
    for i in range(4): g.e(f"v_bfi_b32 v{r+i}, 15, s{S_N[i]}, v{r+i}")

def wave_sum(g, v, sdst, fill=()):
    fill = list(fill)
    def pad(n):
        for _ in range(n):
            if fill: g.e(fill.pop(0))
            else: g.nop(1)
    for ror in (8, 4, 2, 1):
        pad(2); g.e(f"v_add_f32_dpp v{v}, v{v}, v{v} row_ror:{ror} row_mask:0xf bank_mask:0xf")
    pad(2); g.e(f"v_add_f32_dpp v{v}, v{v}, v{v} row_bcast:15 row_mask:0xa bank_mask:0xf")
    pad(2); g.e(f"v_add_f32_dpp v{v}, v{v}, v{v} row_bcast:31 row_mask:0xc bank_mask:0xf")
    pad(1); g.e(f"v_readlane_b32 s{sdst}, v{v}, 63")
    pad(2)
    for f in fill: g.e(f)

def xreduce(g, op, regs, tmps, steps=(16, 32)):
    for st in steps:
        for r, t in zip(regs, tmps): g.e(f"v_mov_b32 v{t}, v{r}")
        if len(regs) < 3: g.nop(3 - len(regs))
        for r, t in zip(regs, tmps): g.e(f"v_permlane{st}_swap_b32 v{t}, v{r}")
        if len(regs) < 2: g.nop(1)
        for r, t in zip(regs, tmps): g.e(f"{op} v{r}, v{t}, v{r}")

def layernorm(g, xr, xm):
    U = 28
    for i in range(8): g.e(f"v_dot2c_f32_bf16 v{9 + (i & 1)}, v12, v{xr+i}")
    unp = []
    for i in range(8):
        unp += [f"v_lshlrev_b32 v{U+2*i}, 16, v{xr+i}", f"v_and_b32 v{U+2*i+1}, 0xffff0000, v{xr+i}"]
    for _ in range(3): g.e(unp.pop(0))
    g.e("v_add_f32 v9, v9, v10")
    wave_sum(g, 9, 6, unp)
    g.e("v_mul_f32 v2, s6, v11"); g.e("v_mul_f32 v3, s6, v11")
    for i in range(0, 16, 2):
        g.e(f"v_pk_add_f32 v[{U+i}:{U+i+1}], v[{U+i}:{U+i+1}], v[2:3] neg_lo:[0,1] neg_hi:[0,1]")
    for i in range(0, 16, 2):
        a = 44 + 2 * ((i >> 1) & 1)
        g.e(f"v_pk_fma_f32 v[{a}:{a+1}], v[{U+i}:{U+i+1}], v[{U+i}:{U+i+1}], v[{a}:{a+1}]")
    g.e("v_pk_add_f32 v[44:45], v[44:45], v[46:47]")
    g.e("v_add_f32 v9, v44, v45")
    fill = [f"v_lshlrev_b32 v24, 16, v{xm}", f"v_and_b32 v25, 0xffff0000, v{xm}", f"v_lshlrev_b32 v26, 16, v{xm+1}", f"v_and_b32 v27, 0xffff0000, v{xm+1}",
            "v_cvt_pk_bf16_f32 v3, v3, v3", "v_lshlrev_b32 v3, 16, v3"] + [f"v_sub_f32 v{24+i}, v{24+i}, v3" for i in range(4)] + \
           ["v_cvt_pk_bf16_f32 v10, v24, v25", "v_cvt_pk_bf16_f32 v2, v26, v27", "v_lshlrev_b32 v24, 16, v10", "v_and_b32 v25, 0xffff0000, v10", "v_lshlrev_b32 v26, 16, v2"]
    wave_sum(g, 9, 6, fill)
    g.e("v_mul_f32 v9, s6, v11")
    g.e("v_cvt_pk_bf16_f32 v9, v9, v9"); g.e("v_lshlrev_b32 v9, 16, v9")
    g.e("v_add_f32 v9, 0x3727c5ac, v9")
    g.e("v_cvt_pk_bf16_f32 v9, v9, v9"); g.e("v_lshlrev_b32 v9, 16, v9")
    g.e("v_sqrt_f32 v9, v9")
    g.e("v_and_b32 v27, 0xffff0000, v2")
    g.e("v_cvt_pk_bf16_f32 v9, v9, v9"); g.e("v_lshlrev_b32 v9, 16, v9")
    g.e("v_rcp_f32 v9, v9"); g.nop(1)
    for i in range(4): g.e(f"v_mul_f32 v{24+i}, v{24+i}, v9")
    for i in range(4): g.e(f"v_cvt_pk_bf16_f32 v{24+i}, v{24+i}, v{24+i}")

def sel_half(g, m, h):
    t = V_TMP + 4 * (m & 1)
    for r in (2 * h, 2 * h + 1): g.e(f"v_and_b32 v{t+r}, v{V_XX+m}, v{V_M+r}")
def gemv_mfma(g, i, w):
    t = V_TMP + 4 * ((i >> 1) & 1); a = V_ACC1 if i & 1 else V_ACC
    c = "0" if i < 2 else f"v[{a}:{a+3}]"
    g.e(f"v_mfma_f32_16x16x32_bf16 v[{a}:{a+3}], v[{t}:{t+3}], v[{w}:{w+3}], {c}")
def gemv_pre(g, i, n):
    m = (i >> 1) + 1
    if 2 * m < n: sel_half(g, m, i & 1)
def gemv_fin(g, pad=8):
    g.nop(pad)
    for r in range(4): g.e(f"v_permlane32_swap_b32 v{V_ACC1+r}, v{V_XX+r}")
    g.e("s_mov_b32 exec_hi, 0")
    for r in (0, 2): g.e(f"v_pk_add_f32 v[{V_ACC+r}:{V_ACC+r+1}], v[{V_ACC+r}:{V_ACC+r+1}], v[{V_XX+r}:{V_XX+r+1}]")

def mpoll(g, n, load, check, sbase, first=None, noretry=False):
    e = g.e
    rt = g.newlab("Lrt"); lp = g.newlab("Lrl"); ok = g.newlab("Lok")
    M = lambda i: f"s[{sbase+2*i}:{sbase+2*i+1}]"
    def anymiss():
        if n == 1: e(f"s_cmp_lg_u64 {M(0)}, 0")
        else:
            e(f"s_or_b64 vcc, {M(0)}, {M(1)}")
            for i in range(2, n): e(f"s_or_b64 vcc, vcc, {M(i)}")
    for i in range(n): load(i)
    if g.diag: e(f"s_mov_b32 s7, {SPIN}")
    if first: first()
    else: e("s_waitcnt vmcnt(0)")
    for i in range(n): check(i, M(i))
    anymiss()
    if not noretry: e(f"s_cbranch_scc1 {rt}")
    g.label(ok)
    main = g.L; g.L = g.tail
    g.label(rt)
    e(f"s_mov_b32 s7, {SPIN}")
    g.label(lp)
    for i in range(n):
        e(f"s_wqm_b64 exec, {M(i)}")
        if n > 1:
            sk = g.newlab("Lms"); e(f"s_cbranch_execz {sk}"); load(i); g.label(sk)
        else: load(i)
    e("s_sub_u32 s7, s7, 1"); e("s_cbranch_scc1 L_fail")
    e("s_waitcnt vmcnt(0)")
    for i in range(n):
        if n > 1: e(f"s_wqm_b64 exec, {M(i)}")
        check(i, M(i))
    anymiss()
    e(f"s_cbranch_scc1 {lp}")
    e("s_mov_b64 exec, -1")
    e(f"s_branch {ok}")
    g.L = main

def ipoll(g, n, load, check, sbase, noretry=False):
    e = g.e
    lp = g.newlab("Lil")
    M = lambda i: f"s[{sbase+2*i}:{sbase+2*i+1}]"
    g.label(lp)
    for i in range(n):
        e(f"s_wqm_b64 exec, {M(i)}")
        if n > 1:
            sk = g.newlab("Lms"); e(f"s_cbranch_execz {sk}"); load(i); g.label(sk)
        else: load(i)
    e("s_sub_u32 s7, s7, 1"); e("s_cbranch_scc1 L_fail")
    e("s_waitcnt vmcnt(0)")
    for i in reversed(range(n)):
        if i < n - 1: e(f"s_wqm_b64 exec, {M(i)}")
        check(i, M(i))
    e("s_mov_b64 exec, -1")
    if n == 1: e(f"s_cmp_lg_u64 {M(0)}, 0")
    else: e(f"s_or_b64 vcc, {M(0)}, {M(1)}")
    if not noretry: e(f"s_cbranch_scc1 {lp}")

def tagchk1(g, r, dst):
    for i in range(4): g.e(f"v_xor_b32 v{r+i}, s{S_N[i]}, v{r+i}")
    g.e(f"v_or3_b32 v9, v{r}, v{r+1}, v{r+2}")
    g.e(f"v_bitop3_b32 v9, v9, v{r+3}, 15 bitop3:0xa8")
    g.e(f"v_cmp_ne_u32 {dst}, 0, v9")

def make_tag(g):
    g.e(f"v_readfirstlane_b32 s{S_T[0]}, v124")
    g.nop(1)
    g.e(f"s_add_u32 s{S_T[0]}, s{S_T[0]}, 0x9e3779b9")
    for i in range(4): g.e(f"s_bfe_u32 s{S_N[i]}, s{S_T[0]}, {0x40000 + 4*i:#x}")

def masks(g):
    e = g.e
    e("v_and_b32 v9, 1, v0"); e("v_lshlrev_b32 v9, 4, v9"); e("v_mov_b32 v10, 0xffff"); e("v_lshlrev_b32 v10, v9, v10")
    e("v_bfe_u32 v9, v0, 1, 2")
    for r in range(4):
        e(f"v_cmp_eq_u32 vcc, {r}, v9"); g.nop(2); e(f"v_cndmask_b32 v{V_M+r}, 0, v10, vcc")

def gen(diag=False, WA=8, WB1=5, WB2=8, WBsw=14, WYA=6, WYB=6, HB=3, NT=" nt", dbg=0, ackw=0,
        PREA=6, PREB=4, QW=4, NPRE=4, npe=4, cpf=1, cbo=0, obo=0, hbo=0,
        N1A=16, W2A=8, GA=0, N1B=16, W2B=8, GB=0, oslp=20, hslp=24, cwait=1, trace=0, pair=0, rotg=2,
        sfo=1, sfh=1, limo=2, limh=4, sfc=0, limc=1, nost=0, OS=4224, GS=14464, nv=0, nm=0, np_=0, heads=1, ost=3, slay=0, rrole=0, sfr=0, limr=4, rbo=0, rslp=0, pw=0, pwd=0, WB3=0, WBsw3=99, WA2=0, JV=4, vb=2, rack=0, probe=0, grid=256, final=0, rlast=1, pidx=-1, pw0=0, pw1=256, pv0=0, pv1=8, xm=0, lay=1, ep=1, rld=0):
    global SPIN
    SPIN = SPIN_FINAL if final else 200000
    KE = QW <= JV
    WA2 = WA2 or WA
    RS = 7680 if slay == 0 else 64; PS = 64 if slay == 0 else 4224
    NQ = NPRE - npe - nv - nm - np_; assert NQ >= 0 and NPRE <= 12
    global TR
    TR = {}; cur = [None]
    g = G(diag); e = g.e
    g.pidx = pidx
    def role(n): cur[0] = n; TR.setdefault(n, [])
    def tr(landed):
        if not trace: return
        i = len(TR[cur[0]]); TR[cur[0]].append(landed); g.stamp(16 + i)
    ST = "sc1"; LD = "sc1"
    wssize = WS_DIAG + 0x100000 if diag else WS_USED
    g.L.append(HEADER.rstrip("\n"))
    g.L.append(f"; @launch grid=({grid},1,1) block=(512,1,1) lds={LDS_BYTES}")
    g.L.append(DOC.rstrip("\n"))
    g.L.append('.amdgcn_target "amdgcn-amd-amdhsa--gfx950"')
    g.L += [".text", f".globl {NAME}_kernel", ".p2align 8", f".type {NAME}_kernel,@function", f"{NAME}_kernel:"]
    def mapA(dst):
        e(f"s_and_b32 s{dst}, s2, 7"); e(f"s_lshl_b32 s{dst}, s{dst}, 4"); e("s_lshr_b32 s6, s2, 3"); e(f"s_add_u32 s{dst}, s{dst}, s6")
    def mapAq(dst, a):
        if xm & 4: e(f"s_mov_b32 s{dst}, s{a}")
        elif xm & 1: e(f"s_xor_b32 s{dst}, s{a}, 32")
        else: e(f"s_add_u32 s{dst}, s{a}, 32"); e(f"s_and_b32 s{dst}, s{dst}, 127")
    def mapAo(dst):
        if xm & 2:
            e(f"s_bfe_u32 s{dst}, s2, 0x20001"); e(f"s_xor_b32 s{dst}, s{dst}, 1"); e(f"s_lshl_b32 s{dst}, s{dst}, 4"); e("s_lshr_b32 s7, s2, 3"); e(f"s_add_u32 s{dst}, s{dst}, s7")
            e(f"s_lshl_b32 s{dst}, s{dst}, 1"); e("s_and_b32 s6, s2, 1"); e(f"s_add_u32 s{dst}, s{dst}, s6")
        elif pair & 1:
            e(f"s_and_b32 s{dst}, s2, 7"); e(f"s_xor_b32 s{dst}, s{dst}, 4"); e(f"s_lshl_b32 s{dst}, s{dst}, 4"); e("s_lshr_b32 s6, s2, 3"); e(f"s_add_u32 s{dst}, s{dst}, s6")
        else:
            e("s_bfe_u32 s6, s2, 0x10002"); e(f"s_lshl_b32 s{dst}, s6, 1"); e(f"s_add_u32 s{dst}, s{dst}, s2"); e(f"s_add_u32 s{dst}, s{dst}, 1")
            e(f"s_and_b32 s{dst}, s{dst}, 3"); e(f"s_lshl_b32 s{dst}, s{dst}, 4"); e("s_lshr_b32 s7, s2, 3"); e(f"s_add_u32 s{dst}, s{dst}, s7")
            e(f"s_lshl_b32 s{dst}, s{dst}, 1"); e(f"s_add_u32 s{dst}, s{dst}, s6")
    def mapB(dst):
        e("s_sub_u32 s6, s2, 128"); e(f"s_and_b32 s{dst}, s6, 7"); e(f"s_mul_i32 s{dst}, s{dst}, 14"); e("s_lshr_b32 s6, s6, 3"); e(f"s_add_u32 s{dst}, s{dst}, s6")
    JT = [1, 3, 2, 0, 3, 1, 0, 2] if xm & 2 else [1, 2, 3, 0, 3, 0, 1, 2]
    JTAB = sum(j << (4 * x) for x, j in enumerate(JT))
    def mapBd(dst):
        if pair & 2:
            e(f"s_and_b32 s{dst}, s2, 7"); e(f"s_xor_b32 s{dst}, s{dst}, 4"); e(f"s_mul_i32 s{dst}, s{dst}, 14"); e("s_sub_u32 s6, s2, 128"); e("s_lshr_b32 s6, s6, 3"); e(f"s_add_u32 s{dst}, s{dst}, s6")
        else:
            e("s_and_b32 s6, s2, 7"); e("s_lshl_b32 s6, s6, 2"); e(f"s_lshr_b32 s{dst}, {JTAB:#x}, s6"); e(f"s_and_b32 s{dst}, s{dst}, 3")
            e(f"s_mul_i32 s{dst}, s{dst}, 14"); e("s_sub_u32 s7, s2, 128"); e("s_lshr_b32 s7, s7, 3"); e(f"s_add_u32 s{dst}, s{dst}, s7")
            e(f"s_lshl_b32 s{dst}, s{dst}, 1"); e(f"s_bfe_u32 s6, s2, {0x10000 if xm & 2 else 0x10002:#x}"); e(f"s_add_u32 s{dst}, s{dst}, s6")
    def mapC(dst):
        e(f"s_and_b32 s{dst}, s2, 7"); e(f"s_xor_b32 s{dst}, s{dst}, 4"); e(f"s_lshl_b32 s{dst}, s{dst}, 1"); e("s_bfe_u32 s6, s2, 0x10003"); e(f"s_add_u32 s{dst}, s{dst}, s6")
    def ws_srd():
        e("s_mov_b32 s36, s38"); e("s_mov_b32 s37, s39"); e(f"s_mov_b32 s38, {wssize:#x}"); e("s_mov_b32 s39, 0x20000")
    def epoch():
        e(f"buffer_load_dword v124, off, {WS}, 0 offset:{WS_E} sc1")
    def oo_addr(dst, isA):
        e("v_and_b32 v9, 3, v0")
        if isA:
            e("v_lshlrev_b32 v9, 3, v9"); e("v_and_b32 v10, 48, v0"); e("v_lshl_add_u32 v9, v10, 2, v9")
            e(f"s_and_b32 s6, s{S_WAVE}, 1"); e("s_lshl_b32 s6, s6, 5"); e(f"s_and_b32 s7, s{S_WAVE}, 2"); e("s_lshl_b32 s7, s7, 1"); e("s_add_u32 s6, s6, s7")
        else:
            e("v_lshlrev_b32 v9, 2, v9"); e("v_and_b32 v10, 16, v0"); e("v_lshl_add_u32 v9, v10, 3, v9"); e("v_and_b32 v10, 32, v0"); e("v_lshl_add_u32 v9, v10, 1, v9")
            e(f"s_lshl_b32 s6, s{S_WAVE}, 4")
        e(f"v_add_u32 v{dst}, s6, v9")

    def rsetup():
        sk = g.newlab("Lrs")
        e(f"s_sub_u32 s15, s2, {0 if rrole == 0 else 128}")
        g.srd(32, 34, 2048)
        e("v_lshrrev_b32 v122, 2, v0"); e(f"v_mul_u32_u24 v122, {PS}, v122"); e("v_and_b32 v9, 3, v0"); e("v_lshl_add_u32 v122, v9, 4, v122")
        e("v_and_b32 v11, 15, v0"); e("v_and_b32 v10, 12, v0"); e("v_add_u32 v125, v11, v10"); e("v_lshlrev_b32 v125, 1, v125")
        e("s_cmp_ge_u32 s15, 64"); e(f"s_cbranch_scc1 {sk}")
        if xm & 2:
            e("s_lshr_b32 s7, s15, 3"); e("s_and_b32 s5, s15, 1"); e("s_xor_b32 s5, s5, 1"); e("s_lshl_b32 s5, s5, 5"); e("s_add_u32 s5, s5, s7")
            e("s_bfe_u32 s7, s15, 0x20001"); e("s_lshl_b32 s7, s7, 3"); e("s_add_u32 s5, s5, s7")
        else:
            e("s_lshr_b32 s7, s15, 3"); e("s_and_b32 s5, s15, 7"); e("s_xor_b32 s5, s5, 4"); e("s_lshl_b32 s5, s5, 3"); e("s_add_u32 s5, s5, s7")
        e(f"s_lshl_b32 s6, s{S_WAVE}, 4"); e(f"s_mul_i32 s7, s{S_WAVE}, 14"); e("s_add_u32 s7, s7, 8")
        e(f"s_cmp_lt_u32 s{S_WAVE}, 4"); e("s_cselect_b32 s6, s6, s7"); e("s_cselect_b32 s45, -1, 0x00ffffff"); e("s_mov_b32 s44, -1")
        e(f"s_mul_i32 s6, s6, {PS}"); e(f"s_mul_i32 s9, s5, {RS}"); e("s_add_u32 s9, s9, s6"); e(f"s_add_u32 s9, s9, {WS_SP}")
        e("s_lshr_b32 s8, s5, 3"); e("s_lshl_b32 s8, s8, 8"); e("s_and_b32 s6, s5, 3"); e("s_lshl_b32 s6, s6, 6"); e("s_add_u32 s8, s8, s6")
        e("s_and_b32 s6, s5, 4"); e("s_lshl_b32 s6, s6, 1"); e("s_add_u32 s8, s8, s6")
        e(f"s_add_u32 s6, s8, {L_XR}"); e("v_add_u32 v10, s6, v125"); e("ds_read_u16 v126, v10")
        for r in range(4): e(f"v_mov_b32 v{44+r}, 0")
        e("v_lshrrev_b32 v10, 4, v0"); e("v_lshl_add_u32 v9, v9, 2, v10"); e("v_mul_u32_u24 v123, 48, v9"); e(f"s_lshl_b32 s6, s{S_WAVE}, 2"); e("v_add_u32 v123, s6, v123")
        e("v_mul_u32_u24 v124, 48, v11"); e("v_mov_b32 v127, 0"); e("v_mov_b32 v43, 1")
        e(f"s_mov_b32 s7, {SPIN + 1}")
        e("s_waitcnt lgkmcnt(0)")
        e("v_lshlrev_b32 v126, 16, v126")
        g.label(sk)
    if diag or probe: e("s_memrealtime s[98:99]")
    if probe: e("s_mov_b32 s96, 0")
    e(f"s_cmp_ge_u32 s2, {grid}"); e("s_cbranch_scc1 L_end")
    e("s_load_dwordx16 s[16:31], s[0:1], 0"); e("s_load_dwordx8 s[32:39], s[0:1], 64")
    e("v_lshrrev_b32 v1, 6, v0"); e("v_and_b32 v0, 63, v0")
    e(f"v_readfirstlane_b32 s{S_WAVE}, v1")
    e("s_mov_b32 s43, 0x20000")
    e("v_lshrrev_b32 v2, 4, v0"); e("v_and_b32 v3, 15, v0")
    if grid > 240: e("s_cmp_ge_u32 s2, 240"); e("s_cbranch_scc1 L_C")
    e(f"s_cmp_lt_u32 s{S_WAVE}, 4"); e("s_cbranch_scc1 L_X")

    e("s_setprio 3")
    e("v_lshlrev_b32 v1, 5, v0")
    e(f"s_lshl_b32 s9, s{S_WAVE}, 9"); e("s_sub_u32 s9, s9, 2048"); e("v_lshlrev_b32 v9, 3, v0")
    e("s_mov_b32 s42, 2048")
    e("s_waitcnt lgkmcnt(0)")
    e("s_mov_b32 s40, s16"); e("s_mov_b32 s41, s17")
    e("buffer_load_dwordx4 v[112:115], v1, s[40:43], 0 offen")
    e("buffer_load_dwordx4 v[116:119], v1, s[40:43], 0 offen offset:16")
    e("buffer_load_dwordx2 v[110:111], v9, s[40:43], s9 offen")
    ws_srd(); epoch()
    e("s_branch L_Y")

    g.label("L_X")
    e("s_cmp_ge_u32 s2, 128"); e("s_cbranch_scc1 L_BX")
    mapA(5); mapAq(59, 5)
    e("v_lshlrev_b32 v1, 17, v2"); e("v_lshl_add_u32 v1, v3, 4, v1")
    e("s_and_b32 s6, s59, 7"); e("s_lshl_b32 s6, s6, 1"); e(f"s_lshr_b32 s7, s{S_WAVE}, 1"); e("s_add_u32 s6, s6, s7")
    e("s_lshr_b32 s57, s59, 3"); e("s_lshl_b32 s57, s57, 1"); e(f"s_and_b32 s7, s{S_WAVE}, 1"); e("s_add_u32 s57, s57, s7")
    e("s_lshl_b32 s8, s6, 19"); e("s_lshl_b32 s7, s57, 8"); e("s_add_u32 s8, s8, s7")
    e("s_lshl_b32 s9, s6, 8")
    e("s_mov_b32 s42, 0x800000")
    e("s_waitcnt lgkmcnt(0)")
    e("s_mov_b32 s40, s22"); e("s_mov_b32 s41, s23")
    def issue_A(k):
        if k < 16:
            e(f"buffer_load_dwordx4 v[{V_W+4*k}:{V_W+4*k+3}], v1, s[40:43], s8 offen{NT}")
            if k < 15: e(f"s_add_u32 s8, s8, {8*8192}" if k % 2 == 0 else f"s_sub_u32 s8, s8, {7*8192}")
        else:
            isK = k < 24; late = k >= 24 + JV
            e(f"s_add_u32 m0, s50, s{58 if isK else 51}")
            e(f"s_add_u32 s49, s50, s{52 if late else 56}")
            e(f"buffer_load_dwordx4 v{121 if isK or late else 122}, {'s[44:47]' if isK else 's[60:63]'}, s49 offen{NT} lds")
            if k < 31: e("s_add_u32 s50, s50, 4096"); e("s_and_b32 s50, s50, 0x7000")
    for k in range(WA): issue_A(k)
    g.label("L_AX2")
    ws_srd(); epoch()
    e("s_setprio 3")
    g.note(0, 98)
    e("v_lshrrev_b32 v9, 3, v0"); e("v_lshl_add_u32 v120, v9, 5, s9")
    masks(g)
    g.srd(44, 18, 67108864); g.srd(60, 20, 67108864)
    e("s_lshr_b32 s56, s5, 5"); e(f"s_mul_i32 s50, s56, {rotg*4096}"); e("s_and_b32 s50, s50, 0x7000")
    e("s_lshl_b32 s56, s56, 24"); e("s_and_b32 s7, s5, 31"); e("s_lshl_b32 s7, s7, 15"); e("s_add_u32 s56, s56, s7")
    e(f"s_lshl_b32 s7, s{S_WAVE}, 10"); e("s_add_u32 s56, s56, s7"); e(f"s_add_u32 s56, s56, {61440*256}")
    e(f"s_add_u32 s58, s7, {L_K}"); e(f"s_add_u32 s51, s7, {L_V}")
    e(f"s_lshl_b32 s7, s{S_WAVE}, 2"); e("v_add_u32 v9, s7, v2")
    e("v_xor_b32 v10, v9, v3"); e("v_lshlrev_b32 v10, 4, v10"); e("v_lshl_add_u32 v121, v2, 8, v10")
    e("v_and_b32 v9, 7, v9"); e("v_lshlrev_b32 v10, 1, v9"); e("v_xor_b32 v10, v10, v3"); e("v_lshlrev_b32 v10, 4, v10")
    e("v_lshl_add_u32 v122, v2, 8, v10")
    e("s_lshr_b32 s6, s57, 3"); e("s_lshl_b32 s6, s6, 15"); e("s_and_b32 s57, s57, 7"); e("s_lshl_b32 s57, s57, 9"); e("s_add_u32 s57, s57, s6")
    e("s_and_b32 s6, s59, 7"); e("s_lshl_b32 s6, s6, 12"); e("s_add_u32 s57, s57, s6"); e(f"s_add_u32 s57, s57, {WS_QP}")
    e("v_lshlrev_b32 v125, 4, v0")
    e(f"s_lshl_b32 s6, s{S_WAVE}, 9"); e("v_add_u32 v126, s6, v125"); e("v_xor_b32 v127, 0x400, v126")
    def pos(k): return k if k < WA else k + 1
    nis = WA
    PRE = min(32, WA + PREA)
    role("AX")
    while nis < PRE:
        e(f"s_waitcnt vmcnt({WA-1})"); issue_A(nis); nis += 1; tr(nis - WA)
    e("s_barrier")
    for i in range(2):
        e(f"ds_read_b128 v[{V_XX+4*i}:{V_XX+4*i+3}], v120 offset:{L_XN + 16*i}")
    e("s_waitcnt lgkmcnt(1)")
    sel_half(g, 0, 0); sel_half(g, 0, 1)
    for i in range(16):
        if i == 4: e("s_waitcnt lgkmcnt(0)")
        gemv_pre(g, i, 16)
        e(f"s_waitcnt vmcnt({pos(nis-1) - pos(i)})")
        while nis < i + 1 + (WA if nis < 16 else WA2) and nis < 24 + JV:
            issue_A(nis); nis += 1
        gemv_mfma(g, i, V_W + 4 * i)
        if i + 1 > PRE - WA: tr(i + 1)
        if i == 14: make_tag(g)
    g.stamp(3)
    e(f"s_and_b32 s6, s{S_WAVE}, 1"); e("s_lshl_b32 s6, s6, 2"); e("v_mov_b32 v9, s6"); e("v_mov_b32 v10, 1")
    gemv_fin(g, 4)
    e(f"ds_write_b128 v126, v[{V_ACC}:{V_ACC+3}] offset:{L_RED}")
    e("s_mov_b32 exec_lo, 1")
    e(f"ds_add_rtn_u32 v10, v9, v10 offset:{L_CNT}")
    e("s_mov_b32 exec_lo, -1")
    e(f"ds_read_b128 v[24:27], v127 offset:{L_RED}")
    e("s_waitcnt lgkmcnt(1)")
    e("v_readfirstlane_b32 s6, v10")
    skip = g.newlab("Lnl")
    e("s_cmp_eq_u32 s6, 0"); e(f"s_cbranch_scc1 {skip}")
    e("s_waitcnt lgkmcnt(0)")
    for r in range(0, 4, 2): e(f"v_pk_add_f32 v[{20+r}:{21+r}], v[{20+r}:{21+r}], v[{24+r}:{25+r}]")
    tagput(g, V_ACC)
    if not dbg & 16 and not nost & 1: e(f"buffer_store_dwordx4 v[{V_ACC}:{V_ACC+3}], v125, {WS}, s57 offen {ST}")
    g.label(skip)
    e("s_mov_b64 exec, -1")
    while nis < 24 + JV:
        e(f"s_waitcnt vmcnt({WA2-1})"); issue_A(nis); nis += 1; tr(nis - WA2)
    e("v_mov_b32 v121, v122"); e("s_mov_b32 s52, s56")

    def att_pre():
        e("v_lshrrev_b32 v2, 4, v0"); e("v_and_b32 v3, 15, v0")
        e("v_xor_b32 v10, v2, v3"); e("v_lshlrev_b32 v10, 4, v10"); e("v_lshl_add_u32 v1, v3, 8, v10")
        e(f"s_lshl_b32 s6, s{S_WAVE}, 12")
        for s in range(4):
            e(f"v_xor_b32 v10, {64*s}, v1"); e(f"v_add_u32 v{43+4*s}, s6, v10")
        e("v_lshrrev_b32 v1, 2, v0"); e("v_and_b32 v9, 7, v1"); e(f"v_xor_b32 v9, s{S_WAVE}, v9"); e("v_lshlrev_b32 v9, 5, v9")
        e("v_and_b32 v10, 3, v0"); e("v_lshl_add_u32 v9, v10, 3, v9"); e("v_lshl_add_u32 v9, v1, 8, v9"); e(f"v_add_u32 v122, {L_V}, v9")
        e("v_and_b32 v1, 7, v0"); e("v_mul_u32_u24 v123, 272, v1"); e("v_lshl_add_u32 v123, v2, 4, v123")
        e("v_lshlrev_b32 v124, 2, v3")
        e(f"s_lshr_b32 s6, s{S_WAVE}, 1"); e("s_lshl_b32 s6, s6, 10"); e(f"s_and_b32 s7, s{S_WAVE}, 1"); e("s_lshl_b32 s7, s7, 3"); e("s_add_u32 s6, s6, s7")
        e("v_lshlrev_b32 v125, 4, v0"); e("v_add_u32 v126, s6, v125")
        e("v_lshlrev_b32 v127, 4, v3"); e("v_lshl_add_u32 v127, v2, 7, v127")
        e(f"s_mul_i32 s58, s5, {OS}"); e(f"s_lshl_b32 s7, s{S_WAVE}, 9"); e("s_add_u32 s58, s58, s7"); e(f"s_add_u32 s58, s58, {WS_OP}")
        e("v_mov_b32 v12, 0x3f803f80"); e("v_mov_b32 v13, v12"); e("v_mov_b32 v14, v12"); e("v_mov_b32 v15, v12")
        e("s_lshr_b32 s9, s5, 5"); e("s_lshl_b32 s9, s9, 15"); e("s_add_u32 s9, s9, s7"); e(f"s_add_u32 s9, s9, {WS_QP}")
        e("s_add_u32 s56, s9, 8192")
        e("v_lshrrev_b32 v9, 5, v0"); e("v_and_b32 v10, 31, v0"); e("v_lshlrev_b32 v16, 12, v9"); e("v_lshl_add_u32 v16, v10, 4, v16")
        e("v_add_u32 v17, 16384, v16")
        e(f"s_mul_i32 s6, s{S_WAVE}, 272"); e("v_lshlrev_b32 v18, 4, v3"); e("v_lshl_add_u32 v18, v9, 2, v18"); e("v_and_b32 v10, 1, v2")
        e("v_lshl_add_u32 v18, v10, 3, v18"); e("v_add_u32 v18, s6, v18")
    att_pre()
    if trace:
        for k in range(WA2 - 1, QW - 1, -1): e(f"s_waitcnt vmcnt({k})"); tr(24 + JV - k)
    e(f"s_waitcnt vmcnt({QW}) lgkmcnt(0)")
    g.label("L_att")
    e("s_barrier")
    g.stamp(1)
    def yload(k):
        e(f"buffer_load_dwordx4 v[{V_W+4*k}:{V_W+4*k+3}], v120, s[40:43], s8 offen{NT}")
        if k < 15: e("s_add_u32 s8, s8, 8192" if k % 4 != 3 else "s_add_u32 s8, s8, s57")
    ny = [0]
    def yissue(n):
        if not n: return
        lx = g.newlab("Lxp")
        e(f"s_cmp_lt_u32 s{S_WAVE}, 4"); e(f"s_cbranch_scc1 {lx}")
        for k in range(ny[0], ny[0] + n): yload(k)
        ny[0] += n
        g.label(lx)
    nq = 0 if dbg & 1 else 4
    def q_load(i):
        if nq: e(f"buffer_load_dwordx4 v[{24+4*i}:{27+4*i}], v{16 + (i >> 1)}, {WS}, {'s56' if i & 1 else 's9'} offen {LD}")
    def k_reads():
        for s in range(4): e(f"ds_read_b128 v[{40+4*s}:{43+4*s}], v{43+4*s} offset:{L_K}")
    def v_reads():
        for sg in range(4):
            for u in range(2):
                e(f"ds_read_b64_tr_b16 v[{104+4*sg+2*u}:{105+4*sg+2*u}], v122 offset:{8192*sg + 4096*u}")
    def v_wait():
        lx = g.newlab("Lxv")
        e(f"s_cmp_ge_u32 s{S_WAVE}, 4"); e(f"s_cbranch_scc1 {lx}")
        e("s_waitcnt vmcnt(0)")
        g.label(lx)
    def q_first():
        e("s_barrier")
        lx = g.newlab("Lxp"); ly = g.newlab("Lxq")
        e(f"s_cmp_lt_u32 s{S_WAVE}, 4"); e(f"s_cbranch_scc1 {lx}")
        for k in range(npe): yload(k)
        ny[0] = npe
        if KE: k_reads()
        e(f"s_waitcnt vmcnt({npe})")
        e(f"s_branch {ly}")
        g.label(lx)
        for k in range(24 + JV, 32): issue_A(k)
        if KE: k_reads()
        e(f"s_waitcnt vmcnt({8 - JV})")
        g.label(ly)
        yissue(nv)
    mpoll(g, 4, q_load, lambda i, dst: tagchk1(g, 24 + 4 * i, dst), 16, first=q_first, noretry=bool(dbg & 33))
    g.note(11, 7)
    g.stamp(2)
    for st in (8, 4):
        for r in range(0, st, 2): e(f"v_pk_add_f32 v[{24+r}:{25+r}], v[{24+r}:{25+r}], v[{24+st+r}:{25+st+r}]")
    g.nop(2)
    e("v_permlane32_swap_b32 v24, v26"); e("v_permlane32_swap_b32 v25, v27"); g.nop(1)
    e("v_pk_add_f32 v[24:25], v[24:25], v[26:27]")
    e("v_cvt_pk_bf16_f32 v24, v24, v25")
    e(f"ds_write_b32 v18, v24 offset:{L_Q}")
    yissue(NQ)
    e("s_waitcnt lgkmcnt(0)")
    e("s_barrier")
    g.stamp(5)
    if not KE: k_reads()
    for s in range(4):
        e(f"ds_read_b128 v[{24+4*s}:{27+4*s}], v123 offset:{L_Q + 64*s}")
    e("s_mov_b32 s6, 0x3db504f3")
    e("s_mov_b32 s7, 0x3fb8aa3b")
    for s in range(4):
        e(f"s_waitcnt lgkmcnt({3 - s})")
        c = "0" if s == 0 else "v[20:23]"
        e(f"v_mfma_f32_16x16x32_bf16 v[20:23], v[{40+4*s}:{43+4*s}], v[{24+4*s}:{27+4*s}], {c}")
    g.nop(8)
    e("v_max3_f32 v11, v20, v21, v22"); e("v_cvt_pk_bf16_f32 v9, v20, v21"); e("v_max_f32 v11, v11, v23")
    e(f"ds_max_f32 v124, v11 offset:{L_M}")
    e("v_cvt_pk_bf16_f32 v10, v22, v23")
    e("v_lshlrev_b32 v20, 16, v9"); e("v_and_b32 v21, 0xffff0000, v9"); e("v_lshlrev_b32 v22, 16, v10"); e("v_and_b32 v23, 0xffff0000, v10")
    for i in range(4): e(f"v_mul_f32 v{20+i}, s6, v{20+i}")
    yissue(nm)
    if vb == 1: v_wait()
    e("s_waitcnt lgkmcnt(0)")
    e("s_barrier")
    e(f"ds_read_b32 v11, v124 offset:{L_M}")
    if vb == 1: v_reads()
    e("v_cvt_pk_bf16_f32 v9, v20, v21"); e("v_cvt_pk_bf16_f32 v10, v22, v23")
    e("v_lshlrev_b32 v20, 16, v9"); e("v_and_b32 v21, 0xffff0000, v9"); e("v_lshlrev_b32 v22, 16, v10"); e("v_and_b32 v23, 0xffff0000, v10")
    e(f"s_waitcnt lgkmcnt({8 if vb == 1 else 0})")
    e("v_cvt_pk_bf16_f32 v11, v11, v11"); e("v_lshlrev_b32 v11, 16, v11"); e("v_mul_f32 v11, s6, v11")
    e("v_cvt_pk_bf16_f32 v11, v11, v11"); e("v_lshlrev_b32 v11, 16, v11")
    e("v_mul_f32 v11, s7, v11")
    for i in range(4): e(f"v_fma_f32 v{20+i}, v{20+i}, s7, -v11")
    for i in range(4): e(f"v_exp_f32 v{20+i}, v{20+i}")
    e("v_cvt_pk_bf16_f32 v20, v20, v21"); e("v_cvt_pk_bf16_f32 v21, v22, v23")
    e(f"ds_write_b64 v126, v[20:21] offset:{L_P}")
    yissue(np_)
    g.stamp(13)
    if vb == 2: v_wait()
    e("s_waitcnt lgkmcnt(0)")
    e("s_barrier")
    g.stamp(14)
    for sg in range(4):
        e(f"ds_read_b128 v[{40+4*sg}:{43+4*sg}], v125 offset:{L_P + 1024*sg}")
        if vb == 2:
            for u in range(2):
                e(f"ds_read_b64_tr_b16 v[{104+4*sg+2*u}:{105+4*sg+2*u}], v122 offset:{8192*sg + 4096*u}")
    e(f"v_mov_b32 v23, s{S_T[0]}")
    for sg in range(4):
        e(f"s_waitcnt lgkmcnt({(3 - sg) * (3 if vb == 2 else 1)})")
        e(f"v_mfma_f32_16x16x32_bf16 v[24:27], v[12:15], v[{40+4*sg}:{43+4*sg}], " + ("0" if sg == 0 else "v[24:27]"))
        e(f"v_mfma_f32_16x16x32_bf16 v[16:19], v[{104+4*sg}:{107+4*sg}], v[{40+4*sg}:{43+4*sg}], " + ("0" if sg == 0 else "v[16:19]"))
    e("s_mov_b32 exec_lo, 0x00ff00ff"); e("s_mov_b32 exec_hi, 0x00ff00ff")
    g.nop(5)
    e("v_rcp_f32 v9, v24"); e("v_log_f32 v10, v24")
    for r in range(4): e(f"v_mul_f32 v{16+r}, v9, v{16+r}")
    e("v_add_f32 v22, v11, v10")
    e("v_cvt_pk_bf16_f32 v20, v16, v17"); e("v_cvt_pk_bf16_f32 v21, v18, v19")
    if not dbg & 16 and not nost & 2: e(f"buffer_store_dwordx4 v[20:23], v127, {WS}, s58 offen {ST}")
    e("s_mov_b64 exec, -1")
    g.stamp(7)
    if lay & 1: e(f"s_cmp_lt_u32 s{S_WAVE}, 4"); e("s_cbranch_scc1 L_XA2"); g.L.append("@YA2"); g.label("L_XA2")
    else: e(f"s_cmp_ge_u32 s{S_WAVE}, 4"); e("s_cbranch_scc1 L_YA2")
    mapAo(5)
    e("s_lshr_b32 s8, s5, 5"); e(f"s_mul_i32 s8, s8, {32*OS}"); e("s_bfe_u32 s6, s5, 0x30002"); e("s_lshl_b32 s6, s6, 9"); e("s_add_u32 s8, s8, s6")
    e("s_bfe_u32 s6, s5, 0x10001"); e("s_lshl_b32 s6, s6, 6"); e("s_add_u32 s8, s8, s6"); e(f"s_lshl_b32 s6, s{S_WAVE}, 7"); e("s_add_u32 s8, s8, s6")
    e(f"s_add_u32 s8, s8, {WS_OP}"); e(f"s_add_u32 s9, s8, {16*OS}")
    e("v_lshrrev_b32 v125, 2, v0"); e(f"v_mul_u32_u24 v125, {OS}, v125"); e("v_and_b32 v9, 3, v0"); e("v_lshl_add_u32 v125, v9, 4, v125")
    oo_addr(2, True)
    e("s_mov_b64 s[44:45], -1"); e("s_mov_b64 s[46:47], -1"); e(f"s_mov_b32 s7, {SPIN + 1}")
    if ackw & 1: e("s_waitcnt vmcnt(0)")
    g.stamp(6)
    def o_load(i):
        if not dbg & 2: e(f"buffer_load_dwordx4 v[{24+4*i}:{27+4*i}], v125, {WS}, s{8+i} offen {LD}")
    def o_check(i, dst): e(f"v_cmp_ne_u32 {dst}, s{S_T[0]}, v{27+4*i}")
    ipoll(g, 2, o_load, o_check, 44, noretry=bool(dbg & 34))
    g.note(12, 7)
    g.stamp(8)
    e("v_max_f32 v16, v26, v30")
    e("v_lshlrev_b32 v32, 16, v24"); e("v_and_b32 v33, 0xffff0000, v24")
    e("v_max_f32_dpp v16, v16, v16 row_ror:4 row_mask:0xf bank_mask:0xf")
    e("v_lshlrev_b32 v34, 16, v25"); e("v_and_b32 v35, 0xffff0000, v25")
    e("v_max_f32_dpp v16, v16, v16 row_ror:8 row_mask:0xf bank_mask:0xf")
    e("v_mov_b32 v9, v16")
    e("v_lshlrev_b32 v40, 16, v28"); e("v_and_b32 v41, 0xffff0000, v28")
    e("v_permlane16_swap_b32 v9, v16")
    g.nop(1)
    e("v_max_f32 v16, v9, v16")
    e("v_mov_b32 v9, v16")
    e("v_lshlrev_b32 v42, 16, v29"); e("v_and_b32 v43, 0xffff0000, v29")
    e("v_permlane32_swap_b32 v9, v16"); g.nop(1); e("v_max_f32 v16, v9, v16")
    e("v_sub_f32 v26, v26, v16"); e("v_sub_f32 v30, v30, v16")
    e("v_exp_f32 v26, v26"); e("v_exp_f32 v30, v30"); g.nop(1)
    e("v_add_f32 v36, v26, v30")
    for r in range(4): e(f"v_mul_f32 v{32+r}, v26, v{32+r}")
    for r in range(4): e(f"v_fmac_f32 v{32+r}, v30, v{40+r}")
    e("v_mov_b32 v37, v36"); g.nop(1)
    e("v_permlane32_swap_b32 v32, v34"); e("v_permlane32_swap_b32 v33, v35"); e("v_permlane32_swap_b32 v37, v36")
    e("v_add_f32 v32, v32, v34"); e("v_add_f32 v33, v33, v35"); e("v_add_f32 v36, v36, v37")
    e("v_mov_b32 v37, v36"); g.nop(1)
    e("v_permlane16_swap_b32 v32, v33"); e("v_permlane16_swap_b32 v37, v36"); g.nop(1)
    e("v_add_f32 v32, v32, v33"); e("v_add_f32 v36, v36, v37")
    for ror in (4, 8):
        g.nop(1)
        for r in (32, 36): e(f"v_add_f32_dpp v{r}, v{r}, v{r} row_ror:{ror} row_mask:0xf bank_mask:0xf")
    e("v_rcp_f32 v36, v36"); g.nop(1)
    e("v_mul_f32 v32, v36, v32")
    g.label("L_oo")
    e("v_cvt_pk_bf16_f32 v32, v32, v32")
    e(f"ds_write_b32 v2, v32 offset:{L_OO}")
    e("s_waitcnt lgkmcnt(0)")
    e("s_barrier")
    g.label("L_oo2")
    g.stamp(9)
    rsetup()
    e("s_branch L_R")

    g.label("L_BX")
    mapB(5)
    e(f"s_mov_b32 s6, {32*7168}"); e("v_mul_lo_u32 v1, v2, s6"); e("v_lshl_add_u32 v1, v3, 4, v1")
    e("s_bfe_u32 s9, s5, 0x30001")
    e(f"s_mul_i32 s8, s9, {128*7168}"); e("s_lshr_b32 s7, s5, 4"); e("s_lshl_b32 s7, s7, 2"); e(f"s_add_u32 s7, s7, s{S_WAVE}")
    e("s_lshl_b32 s56, s7, 9")
    e("s_lshl_b32 s7, s7, 8"); e("s_add_u32 s8, s8, s7")
    e("s_mov_b32 s42, 7340032")
    e("s_and_b32 s6, s5, 1"); e("s_cmp_eq_u32 s6, 0")
    e("s_waitcnt lgkmcnt(0)")
    e("s_cselect_b32 s40, s28, s30"); e("s_cselect_b32 s41, s29, s31")
    def issue_B(k):
        r = V_W + 4 * (k & 15)
        e(f"buffer_load_dwordx4 v[{r}:{r+3}], v1, s[40:43], s8 offen{NT}")
        if k < 31: e(f"s_add_u32 s8, s8, {16*7168}" if k % 2 == 0 else f"s_sub_u32 s8, s8, {15*7168}")
    for k in range(WB1): issue_B(k)
    g.label("L_BX2")
    ws_srd(); epoch()
    e("s_setprio 3")
    g.note(0, 98)
    e("s_lshl_b32 s7, s9, 9"); e("v_lshrrev_b32 v9, 3, v0"); e("v_lshl_add_u32 v120, v9, 6, s7")
    masks(g)
    e("s_lshl_b32 s6, s6, 3"); e("s_add_u32 s6, s6, s9"); e(f"s_mul_i32 s6, s6, {GS}"); e("s_add_u32 s56, s56, s6"); e(f"s_add_u32 s56, s56, {WS_GP}")
    e("v_lshlrev_b32 v121, 4, v0")
    e("v_lshrrev_b32 v122, 2, v0"); e(f"v_mul_u32_u24 v122, {GS}, v122"); e("v_and_b32 v9, 3, v0"); e("v_lshl_add_u32 v122, v9, 4, v122")
    mapBd(9)
    e("s_bfe_u32 s6, s9, 0x10001"); e("s_lshl_b32 s6, s6, 7"); e("s_lshr_b32 s9, s9, 2"); e("s_lshl_b32 s9, s9, 9"); e("s_add_u32 s9, s9, s6")
    e(f"s_and_b32 s6, s{S_WAVE}, 2"); e("s_lshl_b32 s6, s6, 7"); e("s_add_u32 s9, s9, s6"); e(f"s_and_b32 s6, s{S_WAVE}, 1"); e("s_lshl_b32 s6, s6, 6"); e("s_add_u32 s9, s9, s6")
    e(f"s_add_u32 s9, s9, {WS_GP}")
    oo_addr(2, False)
    def posb(k): return k if k < WB1 else k + 1
    nis = WB1
    PRE = min(15, WB1 + PREB)
    role("BX")
    while nis < PRE:
        e(f"s_waitcnt vmcnt({WB1-1})"); issue_B(nis); nis += 1; tr(nis - WB1)
    e("s_barrier")
    for i in range(4):
        e(f"ds_read_b128 v[{V_XX+4*i}:{V_XX+4*i+3}], v120 offset:{L_XN + 16*i}")
    e("s_waitcnt lgkmcnt(3)")
    sel_half(g, 0, 0); sel_half(g, 0, 1)
    b2done = False
    for i in range(32):
        if i == 4: e("s_waitcnt lgkmcnt(0)")
        gemv_pre(g, i, 32)
        e(f"s_waitcnt vmcnt({posb(nis-1) - posb(i)})")
        W = WB1 if i < WBsw else (WB2 if i < WBsw3 else WB3)
        while nis < 32 and nis < i + 1 + W:
            issue_B(nis); nis += 1
        if nis == 32 and not b2done and 31 - i <= HB:
            e("s_barrier"); b2done = True
        gemv_mfma(g, i, V_W + 4 * (i & 15))
        if i + 1 > PRE - WB1: tr(i + 1)
        if i == 20: make_tag(g)
    g.stamp(3)
    gemv_fin(g)
    tagput(g, V_ACC)
    if not dbg & 16 and not nost & 4: e(f"buffer_store_dwordx4 v[20:23], v121, {WS}, s56 offen {ST}")
    e("s_mov_b64 exec, -1")
    if not b2done: e("s_barrier")
    e("s_mov_b64 s[44:45], -1"); e(f"s_mov_b32 s7, {SPIN + 1}")
    if ackw & 2: e("s_waitcnt vmcnt(0)")
    g.stamp(6)
    def h_load(i):
        if not dbg & 4: e(f"buffer_load_dwordx4 v[28:31], v122, {WS}, s9 offen {LD}")
    ipoll(g, 1, h_load, lambda i, dst: tagchk1(g, 28, dst), 44, noretry=bool(dbg & 36))
    g.note(11, 7)
    g.stamp(5)
    e("v_permlane16_swap_b32 v28, v30"); e("v_permlane16_swap_b32 v29, v31"); g.nop(1)
    e("v_add_f32 v28, v28, v30"); e("v_add_f32 v29, v29, v31")
    for ror in (4, 8):
        g.nop(1)
        for r in (28, 29): e(f"v_add_f32_dpp v{r}, v{r}, v{r} row_ror:{ror} row_mask:0xf bank_mask:0xf")
    g.nop(2)
    e("v_permlane32_swap_b32 v28, v29")
    g.nop(1)
    e("v_cvt_pk_bf16_f32 v28, v28, v29")
    e("v_lshlrev_b32 v32, 16, v28"); e("v_mul_f32 v32, 0xbfb8aa3b, v32"); e("v_exp_f32 v32, v32")
    e("v_and_b32 v29, 0xffff0000, v28")
    e("v_add_f32 v32, 1.0, v32"); e("v_rcp_f32 v32, v32"); g.nop(1)
    e("v_cvt_pk_bf16_f32 v32, v32, v32"); e("v_lshlrev_b32 v32, 16, v32")
    e("v_mul_f32 v32, v32, v29")
    if lay & 1:
        e("v_cvt_pk_bf16_f32 v32, v32, v32")
        e(f"ds_write_b32 v2, v32 offset:{L_OO}")
        e("s_waitcnt lgkmcnt(0)")
        e("s_barrier")
        e("s_branch L_oo2")
    else: e("s_branch L_oo")

    g.label("L_Y")
    g.note(0, 98)
    e("s_lshl_b32 s9, s9, 1"); e("v_lshl_add_u32 v122, v0, 4, s9")
    e("v_mov_b32 v9, 0"); e("v_mov_b32 v44, 0"); e("v_mov_b32 v45, 0"); e("v_mov_b32 v46, 0"); e("v_mov_b32 v47, 0")
    e(f"ds_write_b128 v9, v[44:47] offset:{L_CNT}")
    e("v_lshlrev_b32 v10, 2, v3"); e("v_mov_b32 v11, 0xff800000"); e(f"ds_write_b32 v10, v11 offset:{L_M}")
    e("v_lshlrev_b32 v120, 11, v2"); e("v_lshl_add_u32 v120, v3, 4, v120")
    e("v_lshrrev_b32 v121, 2, v0"); e(f"v_mul_u32_u24 v121, {RS}, v121"); e("v_and_b32 v10, 3, v0"); e("v_lshl_add_u32 v121, v10, 4, v121")
    e("v_mov_b32 v12, 0x3f803f80"); e("v_mov_b32 v10, 0"); e("v_mov_b32 v11, 0x3a800000")
    e("s_waitcnt vmcnt(1)")
    e("v_lshrrev_b32 v1, 1, v122"); e(f"v_add_u32 v1, {L_XR}, v1"); e("ds_write_b64 v1, v[110:111]")
    layernorm(g, 112, 110)
    e(f"ds_write_b128 v122, v[24:27] offset:{L_XN}")
    e("s_waitcnt lgkmcnt(0) vmcnt(0)")
    g.stamp(6)
    e("s_barrier")
    make_tag(g)
    masks(g)
    def ysetup(pbase):
        e("s_lshr_b32 s9, s5, 1")
        if pbase == 0:
            e("s_lshr_b32 s8, s5, 5"); e("s_lshl_b32 s8, s8, 21"); e("s_bfe_u32 s6, s5, 0x10001"); e("s_lshl_b32 s6, s6, 20"); e("s_add_u32 s8, s8, s6")
            e("s_bfe_u32 s6, s5, 0x30002"); e("s_lshl_b32 s6, s6, 15"); e("s_add_u32 s8, s8, s6"); e(f"s_mov_b32 s57, {116*2048}")
        else:
            e("s_lshl_b32 s8, s9, 17"); e("s_movk_i32 s57, 8192")
        e("s_and_b32 s6, s5, 1"); e("s_lshl_b32 s6, s6, 2")
        e(f"s_add_u32 s6, s6, s{S_WAVE}"); e("s_sub_u32 s6, s6, 4")
        e("s_lshl_b32 s7, s6, 8"); e("s_add_u32 s8, s8, s7")
        e(f"s_mul_i32 s59, s6, {8*RS}"); e(f"s_mul_i32 s9, s9, {PS}"); e("s_add_u32 s59, s59, s9"); e(f"s_add_u32 s59, s59, {WS_SP + pbase*PS}")
    e("s_cmp_ge_u32 s2, 128"); e("s_cbranch_scc1 L_YB2")
    mapAo(5); ysetup(0)
    e("s_mov_b32 s40, s24"); e("s_mov_b32 s41, s25"); e("s_mov_b32 s42, 0x800000")
    mapA(5)
    att_pre()
    e("s_branch L_att")
    def ystream(k0, W1, N1, W2, gate):
        for k in range(k0, 16):
            if gate and k == max(N1, k0): e("s_barrier")
            W = W1 if k < N1 else W2
            if k >= W: e(f"s_waitcnt vmcnt({W-1})")
            yload(k)
            if k >= W: tr(k + 1 - W)
        if gate and max(N1, k0) >= 16: e("s_barrier")
        if trace:
            for k in range(min(W, 16) - 1, -1, -1): e(f"s_waitcnt vmcnt({k})"); tr(16 - k)
    g.label("L_YB2")
    mapBd(5); ysetup(64)
    e("s_mov_b32 s40, s32"); e("s_mov_b32 s41, s33"); e("s_mov_b32 s42, 7340032")
    e("s_setprio 0")
    e("s_barrier")
    g.stamp(2)
    role("BY"); ystream(0, WYB, N1B, W2B, 0)
    e("s_branch L_YL3")
    g.label("L_YA2")
    e("s_setprio 0")
    role("AY"); ystream(NPRE, WYA, N1A, W2A, 0)
    g.L.append("; ---- last GEMV and publish")
    g.label("L_YL3")
    g.stamp(3)
    rsetup()
    e("s_setprio 3")
    e("v_and_b32 v9, 56, v0"); e("v_lshlrev_b32 v9, 2, v9")
    e("s_barrier")
    g.stamp(4)
    for i in range(2):
        e(f"ds_read_b128 v[{V_XX+4*i}:{V_XX+4*i+3}], v9 offset:{L_OO + 16*i}")
    e("s_waitcnt lgkmcnt(1)")
    sel_half(g, 0, 0); sel_half(g, 0, 1)
    for i in range(16):
        gemv_pre(g, i, 16)
        e(f"s_waitcnt vmcnt({15-i})" + (" lgkmcnt(0)" if i == 4 else ""))
        gemv_mfma(g, i, V_W + 4 * i)
    gemv_fin(g)
    tagput(g, V_ACC)
    if not dbg & 16 and not nost & 8: e(f"buffer_store_dwordx4 v[{V_ACC}:{V_ACC+3}], v121, {WS}, s59 offen {ST}")
    e("s_mov_b64 exec, -1")
    g.stamp(9)

    g.label("L_R")
    e(f"s_cmp_ge_u32 s15, 64"); e("s_cbranch_scc1 L_fin")
    if dbg & 256: e("s_branch L_fin")
    if rack: e("s_waitcnt vmcnt(0)")
    e("s_barrier")
    g.stamp(13)
    def r_load(i): e(f"buffer_load_dwordx4 v[44:47], v122, {WS}, s9 offen " + ["sc1", "sc1 nt", "sc0 sc1", "sc0 sc1 nt"][rld])
    ipoll(g, 1, r_load, lambda i, dst: tagchk1(g, 44, dst), 44, noretry=bool(dbg & 8))
    g.note(15, 7)
    g.stamp(14)
    e("v_permlane32_swap_b32 v44, v46"); e("v_permlane32_swap_b32 v45, v47"); g.nop(1)
    e("v_add_f32 v44, v44, v46"); e("v_add_f32 v45, v45, v47"); g.nop(2)
    e("v_permlane16_swap_b32 v44, v45"); g.nop(1)
    e("v_add_f32 v44, v44, v45")
    for ror in (4, 8):
        g.nop(2); e(f"v_add_f32_dpp v44, v44, v44 row_ror:{ror} row_mask:0xf bank_mask:0xf")
    e(f"ds_write_b32 v123, v44 offset:{L_RED}")
    e("s_mov_b64 exec, 1")
    e(f"ds_add_rtn_u32 v43, v127, v43 offset:{L_CNT + 8}")
    e("s_mov_b64 exec, -1")
    e(f"ds_read_b128 v[28:31], v124 offset:{L_RED + 16}"); e(f"ds_read_b128 v[24:27], v124 offset:{L_RED}")
    e("s_waitcnt lgkmcnt(2)")
    e("v_readfirstlane_b32 s6, v43")
    e("s_waitcnt lgkmcnt(1)")
    e("s_cmp_lg_u32 s6, 7"); e("s_cbranch_scc1 L_fin")
    e("v_add_f32 v28, v28, v29"); e("v_add_f32 v30, v30, v31"); e("v_add_f32 v28, v28, v30")
    e("v_cvt_pk_bf16_f32 v28, v28, v28"); e("v_lshlrev_b32 v28, 16, v28")
    e("v_mul_f32 v10, 0xbfb8aa3b, v28"); e("v_exp_f32 v10, v10")
    e("s_waitcnt lgkmcnt(0)")
    e("v_add_f32 v24, v24, v25"); e("v_add_f32 v10, 1.0, v10"); e("v_rcp_f32 v10, v10")
    e("v_add_f32 v26, v26, v27"); e("v_add_f32 v24, v24, v26")
    e("v_mul_f32 v10, v28, v10")
    e("v_cvt_pk_bf16_f32 v10, v10, v24")
    e("v_and_b32 v24, 0xffff0000, v10"); e("v_lshlrev_b32 v10, 16, v10")
    e("v_mul_f32 v10, v24, v10")
    e("v_cvt_pk_bf16_f32 v10, v10, v10"); e("v_lshlrev_b32 v10, 16, v10")
    e("v_add_f32 v10, v126, v10")
    pol = ["", " sc1", " nt", " sc0 sc1"][ost & 3]
    e("s_mov_b64 exec, 0xffff")
    e("v_cvt_pk_bf16_f32 v10, v10, v10")
    e("buffer_store_short v10, v125, s[32:35], s8 offen" + pol)
    e("s_mov_b64 exec, -1")
    if probe and pidx < 0: e("s_waitcnt vmcnt(0)"); e("s_memrealtime s[96:97]")

    e("s_cmp_lg_u32 s5, 0"); e("s_cbranch_scc1 L_fin")
    e("s_mov_b64 exec, 1")
    e(f"v_mov_b32 v10, s{S_T[0]}")
    e(f"buffer_store_dword v10, off, {WS}, 0 offset:{WS_E}" + ("" if ep else " sc1"))
    e("s_mov_b64 exec, -1")
    e("s_branch L_fin")

    g.label("L_C")
    e("s_getpc_b64 s[60:61]")
    g.label("L_pc")
    e(f"s_sub_u32 s60, s60, L_pc-{NAME}_kernel"); e("s_subb_u32 s61, s61, 0")
    e(f"s_lshl_b32 s6, s{S_WAVE}, 11"); e("v_lshl_add_u32 v9, v0, 5, s6")
    e(f"v_min_u32 v9, L_fail-{NAME}_kernel, v9")
    if cpf: e("global_load_dword v10, v9, s[60:61]")
    g.label("L_C0")
    if diag or pw:
        e("s_waitcnt lgkmcnt(0)"); ws_srd(); g.note(0, 98)
    if pw:
        if pwd:
            lpd = g.newlab("Lcd"); e(f"s_mov_b32 s7, {pwd}"); g.label(lpd); e("s_sleep 16"); e("s_sub_u32 s7, s7, 1"); e("s_cmp_lg_u32 s7, 0"); e(f"s_cbranch_scc1 {lpd}")
        e("s_and_b32 s5, s2, 7"); e("s_lshl_b32 s5, s5, 1"); e("s_bfe_u32 s6, s2, 0x10003"); e("s_add_u32 s5, s5, s6")
        e(f"s_lshl_b32 s5, s5, 3"); e(f"s_add_u32 s5, s5, s{S_WAVE}")
        e("v_lshlrev_b32 v1, 6, v0")
        if pw & 1:
            e("s_mul_i32 s6, s5, 3840"); e(f"s_add_u32 s6, s6, {WS_SP}"); e(f"buffer_load_dword v10, v1, {WS}, s6 offen")
        if pw & 2:
            e(f"s_mul_i32 s6, s5, {OS}"); e(f"s_add_u32 s6, s6, {WS_OP}"); e(f"buffer_load_dword v11, v1, {WS}, s6 offen")
    g.label("L_fin")
    if probe:
        def until(lab, base, t):
            g.label(lab); e("s_sleep 4"); e("s_memrealtime s[92:93]"); e("s_waitcnt lgkmcnt(0)"); e(f"s_sub_u32 s92, s92, {base}"); e(f"s_cmp_lt_u32 s92, {t}"); e(f"s_cbranch_scc1 {lab}")
        e("s_waitcnt lgkmcnt(0)")
        e(f"s_cmp_lt_u32 s2, {pw0}"); e("s_cselect_b32 s96, 0, s96"); e(f"s_cmp_ge_u32 s2, {pw1}"); e("s_cselect_b32 s96, 0, s96")
        e(f"s_cmp_lt_u32 s{S_WAVE}, {pv0}"); e("s_cselect_b32 s96, 0, s96"); e(f"s_cmp_ge_u32 s{S_WAVE}, {pv1}"); e("s_cselect_b32 s96, 0, s96")
        e("s_cmp_lg_u32 s96, 0"); e("s_cbranch_scc1 L_q5")
        e(f"s_cmp_lg_u32 s{S_WAVE}, 0"); e("s_cbranch_scc1 L_end")
        g.label("L_q5")
        e("s_load_dwordx2 s[90:91], s[0:1], 80")
        until("L_q0", "s98", 1600)
        e("s_not_b32 s6, s98"); e("s_atomic_umax s6, s[90:91], 128")
        e("s_mov_b32 s6, s96"); e("s_atomic_umax s6, s[90:91], 192")
        e("s_cmp_lg_u32 s2, 100"); e("s_cbranch_scc1 L_end"); e(f"s_cmp_lg_u32 s{S_WAVE}, 0"); e("s_cbranch_scc1 L_end")
        until("L_q3", "s98", 4000 if pidx < 0 else 7000)
        e("s_load_dword s8, s[90:91], 128 glc"); e("s_load_dword s9, s[90:91], 192 glc"); e("s_waitcnt lgkmcnt(0)")
        e("s_not_b32 s8, s8"); e("s_sub_u32 s9, s9, s8"); e("s_min_u32 s9, s9, 3000"); e("s_mul_i32 s9, s9, 10"); e(f"s_add_u32 s9, s9, {0 if pidx < 0 else 8000}")
        g.label("L_q4"); e("s_memrealtime s[92:93]"); e("s_waitcnt lgkmcnt(0)"); e("s_sub_u32 s92, s92, s8"); e("s_cmp_lt_u32 s92, s9"); e("s_cbranch_scc1 L_q4")
    if diag:
        e("s_waitcnt vmcnt(0)")
        g.stamp(10)
        e("s_lshl_b32 s6, s2, 3"); e(f"s_add_u32 s6, s6, s{S_WAVE}"); e("s_lshl_b32 s6, s6, 8"); e(f"s_add_u32 s6, s6, {WS_DIAG}")
        e("v_lshlrev_b32 v1, 2, v0")
        e(f"buffer_store_dword v128, v1, {WS}, s6 offen")
    g.label("L_end")
    e("s_endpgm")
    g.L += g.tail
    g.label("L_fail")
    e("s_endpgm")
    nv = 136 if diag else 128
    g.L += ['.section .rodata,"a"', ".p2align 6", f".amdhsa_kernel {NAME}_kernel",
            f"  .amdhsa_next_free_vgpr {nv}", f"  .amdhsa_next_free_sgpr {64 if final else 102}", f"  .amdhsa_accum_offset {nv}",
            "  .amdhsa_group_segment_fixed_size 0", "  .amdhsa_kernarg_size 96", "  .amdhsa_user_sgpr_count 2",
            "  .amdhsa_user_sgpr_kernarg_segment_ptr 1", "  .amdhsa_system_sgpr_workgroup_id_x 1",
            ".end_amdhsa_kernel"]
    if lay & 1:
        L = g.L
        i = L.index("L_YA2:"); j = L.index("; ---- last GEMV and publish"); blk = L[i:j] + ["  s_branch L_YL3"]; del L[i - 1:j]
        i = L.index("@YA2"); L[i:i + 1] = blk
    if heads:
        L = g.L
        def cut(a, b):
            i = L.index(a); j = L.index(b); blk = L[i:j]; del L[i:j]; return blk
        bh = cut("L_BX:", "L_BX2:") + ["  s_branch L_BX2"]
        i = L.index("L_AX2:"); L[i:i] = ["  s_branch L_AX2"] + bh
        ch = cut("L_C:", "L_C0:") + ["  s_branch L_C0"]
        i = L.index("L_X:")
        if grid > 240: L[i:i] = ch
    out = "\n".join(x for x in g.L if x is not None) + "\n"
    if not diag and not probe: out = out.replace("  s_branch L_fin\n", "  s_endpgm\n")
    return out

F = [("AX:st",0,128,0,4,0),("wq",0,128,0,4,3),("ba",0,128,0,4,1),("gotq",0,128,0,8,2),("bq",0,128,0,4,5),("sm",64,128,0,8,13),("bp",64,128,0,8,14),("pubo",0,128,0,8,7),("gath",0,128,0,4,6),("goto",0,128,0,4,8),
     ("AY:ln",0,128,4,8,6),("iss",0,128,4,8,3),("bo",0,128,4,8,4),("pub",0,128,4,8,9),
     ("BX:gu",128,240,0,4,3),("gath",128,240,0,4,6),("goth",128,240,0,4,5),
     ("BY:go",128,240,4,8,2),("iss",128,240,4,8,3),("bo",128,240,4,8,4),("pub",128,240,4,8,9),
     ("R:go",128,192,0,8,13),("got",128,192,0,8,14),("end",0,240,0,8,10)]
POLLS = [("q", 0, 128, 0, 8, 11), ("o", 0, 128, 0, 4, 12), ("h", 128, 240, 0, 4, 11), ("fin", 128, 192, 0, 8, 15)]

def valid(c):
    return c.get("npe", 4) + c.get("nv", 0) + c.get("nm", 0) + c.get("np_", 0) <= c.get("NPRE", 4) <= 12 and c.get("WA", 8) <= 14

def parse(cfg):
    kw = {}
    for t in cfg.split(","):
        if not t: continue
        k, v = t.split("=")
        kw[k] = v if k in ("NT",) else int(v)
    return kw

if __name__ == "__main__":
    open(sys.argv[1], "w").write(gen(**parse(sys.argv[2] if len(sys.argv) > 2 else "")))
```

```python
import sys
NAME = "recurrent_scan__sliding_block_cached__glu_gated_glu__decode"
HEADER = open("cdna_kernels/" + NAME + ".s.ref").read().split("; @launch")[0]
NEWDIAG = 1

WS_E  = 0x0
WS_QP = 0x1000
WS_GP = 0x21000
WS_OP = 0x60000
WS_SP = 0xE8000
WS_USED = 0x168000
WS_DIAG = 0x1000000
L_CNT = 0
L_M   = 64
L_OO  = 512
L_RED = 2048
L_Q   = 4096
L_XN  = 8192
L_P   = 8192
L_K   = 12288
L_V   = 45056
L_XR  = 77824
LDS_BYTES = 79872
SPIN = 200000
SPIN_FINAL = 4000000

DOC = """\
; ---------------------------------------------------------------------------------------------------------
;
; ---------------------------------------------------------------------------------------------------------
"""

class G:
    def __init__(s, diag):
        s.L = []; s.tail = []; s.pidx = -1; s.diag = diag; s.lab = 0
    def e(s, t): s.L.append("  " + t)
    def label(s, n): s.L.append(n + ":")
    def newlab(s, p="L"):
        s.lab += 1; return f"{p}_{s.lab}"
    def nop(s, n):
        while n > 0:
            k = min(n, 16); s.e(f"s_nop {k-1}"); n -= k
    def stamp(s, i):
        if i == s.pidx: s.e("s_memrealtime s[96:97]")
        if s.diag:
            s.e("s_memrealtime s[100:101]"); s.e("s_waitcnt lgkmcnt(0)"); s.e(f"v_writelane_b32 v128, s100, {i}")
    def note(s, i, sreg):
        if s.diag: s.e(f"v_writelane_b32 v128, s{sreg}, {i}")
    def srd(s, d, lo, size):
        s.e(f"s_mov_b32 s{d}, s{lo}"); s.e(f"s_mov_b32 s{d+1}, s{lo+1}")
        s.e(f"s_mov_b32 s{d+2}, {size:#x}"); s.e(f"s_mov_b32 s{d+3}, 0x20000")

S_WAVE = 4
S_T = [10]
S_N = [11, 12, 13, 14]
WS = "s[36:39]"; WSP = "s[36:37]"
SLOTS = [16, 48, 64, 80]
V_M = 4; V_FF = 8; V_TMP = 12; V_ACC = 20; V_XX = 24; V_ACC1 = 48; V_W = 56

def tagput(g, r):
    for i in range(4): g.e(f"v_add_u32 v{r+i}, 8, v{r+i}")
    for i in range(4): g.e(f"v_bfi_b32 v{r+i}, 15, s{S_N[i]}, v{r+i}")

def wave_sum(g, v, sdst, fill=()):
    fill = list(fill)
    def pad(n):
        for _ in range(n):
            if fill: g.e(fill.pop(0))
            else: g.nop(1)
    for ror in (8, 4, 2, 1):
        pad(2); g.e(f"v_add_f32_dpp v{v}, v{v}, v{v} row_ror:{ror} row_mask:0xf bank_mask:0xf")
    pad(2); g.e(f"v_add_f32_dpp v{v}, v{v}, v{v} row_bcast:15 row_mask:0xa bank_mask:0xf")
    pad(2); g.e(f"v_add_f32_dpp v{v}, v{v}, v{v} row_bcast:31 row_mask:0xc bank_mask:0xf")
    pad(1); g.e(f"v_readlane_b32 s{sdst}, v{v}, 63")
    pad(2)
    for f in fill: g.e(f)

def xreduce(g, op, regs, tmps, steps=(16, 32)):
    for st in steps:
        for r, t in zip(regs, tmps): g.e(f"v_mov_b32 v{t}, v{r}")
        if len(regs) < 3: g.nop(3 - len(regs))
        for r, t in zip(regs, tmps): g.e(f"v_permlane{st}_swap_b32 v{t}, v{r}")
        if len(regs) < 2: g.nop(1)
        for r, t in zip(regs, tmps): g.e(f"{op} v{r}, v{t}, v{r}")

def layernorm(g, xr, xm):
    U = 28
    for i in range(8): g.e(f"v_dot2c_f32_bf16 v{9 + (i & 1)}, v12, v{xr+i}")
    unp = []
    for i in range(8):
        unp += [f"v_lshlrev_b32 v{U+2*i}, 16, v{xr+i}", f"v_and_b32 v{U+2*i+1}, 0xffff0000, v{xr+i}"]
    for _ in range(3): g.e(unp.pop(0))
    g.e("v_add_f32 v9, v9, v10")
    wave_sum(g, 9, 6, unp)
    g.e("v_mul_f32 v2, s6, v11"); g.e("v_mul_f32 v3, s6, v11")
    for i in range(0, 16, 2):
        g.e(f"v_pk_add_f32 v[{U+i}:{U+i+1}], v[{U+i}:{U+i+1}], v[2:3] neg_lo:[0,1] neg_hi:[0,1]")
    for i in range(0, 16, 2):
        a = 44 + 2 * ((i >> 1) & 1)
        g.e(f"v_pk_fma_f32 v[{a}:{a+1}], v[{U+i}:{U+i+1}], v[{U+i}:{U+i+1}], v[{a}:{a+1}]")
    g.e("v_pk_add_f32 v[44:45], v[44:45], v[46:47]")
    g.e("v_add_f32 v9, v44, v45")
    fill = [f"v_lshlrev_b32 v24, 16, v{xm}", f"v_and_b32 v25, 0xffff0000, v{xm}", f"v_lshlrev_b32 v26, 16, v{xm+1}", f"v_and_b32 v27, 0xffff0000, v{xm+1}",
            "v_cvt_pk_bf16_f32 v3, v3, v3", "v_lshlrev_b32 v3, 16, v3"] + [f"v_sub_f32 v{24+i}, v{24+i}, v3" for i in range(4)] + \
           ["v_cvt_pk_bf16_f32 v10, v24, v25", "v_cvt_pk_bf16_f32 v2, v26, v27", "v_lshlrev_b32 v24, 16, v10", "v_and_b32 v25, 0xffff0000, v10", "v_lshlrev_b32 v26, 16, v2"]
    wave_sum(g, 9, 6, fill)
    g.e("v_mul_f32 v9, s6, v11")
    g.e("v_cvt_pk_bf16_f32 v9, v9, v9"); g.e("v_lshlrev_b32 v9, 16, v9")
    g.e("v_add_f32 v9, 0x3727c5ac, v9")
    g.e("v_cvt_pk_bf16_f32 v9, v9, v9"); g.e("v_lshlrev_b32 v9, 16, v9")
    g.e("v_sqrt_f32 v9, v9")
    g.e("v_and_b32 v27, 0xffff0000, v2")
    g.e("v_cvt_pk_bf16_f32 v9, v9, v9"); g.e("v_lshlrev_b32 v9, 16, v9")
    g.e("v_rcp_f32 v9, v9"); g.nop(1)
    for i in range(4): g.e(f"v_mul_f32 v{24+i}, v{24+i}, v9")
    for i in range(4): g.e(f"v_cvt_pk_bf16_f32 v{24+i}, v{24+i}, v{24+i}")

def sel_half(g, m, h):
    t = V_TMP + 4 * (m & 1)
    for r in (2 * h, 2 * h + 1): g.e(f"v_and_b32 v{t+r}, v{V_XX+m}, v{V_M+r}")
def gemv_mfma(g, i, w):
    t = V_TMP + 4 * ((i >> 1) & 1); a = V_ACC1 if i & 1 else V_ACC
    c = "0" if i < 2 else f"v[{a}:{a+3}]"
    g.e(f"v_mfma_f32_16x16x32_bf16 v[{a}:{a+3}], v[{t}:{t+3}], v[{w}:{w+3}], {c}")
def gemv_pre(g, i, n):
    m = (i >> 1) + 1
    if 2 * m < n: sel_half(g, m, i & 1)
def gemv_fin(g, pad=8):
    g.nop(pad)
    for r in range(4): g.e(f"v_permlane32_swap_b32 v{V_ACC1+r}, v{V_XX+r}")
    g.e("s_mov_b32 exec_hi, 0")
    for r in (0, 2): g.e(f"v_pk_add_f32 v[{V_ACC+r}:{V_ACC+r+1}], v[{V_ACC+r}:{V_ACC+r+1}], v[{V_XX+r}:{V_XX+r+1}]")

def mpoll(g, n, load, check, sbase, first=None, noretry=False):
    e = g.e
    rt = g.newlab("Lrt"); lp = g.newlab("Lrl"); ok = g.newlab("Lok")
    M = lambda i: f"s[{sbase+2*i}:{sbase+2*i+1}]"
    def anymiss():
        if n == 1: e(f"s_cmp_lg_u64 {M(0)}, 0")
        else:
            e(f"s_or_b64 vcc, {M(0)}, {M(1)}")
            for i in range(2, n): e(f"s_or_b64 vcc, vcc, {M(i)}")
    for i in range(n): load(i)
    if g.diag: e(f"s_mov_b32 s7, {SPIN}")
    if first: first()
    else: e("s_waitcnt vmcnt(0)")
    for i in range(n): check(i, M(i))
    anymiss()
    if not noretry: e(f"s_cbranch_scc1 {rt}")
    g.label(ok)
    main = g.L; g.L = g.tail
    g.label(rt)
    e(f"s_mov_b32 s7, {SPIN}")
    g.label(lp)
    for i in range(n):
        e(f"s_wqm_b64 exec, {M(i)}")
        if n > 1:
            sk = g.newlab("Lms"); e(f"s_cbranch_execz {sk}"); load(i); g.label(sk)
        else: load(i)
    e("s_sub_u32 s7, s7, 1"); e("s_cbranch_scc1 L_fail")
    e("s_waitcnt vmcnt(0)")
    for i in range(n):
        if n > 1: e(f"s_wqm_b64 exec, {M(i)}")
        check(i, M(i))
    anymiss()
    e(f"s_cbranch_scc1 {lp}")
    e("s_mov_b64 exec, -1")
    e(f"s_branch {ok}")
    g.L = main

def ipoll(g, n, load, check, sbase, noretry=False):
    e = g.e
    lp = g.newlab("Lil")
    M = lambda i: f"s[{sbase+2*i}:{sbase+2*i+1}]"
    g.label(lp)
    for i in range(n):
        e(f"s_wqm_b64 exec, {M(i)}")
        if n > 1:
            sk = g.newlab("Lms"); e(f"s_cbranch_execz {sk}"); load(i); g.label(sk)
        else: load(i)
    e("s_sub_u32 s7, s7, 1"); e("s_cbranch_scc1 L_fail")
    e("s_waitcnt vmcnt(0)")
    for i in reversed(range(n)):
        if i < n - 1: e(f"s_wqm_b64 exec, {M(i)}")
        check(i, M(i))
    e("s_mov_b64 exec, -1")
    if n == 1: e(f"s_cmp_lg_u64 {M(0)}, 0")
    else: e(f"s_or_b64 vcc, {M(0)}, {M(1)}")
    if not noretry: e(f"s_cbranch_scc1 {lp}")

def tagchk1(g, r, dst):
    for i in range(4): g.e(f"v_xor_b32 v{r+i}, s{S_N[i]}, v{r+i}")
    g.e(f"v_or3_b32 v9, v{r}, v{r+1}, v{r+2}")
    g.e(f"v_bitop3_b32 v9, v9, v{r+3}, 15 bitop3:0xa8")
    g.e(f"v_cmp_ne_u32 {dst}, 0, v9")

def make_tag(g):
    g.e("v_readfirstlane_b32 s3, v124"); g.e("v_readfirstlane_b32 s6, v52"); g.e("v_readfirstlane_b32 s7, v53")
    g.nop(1)
    g.e("s_cmp_lg_u32 s7, 0"); g.e("s_cselect_b32 s3, s6, s3")
    g.e(f"s_add_u32 s{S_T[0]}, s3, 0x9e3779b9")
    for i in range(4): g.e(f"s_bfe_u32 s{S_N[i]}, s{S_T[0]}, {0x40000 + 4*i:#x}")

def masks(g):
    e = g.e
    e("v_and_b32 v9, 1, v0"); e("v_lshlrev_b32 v9, 4, v9"); e("v_mov_b32 v10, 0xffff"); e("v_lshlrev_b32 v10, v9, v10")
    e("v_bfe_u32 v9, v0, 1, 2")
    for r in range(4):
        e(f"v_cmp_eq_u32 vcc, {r}, v9"); g.nop(2); e(f"v_cndmask_b32 v{V_M+r}, 0, v10, vcc")

def gen(diag=False, WA=8, WB1=5, WB2=8, WBsw=14, WYA=6, WYB=6, HB=3, NT=" nt", dbg=0, ackw=0,
        PREA=6, PREB=4, QW=4, NPRE=4, npe=4, cpf=1, cbo=0, obo=0, hbo=0,
        N1A=16, W2A=8, GA=0, N1B=16, W2B=8, GB=0, oslp=20, hslp=24, cwait=1, trace=0, pair=0, rotg=2,
        sfo=1, sfh=1, limo=2, limh=4, sfc=0, limc=1, nost=0, OS=4224, GS=14464, nv=0, nm=0, np_=0, heads=1, ost=3, slay=0, rrole=0, sfr=0, limr=4, rbo=0, rslp=0, pw=0, pwd=0, WB3=0, WBsw3=99, WA2=0, JV=4, vb=2, rack=0, probe=0, grid=256, final=0, rlast=1, pidx=-1, pw0=0, pw1=256, pv0=0, pv1=8, xm=0, lay=1, late=0):
    global SPIN
    SPIN = SPIN_FINAL if final else 200000
    KE = QW <= JV
    WA2 = WA2 or WA
    RS = 7680 if slay == 0 else 64; PS = 64 if slay == 0 else 4224
    NQ = NPRE - npe - nv - nm - np_; assert NQ >= 0 and NPRE <= 12
    global TR
    TR = {}; cur = [None]
    g = G(diag); e = g.e
    g.pidx = pidx
    def role(n): cur[0] = n; TR.setdefault(n, [])
    def tr(landed):
        if not trace: return
        i = len(TR[cur[0]]); TR[cur[0]].append(landed); g.stamp(16 + i)
    ST = "sc1"; LD = "sc1"
    wssize = WS_DIAG + 0x100000 if diag else WS_USED
    g.L.append(HEADER.rstrip("\n"))
    g.L.append(f"; @launch grid=({grid},1,1) block=(512,1,1) lds={LDS_BYTES}")
    g.L.append(DOC.rstrip("\n"))
    g.L.append('.amdgcn_target "amdgcn-amd-amdhsa--gfx950"')
    g.L += [".text", f".globl {NAME}_kernel", ".p2align 8", f".type {NAME}_kernel,@function", f"{NAME}_kernel:"]
    def mapA(dst):
        e(f"s_and_b32 s{dst}, s2, 7"); e(f"s_lshl_b32 s{dst}, s{dst}, 4"); e("s_lshr_b32 s6, s2, 3"); e(f"s_add_u32 s{dst}, s{dst}, s6")
    def mapAq(dst, a):
        if xm & 4: e(f"s_mov_b32 s{dst}, s{a}")
        elif xm & 1: e(f"s_xor_b32 s{dst}, s{a}, 32")
        else: e(f"s_add_u32 s{dst}, s{a}, 32"); e(f"s_and_b32 s{dst}, s{dst}, 127")
    def mapAo(dst):
        if xm & 2:
            e(f"s_bfe_u32 s{dst}, s2, 0x20001"); e(f"s_xor_b32 s{dst}, s{dst}, 1"); e(f"s_lshl_b32 s{dst}, s{dst}, 4"); e("s_lshr_b32 s7, s2, 3"); e(f"s_add_u32 s{dst}, s{dst}, s7")
            e(f"s_lshl_b32 s{dst}, s{dst}, 1"); e("s_and_b32 s6, s2, 1"); e(f"s_add_u32 s{dst}, s{dst}, s6")
        elif pair & 1:
            e(f"s_and_b32 s{dst}, s2, 7"); e(f"s_xor_b32 s{dst}, s{dst}, 4"); e(f"s_lshl_b32 s{dst}, s{dst}, 4"); e("s_lshr_b32 s6, s2, 3"); e(f"s_add_u32 s{dst}, s{dst}, s6")
        else:
            e("s_bfe_u32 s6, s2, 0x10002"); e(f"s_lshl_b32 s{dst}, s6, 1"); e(f"s_add_u32 s{dst}, s{dst}, s2"); e(f"s_add_u32 s{dst}, s{dst}, 1")
            e(f"s_and_b32 s{dst}, s{dst}, 3"); e(f"s_lshl_b32 s{dst}, s{dst}, 4"); e("s_lshr_b32 s7, s2, 3"); e(f"s_add_u32 s{dst}, s{dst}, s7")
            e(f"s_lshl_b32 s{dst}, s{dst}, 1"); e(f"s_add_u32 s{dst}, s{dst}, s6")
    def mapB(dst):
        e("s_sub_u32 s6, s2, 128"); e(f"s_and_b32 s{dst}, s6, 7"); e(f"s_mul_i32 s{dst}, s{dst}, 14"); e("s_lshr_b32 s6, s6, 3"); e(f"s_add_u32 s{dst}, s{dst}, s6")
    JT = [1, 3, 2, 0, 3, 1, 0, 2] if xm & 2 else [1, 2, 3, 0, 3, 0, 1, 2]
    JTAB = sum(j << (4 * x) for x, j in enumerate(JT))
    def mapBd(dst):
        if pair & 2:
            e(f"s_and_b32 s{dst}, s2, 7"); e(f"s_xor_b32 s{dst}, s{dst}, 4"); e(f"s_mul_i32 s{dst}, s{dst}, 14"); e("s_sub_u32 s6, s2, 128"); e("s_lshr_b32 s6, s6, 3"); e(f"s_add_u32 s{dst}, s{dst}, s6")
        else:
            e("s_and_b32 s6, s2, 7"); e("s_lshl_b32 s6, s6, 2"); e(f"s_lshr_b32 s{dst}, {JTAB:#x}, s6"); e(f"s_and_b32 s{dst}, s{dst}, 3")
            e(f"s_mul_i32 s{dst}, s{dst}, 14"); e("s_sub_u32 s7, s2, 128"); e("s_lshr_b32 s7, s7, 3"); e(f"s_add_u32 s{dst}, s{dst}, s7")
            e(f"s_lshl_b32 s{dst}, s{dst}, 1"); e(f"s_bfe_u32 s6, s2, {0x10000 if xm & 2 else 0x10002:#x}"); e(f"s_add_u32 s{dst}, s{dst}, s6")
    def mapC(dst):
        e(f"s_and_b32 s{dst}, s2, 7"); e(f"s_xor_b32 s{dst}, s{dst}, 4"); e(f"s_lshl_b32 s{dst}, s{dst}, 1"); e("s_bfe_u32 s6, s2, 0x10003"); e(f"s_add_u32 s{dst}, s{dst}, s6")
    def dbgload():
        e("buffer_load_dwordx2 v[52:53], off, s[64:67], 0 sc1")
    def ws_srd():
        g.srd(64, 36, 256)
        e("s_mov_b32 s36, s38"); e("s_mov_b32 s37, s39"); e(f"s_mov_b32 s38, {wssize:#x}"); e("s_mov_b32 s39, 0x20000")
    def epoch():
        e(f"buffer_load_dword v124, off, {WS}, 0 offset:{WS_E} sc1")
    class Ops:
        def __init__(o): o.l = []; o.done = 0
        def add(o, n): o.l.append(n)
        def wait(o, cnt):
            e(f"s_waitcnt vmcnt({cnt})"); o.done = max(o.done, len(o.l) - cnt)
            if "D" not in o.l and o.landed("E"): dbgload(); o.add("D")
        def wait_for(o, n): o.wait(len(o.l) - 1 - o.l.index(n))
        def landed(o, n): return n in o.l[:o.done]
    def oo_addr(dst, isA):
        e("v_and_b32 v9, 3, v0")
        if isA:
            e("v_lshlrev_b32 v9, 3, v9"); e("v_and_b32 v10, 48, v0"); e("v_lshl_add_u32 v9, v10, 2, v9")
            e(f"s_and_b32 s6, s{S_WAVE}, 1"); e("s_lshl_b32 s6, s6, 5"); e(f"s_and_b32 s7, s{S_WAVE}, 2"); e("s_lshl_b32 s7, s7, 1"); e("s_add_u32 s6, s6, s7")
        else:
            e("v_lshlrev_b32 v9, 2, v9"); e("v_and_b32 v10, 16, v0"); e("v_lshl_add_u32 v9, v10, 3, v9"); e("v_and_b32 v10, 32, v0"); e("v_lshl_add_u32 v9, v10, 1, v9")
            e(f"s_lshl_b32 s6, s{S_WAVE}, 4")
        e(f"v_add_u32 v{dst}, s6, v9")

    def rsetup():
        sk = g.newlab("Lrs")
        e(f"s_sub_u32 s15, s2, {0 if rrole == 0 else 128}")
        g.srd(32, 34, 2048)
        e("v_lshrrev_b32 v122, 2, v0"); e(f"v_mul_u32_u24 v122, {PS}, v122"); e("v_and_b32 v9, 3, v0"); e("v_lshl_add_u32 v122, v9, 4, v122")
        e("v_and_b32 v11, 15, v0"); e("v_and_b32 v10, 12, v0"); e("v_add_u32 v125, v11, v10"); e("v_lshlrev_b32 v125, 1, v125")
        e("s_cmp_ge_u32 s15, 64"); e(f"s_cbranch_scc1 {sk}")
        if xm & 2:
            e("s_lshr_b32 s7, s15, 3"); e("s_and_b32 s5, s15, 1"); e("s_xor_b32 s5, s5, 1"); e("s_lshl_b32 s5, s5, 5"); e("s_add_u32 s5, s5, s7")
            e("s_bfe_u32 s7, s15, 0x20001"); e("s_lshl_b32 s7, s7, 3"); e("s_add_u32 s5, s5, s7")
        else:
            e("s_lshr_b32 s7, s15, 3"); e("s_and_b32 s5, s15, 7"); e("s_xor_b32 s5, s5, 4"); e("s_lshl_b32 s5, s5, 3"); e("s_add_u32 s5, s5, s7")
        e(f"s_lshl_b32 s6, s{S_WAVE}, 4"); e(f"s_mul_i32 s7, s{S_WAVE}, 14"); e("s_add_u32 s7, s7, 8")
        e(f"s_cmp_lt_u32 s{S_WAVE}, 4"); e("s_cselect_b32 s6, s6, s7"); e("s_cselect_b32 s45, -1, 0x00ffffff"); e("s_mov_b32 s44, -1")
        e(f"s_mul_i32 s6, s6, {PS}"); e(f"s_mul_i32 s9, s5, {RS}"); e("s_add_u32 s9, s9, s6"); e(f"s_add_u32 s9, s9, {WS_SP}")
        e("s_lshr_b32 s8, s5, 3"); e("s_lshl_b32 s8, s8, 8"); e("s_and_b32 s6, s5, 3"); e("s_lshl_b32 s6, s6, 6"); e("s_add_u32 s8, s8, s6")
        e("s_and_b32 s6, s5, 4"); e("s_lshl_b32 s6, s6, 1"); e("s_add_u32 s8, s8, s6")
        e(f"s_add_u32 s6, s8, {L_XR}"); e("v_add_u32 v10, s6, v125"); e("ds_read_u16 v126, v10")
        for r in range(4): e(f"v_mov_b32 v{44+r}, 0")
        e("v_lshrrev_b32 v10, 4, v0"); e("v_lshl_add_u32 v9, v9, 2, v10"); e("v_mul_u32_u24 v123, 48, v9"); e(f"s_lshl_b32 s6, s{S_WAVE}, 2"); e("v_add_u32 v123, s6, v123")
        e("v_mul_u32_u24 v124, 48, v11"); e("v_mov_b32 v127, 0"); e("v_mov_b32 v43, 1")
        e(f"s_mov_b32 s7, {SPIN + 1}")
        e("s_waitcnt lgkmcnt(0)")
        e("v_lshlrev_b32 v126, 16, v126")
        g.label(sk)
    if diag or probe: e("s_memrealtime s[98:99]")
    if probe: e("s_mov_b32 s96, 0")
    e(f"s_cmp_ge_u32 s2, {grid}"); e("s_cbranch_scc1 L_end")
    if late:
        e("s_and_b32 s6, s2, 15"); e("s_cmp_lg_u32 s6, 5"); e("s_cbranch_scc1 L_nl"); e("s_lshr_b32 s6, s2, 4"); e("s_add_u32 s6, s6, 2")
        g.label("L_ll"); e("s_sleep 16"); e("s_sub_u32 s6, s6, 1"); e("s_cmp_lg_u32 s6, 0"); e("s_cbranch_scc1 L_ll"); g.label("L_nl")
    e("s_load_dwordx16 s[16:31], s[0:1], 0"); e("s_load_dwordx8 s[32:39], s[0:1], 64")
    e("v_lshrrev_b32 v1, 6, v0"); e("v_and_b32 v0, 63, v0")
    e(f"v_readfirstlane_b32 s{S_WAVE}, v1")
    e("s_mov_b32 s43, 0x20000")
    e("v_lshrrev_b32 v2, 4, v0"); e("v_and_b32 v3, 15, v0")
    if grid > 240: e("s_cmp_ge_u32 s2, 240"); e("s_cbranch_scc1 L_C")
    e(f"s_cmp_lt_u32 s{S_WAVE}, 4"); e("s_cbranch_scc1 L_X")

    e("s_setprio 3")
    e("v_lshlrev_b32 v1, 5, v0")
    e(f"s_lshl_b32 s9, s{S_WAVE}, 9"); e("s_sub_u32 s9, s9, 2048"); e("v_lshlrev_b32 v9, 3, v0")
    e("s_mov_b32 s42, 2048")
    e("s_waitcnt lgkmcnt(0)")
    e("s_mov_b32 s40, s16"); e("s_mov_b32 s41, s17")
    e("buffer_load_dwordx4 v[112:115], v1, s[40:43], 0 offen")
    e("buffer_load_dwordx4 v[116:119], v1, s[40:43], 0 offen offset:16")
    e("buffer_load_dwordx2 v[110:111], v9, s[40:43], s9 offen")
    ws_srd(); epoch()
    e("s_branch L_Y")

    g.label("L_X")
    e("s_cmp_ge_u32 s2, 128"); e("s_cbranch_scc1 L_BX")
    mapA(5); mapAq(59, 5)
    e("v_lshlrev_b32 v1, 17, v2"); e("v_lshl_add_u32 v1, v3, 4, v1")
    e("s_and_b32 s6, s59, 7"); e("s_lshl_b32 s6, s6, 1"); e(f"s_lshr_b32 s7, s{S_WAVE}, 1"); e("s_add_u32 s6, s6, s7")
    e("s_lshr_b32 s57, s59, 3"); e("s_lshl_b32 s57, s57, 1"); e(f"s_and_b32 s7, s{S_WAVE}, 1"); e("s_add_u32 s57, s57, s7")
    e("s_lshl_b32 s8, s6, 19"); e("s_lshl_b32 s7, s57, 8"); e("s_add_u32 s8, s8, s7")
    e("s_lshl_b32 s9, s6, 8")
    e("s_mov_b32 s42, 0x800000")
    e("s_waitcnt lgkmcnt(0)")
    e("s_mov_b32 s40, s22"); e("s_mov_b32 s41, s23")
    def issue_A(k):
        if k < 16:
            e(f"buffer_load_dwordx4 v[{V_W+4*k}:{V_W+4*k+3}], v1, s[40:43], s8 offen{NT}")
            if k < 15: e(f"s_add_u32 s8, s8, {8*8192}" if k % 2 == 0 else f"s_sub_u32 s8, s8, {7*8192}")
        else:
            isK = k < 24; late = k >= 24 + JV
            e(f"s_add_u32 m0, s50, s{58 if isK else 51}")
            e(f"s_add_u32 s49, s50, s{52 if late else 56}")
            e(f"buffer_load_dwordx4 v{121 if isK or late else 122}, {'s[44:47]' if isK else 's[60:63]'}, s49 offen{NT} lds")
            if k < 31: e("s_add_u32 s50, s50, 4096"); e("s_and_b32 s50, s50, 0x7000")
    ops = Ops()
    for k in range(WA):
        issue_A(k); ops.add(k)
        if k == 1: ws_srd(); epoch(); ops.add("E")
    g.label("L_AX2")
    e("s_setprio 3")
    g.note(0, 98)
    e("v_lshrrev_b32 v9, 3, v0"); e("v_lshl_add_u32 v120, v9, 5, s9")
    masks(g)
    g.srd(44, 18, 67108864); g.srd(60, 20, 67108864)
    e("s_lshr_b32 s56, s5, 5"); e(f"s_mul_i32 s50, s56, {rotg*4096}"); e("s_and_b32 s50, s50, 0x7000")
    e("s_lshl_b32 s56, s56, 24"); e("s_and_b32 s7, s5, 31"); e("s_lshl_b32 s7, s7, 15"); e("s_add_u32 s56, s56, s7")
    e(f"s_lshl_b32 s7, s{S_WAVE}, 10"); e("s_add_u32 s56, s56, s7"); e(f"s_add_u32 s56, s56, {61440*256}")
    e(f"s_add_u32 s58, s7, {L_K}"); e(f"s_add_u32 s51, s7, {L_V}")
    e(f"s_lshl_b32 s7, s{S_WAVE}, 2"); e("v_add_u32 v9, s7, v2")
    e("v_xor_b32 v10, v9, v3"); e("v_lshlrev_b32 v10, 4, v10"); e("v_lshl_add_u32 v121, v2, 8, v10")
    e("v_and_b32 v9, 7, v9"); e("v_lshlrev_b32 v10, 1, v9"); e("v_xor_b32 v10, v10, v3"); e("v_lshlrev_b32 v10, 4, v10")
    e("v_lshl_add_u32 v122, v2, 8, v10")
    e("s_lshr_b32 s6, s57, 3"); e("s_lshl_b32 s6, s6, 15"); e("s_and_b32 s57, s57, 7"); e("s_lshl_b32 s57, s57, 9"); e("s_add_u32 s57, s57, s6")
    e("s_and_b32 s6, s59, 7"); e("s_lshl_b32 s6, s6, 12"); e("s_add_u32 s57, s57, s6"); e(f"s_add_u32 s57, s57, {WS_QP}")
    e("v_lshlrev_b32 v125, 4, v0")
    e(f"s_lshl_b32 s6, s{S_WAVE}, 9"); e("v_add_u32 v126, s6, v125"); e("v_xor_b32 v127, 0x400, v126")
    nis = WA
    PRE = min(32, WA + PREA)
    role("AX")
    while nis < PRE:
        ops.wait(WA - 1); issue_A(nis); ops.add(nis); nis += 1; tr(nis - WA)
    e("s_barrier")
    for i in range(2):
        e(f"ds_read_b128 v[{V_XX+4*i}:{V_XX+4*i+3}], v120 offset:{L_XN + 16*i}")
    e("s_waitcnt lgkmcnt(1)")
    sel_half(g, 0, 0); sel_half(g, 0, 1)
    for i in range(16):
        if i == 4: e("s_waitcnt lgkmcnt(0)")
        gemv_pre(g, i, 16)
        ops.wait_for(i)
        while nis < i + 1 + (WA if nis < 16 else WA2) and nis < 24 + JV:
            issue_A(nis); ops.add(nis); nis += 1
        gemv_mfma(g, i, V_W + 4 * i)
        if i + 1 > PRE - WA: tr(i + 1)
        if i == 14:
            assert ops.landed("D"); make_tag(g)
    g.stamp(3)
    e(f"s_and_b32 s6, s{S_WAVE}, 1"); e("s_lshl_b32 s6, s6, 2"); e("v_mov_b32 v9, s6"); e("v_mov_b32 v10, 1")
    gemv_fin(g, 4)
    e(f"ds_write_b128 v126, v[{V_ACC}:{V_ACC+3}] offset:{L_RED}")
    e("s_mov_b32 exec_lo, 1")
    e(f"ds_add_rtn_u32 v10, v9, v10 offset:{L_CNT}")
    e("s_mov_b32 exec_lo, -1")
    e(f"ds_read_b128 v[24:27], v127 offset:{L_RED}")
    e("s_waitcnt lgkmcnt(1)")
    e("v_readfirstlane_b32 s6, v10")
    skip = g.newlab("Lnl")
    e("s_cmp_eq_u32 s6, 0"); e(f"s_cbranch_scc1 {skip}")
    e("s_waitcnt lgkmcnt(0)")
    for r in range(0, 4, 2): e(f"v_pk_add_f32 v[{20+r}:{21+r}], v[{20+r}:{21+r}], v[{24+r}:{25+r}]")
    tagput(g, V_ACC)
    if not dbg & 16 and not nost & 1: e(f"buffer_store_dwordx4 v[{V_ACC}:{V_ACC+3}], v125, {WS}, s57 offen {ST}")
    g.label(skip)
    e("s_mov_b64 exec, -1")
    while nis < 24 + JV:
        e(f"s_waitcnt vmcnt({WA2-1})"); issue_A(nis); nis += 1; tr(nis - WA2)
    e("v_mov_b32 v121, v122"); e("s_mov_b32 s52, s56")

    def att_pre():
        e("v_lshrrev_b32 v2, 4, v0"); e("v_and_b32 v3, 15, v0")
        e("v_xor_b32 v10, v2, v3"); e("v_lshlrev_b32 v10, 4, v10"); e("v_lshl_add_u32 v1, v3, 8, v10")
        e(f"s_lshl_b32 s6, s{S_WAVE}, 12")
        for s in range(4):
            e(f"v_xor_b32 v10, {64*s}, v1"); e(f"v_add_u32 v{43+4*s}, s6, v10")
        e("v_lshrrev_b32 v1, 2, v0"); e("v_and_b32 v9, 7, v1"); e(f"v_xor_b32 v9, s{S_WAVE}, v9"); e("v_lshlrev_b32 v9, 5, v9")
        e("v_and_b32 v10, 3, v0"); e("v_lshl_add_u32 v9, v10, 3, v9"); e("v_lshl_add_u32 v9, v1, 8, v9"); e(f"v_add_u32 v122, {L_V}, v9")
        e("v_and_b32 v1, 7, v0"); e("v_mul_u32_u24 v123, 272, v1"); e("v_lshl_add_u32 v123, v2, 4, v123")
        e("v_lshlrev_b32 v124, 2, v3")
        e(f"s_lshr_b32 s6, s{S_WAVE}, 1"); e("s_lshl_b32 s6, s6, 10"); e(f"s_and_b32 s7, s{S_WAVE}, 1"); e("s_lshl_b32 s7, s7, 3"); e("s_add_u32 s6, s6, s7")
        e("v_lshlrev_b32 v125, 4, v0"); e("v_add_u32 v126, s6, v125")
        e("v_lshlrev_b32 v127, 4, v3"); e("v_lshl_add_u32 v127, v2, 7, v127")
        e(f"s_mul_i32 s58, s5, {OS}"); e(f"s_lshl_b32 s7, s{S_WAVE}, 9"); e("s_add_u32 s58, s58, s7"); e(f"s_add_u32 s58, s58, {WS_OP}")
        e("v_mov_b32 v12, 0x3f803f80"); e("v_mov_b32 v13, v12"); e("v_mov_b32 v14, v12"); e("v_mov_b32 v15, v12")
        e("s_lshr_b32 s9, s5, 5"); e("s_lshl_b32 s9, s9, 15"); e("s_add_u32 s9, s9, s7"); e(f"s_add_u32 s9, s9, {WS_QP}")
        e("s_add_u32 s56, s9, 8192")
        e("v_lshrrev_b32 v9, 5, v0"); e("v_and_b32 v10, 31, v0"); e("v_lshlrev_b32 v16, 12, v9"); e("v_lshl_add_u32 v16, v10, 4, v16")
        e("v_add_u32 v17, 16384, v16")
        e(f"s_mul_i32 s6, s{S_WAVE}, 272"); e("v_lshlrev_b32 v18, 4, v3"); e("v_lshl_add_u32 v18, v9, 2, v18"); e("v_and_b32 v10, 1, v2")
        e("v_lshl_add_u32 v18, v10, 3, v18"); e("v_add_u32 v18, s6, v18")
    att_pre()
    if trace:
        for k in range(WA2 - 1, QW - 1, -1): e(f"s_waitcnt vmcnt({k})"); tr(24 + JV - k)
    e(f"s_waitcnt vmcnt({QW}) lgkmcnt(0)")
    g.label("L_att")
    e("s_barrier")
    g.stamp(1)
    def yload(k):
        e(f"buffer_load_dwordx4 v[{V_W+4*k}:{V_W+4*k+3}], v120, s[40:43], s8 offen{NT}")
        if k < 15: e("s_add_u32 s8, s8, 8192" if k % 4 != 3 else "s_add_u32 s8, s8, s57")
    ny = [0]
    def yissue(n):
        if not n: return
        lx = g.newlab("Lxp")
        e(f"s_cmp_lt_u32 s{S_WAVE}, 4"); e(f"s_cbranch_scc1 {lx}")
        for k in range(ny[0], ny[0] + n): yload(k)
        ny[0] += n
        g.label(lx)
    nq = 0 if dbg & 1 else 4
    def q_load(i):
        if nq: e(f"buffer_load_dwordx4 v[{24+4*i}:{27+4*i}], v{16 + (i >> 1)}, {WS}, {'s56' if i & 1 else 's9'} offen {LD}")
    def k_reads():
        for s in range(4): e(f"ds_read_b128 v[{40+4*s}:{43+4*s}], v{43+4*s} offset:{L_K}")
    def v_reads():
        for sg in range(4):
            for u in range(2):
                e(f"ds_read_b64_tr_b16 v[{104+4*sg+2*u}:{105+4*sg+2*u}], v122 offset:{8192*sg + 4096*u}")
    def v_wait():
        lx = g.newlab("Lxv")
        e(f"s_cmp_ge_u32 s{S_WAVE}, 4"); e(f"s_cbranch_scc1 {lx}")
        e("s_waitcnt vmcnt(0)")
        g.label(lx)
    def q_first():
        e("s_barrier")
        lx = g.newlab("Lxp"); ly = g.newlab("Lxq")
        e(f"s_cmp_lt_u32 s{S_WAVE}, 4"); e(f"s_cbranch_scc1 {lx}")
        for k in range(npe): yload(k)
        ny[0] = npe
        if KE: k_reads()
        e(f"s_waitcnt vmcnt({npe})")
        e(f"s_branch {ly}")
        g.label(lx)
        for k in range(24 + JV, 32): issue_A(k)
        if KE: k_reads()
        e(f"s_waitcnt vmcnt({8 - JV})")
        g.label(ly)
        yissue(nv)
    mpoll(g, 4, q_load, lambda i, dst: tagchk1(g, 24 + 4 * i, dst), 16, first=q_first, noretry=bool(dbg & 33))
    g.note(11, 7)
    g.stamp(2)
    for st in (8, 4):
        for r in range(0, st, 2): e(f"v_pk_add_f32 v[{24+r}:{25+r}], v[{24+r}:{25+r}], v[{24+st+r}:{25+st+r}]")
    g.nop(2)
    e("v_permlane32_swap_b32 v24, v26"); e("v_permlane32_swap_b32 v25, v27"); g.nop(1)
    e("v_pk_add_f32 v[24:25], v[24:25], v[26:27]")
    e("v_cvt_pk_bf16_f32 v24, v24, v25")
    e(f"ds_write_b32 v18, v24 offset:{L_Q}")
    yissue(NQ)
    e("s_waitcnt lgkmcnt(0)")
    e("s_barrier")
    g.stamp(5)
    if not KE: k_reads()
    for s in range(4):
        e(f"ds_read_b128 v[{24+4*s}:{27+4*s}], v123 offset:{L_Q + 64*s}")
    e("s_mov_b32 s6, 0x3db504f3")
    e("s_mov_b32 s7, 0x3fb8aa3b")
    for s in range(4):
        e(f"s_waitcnt lgkmcnt({3 - s})")
        c = "0" if s == 0 else "v[20:23]"
        e(f"v_mfma_f32_16x16x32_bf16 v[20:23], v[{40+4*s}:{43+4*s}], v[{24+4*s}:{27+4*s}], {c}")
    g.nop(8)
    e("v_max3_f32 v11, v20, v21, v22"); e("v_cvt_pk_bf16_f32 v9, v20, v21"); e("v_max_f32 v11, v11, v23")
    e(f"ds_max_f32 v124, v11 offset:{L_M}")
    e("v_cvt_pk_bf16_f32 v10, v22, v23")
    e("v_lshlrev_b32 v20, 16, v9"); e("v_and_b32 v21, 0xffff0000, v9"); e("v_lshlrev_b32 v22, 16, v10"); e("v_and_b32 v23, 0xffff0000, v10")
    for i in range(4): e(f"v_mul_f32 v{20+i}, s6, v{20+i}")
    yissue(nm)
    if vb == 1: v_wait()
    e("s_waitcnt lgkmcnt(0)")
    e("s_barrier")
    e(f"ds_read_b32 v11, v124 offset:{L_M}")
    if vb == 1: v_reads()
    e("v_cvt_pk_bf16_f32 v9, v20, v21"); e("v_cvt_pk_bf16_f32 v10, v22, v23")
    e("v_lshlrev_b32 v20, 16, v9"); e("v_and_b32 v21, 0xffff0000, v9"); e("v_lshlrev_b32 v22, 16, v10"); e("v_and_b32 v23, 0xffff0000, v10")
    e(f"s_waitcnt lgkmcnt({8 if vb == 1 else 0})")
    e("v_cvt_pk_bf16_f32 v11, v11, v11"); e("v_lshlrev_b32 v11, 16, v11"); e("v_mul_f32 v11, s6, v11")
    e("v_cvt_pk_bf16_f32 v11, v11, v11"); e("v_lshlrev_b32 v11, 16, v11")
    e("v_mul_f32 v11, s7, v11")
    for i in range(4): e(f"v_fma_f32 v{20+i}, v{20+i}, s7, -v11")
    for i in range(4): e(f"v_exp_f32 v{20+i}, v{20+i}")
    e("v_cvt_pk_bf16_f32 v20, v20, v21"); e("v_cvt_pk_bf16_f32 v21, v22, v23")
    e(f"ds_write_b64 v126, v[20:21] offset:{L_P}")
    yissue(np_)
    g.stamp(13)
    if vb == 2: v_wait()
    e("s_waitcnt lgkmcnt(0)")
    e("s_barrier")
    g.stamp(14)
    for sg in range(4):
        e(f"ds_read_b128 v[{40+4*sg}:{43+4*sg}], v125 offset:{L_P + 1024*sg}")
        if vb == 2:
            for u in range(2):
                e(f"ds_read_b64_tr_b16 v[{104+4*sg+2*u}:{105+4*sg+2*u}], v122 offset:{8192*sg + 4096*u}")
    e(f"v_mov_b32 v23, s{S_T[0]}")
    for sg in range(4):
        e(f"s_waitcnt lgkmcnt({(3 - sg) * (3 if vb == 2 else 1)})")
        e(f"v_mfma_f32_16x16x32_bf16 v[24:27], v[12:15], v[{40+4*sg}:{43+4*sg}], " + ("0" if sg == 0 else "v[24:27]"))
        e(f"v_mfma_f32_16x16x32_bf16 v[16:19], v[{104+4*sg}:{107+4*sg}], v[{40+4*sg}:{43+4*sg}], " + ("0" if sg == 0 else "v[16:19]"))
    e("s_mov_b32 exec_lo, 0x00ff00ff"); e("s_mov_b32 exec_hi, 0x00ff00ff")
    g.nop(5)
    e("v_rcp_f32 v9, v24"); e("v_log_f32 v10, v24")
    for r in range(4): e(f"v_mul_f32 v{16+r}, v9, v{16+r}")
    e("v_add_f32 v22, v11, v10")
    e("v_cvt_pk_bf16_f32 v20, v16, v17"); e("v_cvt_pk_bf16_f32 v21, v18, v19")
    if not dbg & 16 and not nost & 2: e(f"buffer_store_dwordx4 v[20:23], v127, {WS}, s58 offen {ST}")
    e("s_mov_b64 exec, -1")
    g.stamp(7)
    if lay & 1: e(f"s_cmp_lt_u32 s{S_WAVE}, 4"); e("s_cbranch_scc1 L_XA2"); g.L.append("@YA2"); g.label("L_XA2")
    else: e(f"s_cmp_ge_u32 s{S_WAVE}, 4"); e("s_cbranch_scc1 L_YA2")
    mapAo(5)
    e("s_lshr_b32 s8, s5, 5"); e(f"s_mul_i32 s8, s8, {32*OS}"); e("s_bfe_u32 s6, s5, 0x30002"); e("s_lshl_b32 s6, s6, 9"); e("s_add_u32 s8, s8, s6")
    e("s_bfe_u32 s6, s5, 0x10001"); e("s_lshl_b32 s6, s6, 6"); e("s_add_u32 s8, s8, s6"); e(f"s_lshl_b32 s6, s{S_WAVE}, 7"); e("s_add_u32 s8, s8, s6")
    e(f"s_add_u32 s8, s8, {WS_OP}"); e(f"s_add_u32 s9, s8, {16*OS}")
    e("v_lshrrev_b32 v125, 2, v0"); e(f"v_mul_u32_u24 v125, {OS}, v125"); e("v_and_b32 v9, 3, v0"); e("v_lshl_add_u32 v125, v9, 4, v125")
    oo_addr(2, True)
    e("s_mov_b64 s[44:45], -1"); e("s_mov_b64 s[46:47], -1"); e(f"s_mov_b32 s7, {SPIN + 1}")
    if ackw & 1: e("s_waitcnt vmcnt(0)")
    g.stamp(6)
    def o_load(i):
        if not dbg & 2: e(f"buffer_load_dwordx4 v[{24+4*i}:{27+4*i}], v125, {WS}, s{8+i} offen {LD}")
    def o_check(i, dst): e(f"v_cmp_ne_u32 {dst}, s{S_T[0]}, v{27+4*i}")
    ipoll(g, 2, o_load, o_check, 44, noretry=bool(dbg & 34))
    g.note(12, 7)
    g.stamp(8)
    e("v_max_f32 v16, v26, v30")
    e("v_lshlrev_b32 v32, 16, v24"); e("v_and_b32 v33, 0xffff0000, v24")
    e("v_max_f32_dpp v16, v16, v16 row_ror:4 row_mask:0xf bank_mask:0xf")
    e("v_lshlrev_b32 v34, 16, v25"); e("v_and_b32 v35, 0xffff0000, v25")
    e("v_max_f32_dpp v16, v16, v16 row_ror:8 row_mask:0xf bank_mask:0xf")
    e("v_mov_b32 v9, v16")
    e("v_lshlrev_b32 v40, 16, v28"); e("v_and_b32 v41, 0xffff0000, v28")
    e("v_permlane16_swap_b32 v9, v16")
    g.nop(1)
    e("v_max_f32 v16, v9, v16")
    e("v_mov_b32 v9, v16")
    e("v_lshlrev_b32 v42, 16, v29"); e("v_and_b32 v43, 0xffff0000, v29")
    e("v_permlane32_swap_b32 v9, v16"); g.nop(1); e("v_max_f32 v16, v9, v16")
    e("v_sub_f32 v26, v26, v16"); e("v_sub_f32 v30, v30, v16")
    e("v_exp_f32 v26, v26"); e("v_exp_f32 v30, v30"); g.nop(1)
    e("v_add_f32 v36, v26, v30")
    for r in range(4): e(f"v_mul_f32 v{32+r}, v26, v{32+r}")
    for r in range(4): e(f"v_fmac_f32 v{32+r}, v30, v{40+r}")
    e("v_mov_b32 v37, v36"); g.nop(1)
    e("v_permlane32_swap_b32 v32, v34"); e("v_permlane32_swap_b32 v33, v35"); e("v_permlane32_swap_b32 v37, v36")
    e("v_add_f32 v32, v32, v34"); e("v_add_f32 v33, v33, v35"); e("v_add_f32 v36, v36, v37")
    e("v_mov_b32 v37, v36"); g.nop(1)
    e("v_permlane16_swap_b32 v32, v33"); e("v_permlane16_swap_b32 v37, v36"); g.nop(1)
    e("v_add_f32 v32, v32, v33"); e("v_add_f32 v36, v36, v37")
    for ror in (4, 8):
        g.nop(1)
        for r in (32, 36): e(f"v_add_f32_dpp v{r}, v{r}, v{r} row_ror:{ror} row_mask:0xf bank_mask:0xf")
    e("v_rcp_f32 v36, v36"); g.nop(1)
    e("v_mul_f32 v32, v36, v32")
    g.label("L_oo")
    e("v_cvt_pk_bf16_f32 v32, v32, v32")
    e(f"ds_write_b32 v2, v32 offset:{L_OO}")
    e("s_waitcnt lgkmcnt(0)")
    e("s_barrier")
    g.label("L_oo2")
    g.stamp(9)
    rsetup()
    e("s_branch L_R")

    g.label("L_BX")
    mapB(5)
    e(f"s_mov_b32 s6, {32*7168}"); e("v_mul_lo_u32 v1, v2, s6"); e("v_lshl_add_u32 v1, v3, 4, v1")
    e("s_bfe_u32 s9, s5, 0x30001")
    e(f"s_mul_i32 s8, s9, {128*7168}"); e("s_lshr_b32 s7, s5, 4"); e("s_lshl_b32 s7, s7, 2"); e(f"s_add_u32 s7, s7, s{S_WAVE}")
    e("s_lshl_b32 s56, s7, 9")
    e("s_lshl_b32 s7, s7, 8"); e("s_add_u32 s8, s8, s7")
    e("s_mov_b32 s42, 7340032")
    e("s_and_b32 s6, s5, 1"); e("s_cmp_eq_u32 s6, 0")
    e("s_waitcnt lgkmcnt(0)")
    e("s_cselect_b32 s40, s28, s30"); e("s_cselect_b32 s41, s29, s31")
    def issue_B(k):
        r = V_W + 4 * (k & 15)
        e(f"buffer_load_dwordx4 v[{r}:{r+3}], v1, s[40:43], s8 offen{NT}")
        if k < 31: e(f"s_add_u32 s8, s8, {16*7168}" if k % 2 == 0 else f"s_sub_u32 s8, s8, {15*7168}")
    ops = Ops()
    for k in range(WB1): issue_B(k); ops.add(k)
    g.label("L_BX2")
    ws_srd(); epoch(); ops.add("E")
    e("s_setprio 3")
    g.note(0, 98)
    e("s_lshl_b32 s7, s9, 9"); e("v_lshrrev_b32 v9, 3, v0"); e("v_lshl_add_u32 v120, v9, 6, s7")
    masks(g)
    e("s_lshl_b32 s6, s6, 3"); e("s_add_u32 s6, s6, s9"); e(f"s_mul_i32 s6, s6, {GS}"); e("s_add_u32 s56, s56, s6"); e(f"s_add_u32 s56, s56, {WS_GP}")
    e("v_lshlrev_b32 v121, 4, v0")
    e("v_lshrrev_b32 v122, 2, v0"); e(f"v_mul_u32_u24 v122, {GS}, v122"); e("v_and_b32 v9, 3, v0"); e("v_lshl_add_u32 v122, v9, 4, v122")
    mapBd(9)
    e("s_bfe_u32 s6, s9, 0x10001"); e("s_lshl_b32 s6, s6, 7"); e("s_lshr_b32 s9, s9, 2"); e("s_lshl_b32 s9, s9, 9"); e("s_add_u32 s9, s9, s6")
    e(f"s_and_b32 s6, s{S_WAVE}, 2"); e("s_lshl_b32 s6, s6, 7"); e("s_add_u32 s9, s9, s6"); e(f"s_and_b32 s6, s{S_WAVE}, 1"); e("s_lshl_b32 s6, s6, 6"); e("s_add_u32 s9, s9, s6")
    e(f"s_add_u32 s9, s9, {WS_GP}")
    oo_addr(2, False)
    nis = WB1
    PRE = min(15, WB1 + PREB)
    role("BX")
    while nis < PRE:
        ops.wait(WB1 - 1); issue_B(nis); ops.add(nis); nis += 1; tr(nis - WB1)
    e("s_barrier")
    for i in range(4):
        e(f"ds_read_b128 v[{V_XX+4*i}:{V_XX+4*i+3}], v120 offset:{L_XN + 16*i}")
    e("s_waitcnt lgkmcnt(3)")
    sel_half(g, 0, 0); sel_half(g, 0, 1)
    b2done = False
    for i in range(32):
        if i == 4: e("s_waitcnt lgkmcnt(0)")
        gemv_pre(g, i, 32)
        ops.wait_for(i)
        W = WB1 if i < WBsw else (WB2 if i < WBsw3 else WB3)
        while nis < 32 and nis < i + 1 + W:
            issue_B(nis); ops.add(nis); nis += 1
        if nis == 32 and not b2done and 31 - i <= HB:
            e("s_barrier"); b2done = True
        gemv_mfma(g, i, V_W + 4 * (i & 15))
        if i + 1 > PRE - WB1: tr(i + 1)
        if i == 24:
            assert ops.landed("D"); make_tag(g)
    g.stamp(3)
    gemv_fin(g)
    tagput(g, V_ACC)
    if not dbg & 16 and not nost & 4: e(f"buffer_store_dwordx4 v[20:23], v121, {WS}, s56 offen {ST}")
    e("s_mov_b64 exec, -1")
    if not b2done: e("s_barrier")
    e("s_mov_b64 s[44:45], -1"); e(f"s_mov_b32 s7, {SPIN + 1}")
    if ackw & 2: e("s_waitcnt vmcnt(0)")
    g.stamp(6)
    def h_load(i):
        if not dbg & 4: e(f"buffer_load_dwordx4 v[28:31], v122, {WS}, s9 offen {LD}")
    ipoll(g, 1, h_load, lambda i, dst: tagchk1(g, 28, dst), 44, noretry=bool(dbg & 36))
    g.note(11, 7)
    g.stamp(5)
    e("v_permlane16_swap_b32 v28, v30"); e("v_permlane16_swap_b32 v29, v31"); g.nop(1)
    e("v_add_f32 v28, v28, v30"); e("v_add_f32 v29, v29, v31")
    for ror in (4, 8):
        g.nop(1)
        for r in (28, 29): e(f"v_add_f32_dpp v{r}, v{r}, v{r} row_ror:{ror} row_mask:0xf bank_mask:0xf")
    g.nop(2)
    e("v_permlane32_swap_b32 v28, v29")
    g.nop(1)
    e("v_cvt_pk_bf16_f32 v28, v28, v29")
    e("v_lshlrev_b32 v32, 16, v28"); e("v_mul_f32 v32, 0xbfb8aa3b, v32"); e("v_exp_f32 v32, v32")
    e("v_and_b32 v29, 0xffff0000, v28")
    e("v_add_f32 v32, 1.0, v32"); e("v_rcp_f32 v32, v32"); g.nop(1)
    e("v_cvt_pk_bf16_f32 v32, v32, v32"); e("v_lshlrev_b32 v32, 16, v32")
    e("v_mul_f32 v32, v32, v29")
    if lay & 1:
        e("v_cvt_pk_bf16_f32 v32, v32, v32")
        e(f"ds_write_b32 v2, v32 offset:{L_OO}")
        e("s_waitcnt lgkmcnt(0)")
        e("s_barrier")
        e("s_branch L_oo2")
    else: e("s_branch L_oo")

    g.label("L_Y")
    g.note(0, 98)
    e("s_lshl_b32 s9, s9, 1"); e("v_lshl_add_u32 v122, v0, 4, s9")
    e("v_mov_b32 v9, 0"); e("v_mov_b32 v44, 0"); e("v_mov_b32 v45, 0"); e("v_mov_b32 v46, 0"); e("v_mov_b32 v47, 0")
    e(f"ds_write_b128 v9, v[44:47] offset:{L_CNT}")
    e("v_lshlrev_b32 v10, 2, v3"); e("v_mov_b32 v11, 0xff800000"); e(f"ds_write_b32 v10, v11 offset:{L_M}")
    e("v_lshlrev_b32 v120, 11, v2"); e("v_lshl_add_u32 v120, v3, 4, v120")
    e("v_lshrrev_b32 v121, 2, v0"); e(f"v_mul_u32_u24 v121, {RS}, v121"); e("v_and_b32 v10, 3, v0"); e("v_lshl_add_u32 v121, v10, 4, v121")
    e("v_mov_b32 v12, 0x3f803f80"); e("v_mov_b32 v10, 0"); e("v_mov_b32 v11, 0x3a800000")
    e("s_waitcnt vmcnt(0)")
    dbgload()
    e("v_lshrrev_b32 v1, 1, v122"); e(f"v_add_u32 v1, {L_XR}, v1"); e("ds_write_b64 v1, v[110:111]")
    layernorm(g, 112, 110)
    e(f"ds_write_b128 v122, v[24:27] offset:{L_XN}")
    e("s_waitcnt lgkmcnt(0)")
    g.stamp(6)
    e("s_barrier")
    masks(g)
    e("s_waitcnt vmcnt(0)")
    make_tag(g)
    def ysetup(pbase):
        e("s_lshr_b32 s9, s5, 1")
        if pbase == 0:
            e("s_lshr_b32 s8, s5, 5"); e("s_lshl_b32 s8, s8, 21"); e("s_bfe_u32 s6, s5, 0x10001"); e("s_lshl_b32 s6, s6, 20"); e("s_add_u32 s8, s8, s6")
            e("s_bfe_u32 s6, s5, 0x30002"); e("s_lshl_b32 s6, s6, 15"); e("s_add_u32 s8, s8, s6"); e(f"s_mov_b32 s57, {116*2048}")
        else:
            e("s_lshl_b32 s8, s9, 17"); e("s_movk_i32 s57, 8192")
        e("s_and_b32 s6, s5, 1"); e("s_lshl_b32 s6, s6, 2")
        e(f"s_add_u32 s6, s6, s{S_WAVE}"); e("s_sub_u32 s6, s6, 4")
        e("s_lshl_b32 s7, s6, 8"); e("s_add_u32 s8, s8, s7")
        e(f"s_mul_i32 s59, s6, {8*RS}"); e(f"s_mul_i32 s9, s9, {PS}"); e("s_add_u32 s59, s59, s9"); e(f"s_add_u32 s59, s59, {WS_SP + pbase*PS}")
    e("s_cmp_ge_u32 s2, 128"); e("s_cbranch_scc1 L_YB2")
    mapAo(5); ysetup(0)
    e("s_mov_b32 s40, s24"); e("s_mov_b32 s41, s25"); e("s_mov_b32 s42, 0x800000")
    mapA(5)
    att_pre()
    e("s_branch L_att")
    def ystream(k0, W1, N1, W2, gate):
        for k in range(k0, 16):
            if gate and k == max(N1, k0): e("s_barrier")
            W = W1 if k < N1 else W2
            if k >= W: e(f"s_waitcnt vmcnt({W-1})")
            yload(k)
            if k >= W: tr(k + 1 - W)
        if gate and max(N1, k0) >= 16: e("s_barrier")
        if trace:
            for k in range(min(W, 16) - 1, -1, -1): e(f"s_waitcnt vmcnt({k})"); tr(16 - k)
    g.label("L_YB2")
    mapBd(5); ysetup(64)
    e("s_mov_b32 s40, s32"); e("s_mov_b32 s41, s33"); e("s_mov_b32 s42, 7340032")
    lu = g.newlab("Lup")
    e("s_cmp_lg_u32 s2, 128"); e(f"s_cbranch_scc1 {lu}"); e(f"s_cmp_lg_u32 s{S_WAVE}, 4"); e(f"s_cbranch_scc1 {lu}")
    e("s_mov_b64 exec, 1")
    e("v_mov_b32 v52, s3"); e("v_mov_b32 v53, 1"); e(f"v_mov_b32 v10, s{S_T[0]}")
    e("buffer_store_dwordx2 v[52:53], off, s[64:67], 0 sc1")
    e("s_waitcnt vmcnt(0)")
    e(f"buffer_store_dword v10, off, {WS}, 0 offset:{WS_E} sc1")
    e("s_waitcnt vmcnt(0)")
    e("s_mov_b64 exec, -1")
    g.label(lu)
    e("s_setprio 0")
    e("s_barrier")
    g.stamp(2)
    role("BY"); ystream(0, WYB, N1B, W2B, 0)
    e("s_branch L_YL3")
    g.label("L_YA2")
    e("s_setprio 0")
    role("AY"); ystream(NPRE, WYA, N1A, W2A, 0)
    g.L.append("; ---- last GEMV and publish")
    g.label("L_YL3")
    g.stamp(3)
    rsetup()
    e("s_setprio 3")
    e("v_and_b32 v9, 56, v0"); e("v_lshlrev_b32 v9, 2, v9")
    e("s_barrier")
    g.stamp(4)
    for i in range(2):
        e(f"ds_read_b128 v[{V_XX+4*i}:{V_XX+4*i+3}], v9 offset:{L_OO + 16*i}")
    e("s_waitcnt lgkmcnt(1)")
    sel_half(g, 0, 0); sel_half(g, 0, 1)
    for i in range(16):
        gemv_pre(g, i, 16)
        e(f"s_waitcnt vmcnt({15-i})" + (" lgkmcnt(0)" if i == 4 else ""))
        gemv_mfma(g, i, V_W + 4 * i)
    gemv_fin(g)
    tagput(g, V_ACC)
    if not dbg & 16 and not nost & 8: e(f"buffer_store_dwordx4 v[{V_ACC}:{V_ACC+3}], v121, {WS}, s59 offen {ST}")
    e("s_mov_b64 exec, -1")
    g.stamp(9)

    g.label("L_R")
    e(f"s_cmp_ge_u32 s15, 64"); e("s_cbranch_scc1 L_fin")
    if dbg & 256: e("s_branch L_fin")
    if rack: e("s_waitcnt vmcnt(0)")
    e("s_barrier")
    g.stamp(13)
    def r_load(i): e(f"buffer_load_dwordx4 v[44:47], v122, {WS}, s9 offen {LD}")
    ipoll(g, 1, r_load, lambda i, dst: tagchk1(g, 44, dst), 44, noretry=bool(dbg & 8))
    g.note(15, 7)
    g.stamp(14)
    e("v_permlane32_swap_b32 v44, v46"); e("v_permlane32_swap_b32 v45, v47"); g.nop(1)
    e("v_add_f32 v44, v44, v46"); e("v_add_f32 v45, v45, v47"); g.nop(2)
    e("v_permlane16_swap_b32 v44, v45"); g.nop(1)
    e("v_add_f32 v44, v44, v45")
    for ror in (4, 8):
        g.nop(2); e(f"v_add_f32_dpp v44, v44, v44 row_ror:{ror} row_mask:0xf bank_mask:0xf")
    e(f"ds_write_b32 v123, v44 offset:{L_RED}")
    e("s_mov_b64 exec, 1")
    e(f"ds_add_rtn_u32 v43, v127, v43 offset:{L_CNT + 8}")
    e("s_mov_b64 exec, -1")
    e(f"ds_read_b128 v[28:31], v124 offset:{L_RED + 16}"); e(f"ds_read_b128 v[24:27], v124 offset:{L_RED}")
    e("s_waitcnt lgkmcnt(2)")
    e("v_readfirstlane_b32 s6, v43")
    e("s_waitcnt lgkmcnt(1)")
    e("s_cmp_lg_u32 s6, 7"); e("s_cbranch_scc1 L_fin")
    e("v_add_f32 v28, v28, v29"); e("v_add_f32 v30, v30, v31"); e("v_add_f32 v28, v28, v30")
    e("v_cvt_pk_bf16_f32 v28, v28, v28"); e("v_lshlrev_b32 v28, 16, v28")
    e("v_mul_f32 v10, 0xbfb8aa3b, v28"); e("v_exp_f32 v10, v10")
    e("s_waitcnt lgkmcnt(0)")
    e("v_add_f32 v24, v24, v25"); e("v_add_f32 v10, 1.0, v10"); e("v_rcp_f32 v10, v10")
    e("v_add_f32 v26, v26, v27"); e("v_add_f32 v24, v24, v26")
    e("v_mul_f32 v10, v28, v10")
    e("v_cvt_pk_bf16_f32 v10, v10, v24")
    e("v_and_b32 v24, 0xffff0000, v10"); e("v_lshlrev_b32 v10, 16, v10")
    e("v_mul_f32 v10, v24, v10")
    e("v_cvt_pk_bf16_f32 v10, v10, v10"); e("v_lshlrev_b32 v10, 16, v10")
    e("v_add_f32 v10, v126, v10")
    pol = ["", " sc1", " nt", " sc0 sc1"][ost & 3]
    e("s_mov_b64 exec, 0xffff")
    e("v_cvt_pk_bf16_f32 v10, v10, v10")
    e("buffer_store_short v10, v125, s[32:35], s8 offen" + pol)
    e("s_mov_b64 exec, -1")
    if probe and pidx < 0: e("s_waitcnt vmcnt(0)"); e("s_memrealtime s[96:97]")

    e("s_branch L_fin")

    g.label("L_C")
    e("s_getpc_b64 s[60:61]")
    g.label("L_pc")
    e(f"s_sub_u32 s60, s60, L_pc-{NAME}_kernel"); e("s_subb_u32 s61, s61, 0")
    e(f"s_lshl_b32 s6, s{S_WAVE}, 11"); e("v_lshl_add_u32 v9, v0, 5, s6")
    e(f"v_min_u32 v9, L_fail-{NAME}_kernel, v9")
    if cpf: e("global_load_dword v10, v9, s[60:61]")
    g.label("L_C0")
    if diag or pw:
        e("s_waitcnt lgkmcnt(0)"); ws_srd(); g.note(0, 98)
    if pw:
        if pwd:
            lpd = g.newlab("Lcd"); e(f"s_mov_b32 s7, {pwd}"); g.label(lpd); e("s_sleep 16"); e("s_sub_u32 s7, s7, 1"); e("s_cmp_lg_u32 s7, 0"); e(f"s_cbranch_scc1 {lpd}")
        e("s_and_b32 s5, s2, 7"); e("s_lshl_b32 s5, s5, 1"); e("s_bfe_u32 s6, s2, 0x10003"); e("s_add_u32 s5, s5, s6")
        e(f"s_lshl_b32 s5, s5, 3"); e(f"s_add_u32 s5, s5, s{S_WAVE}")
        e("v_lshlrev_b32 v1, 6, v0")
        if pw & 1:
            e("s_mul_i32 s6, s5, 3840"); e(f"s_add_u32 s6, s6, {WS_SP}"); e(f"buffer_load_dword v10, v1, {WS}, s6 offen")
        if pw & 2:
            e(f"s_mul_i32 s6, s5, {OS}"); e(f"s_add_u32 s6, s6, {WS_OP}"); e(f"buffer_load_dword v11, v1, {WS}, s6 offen")
    g.label("L_fin")
    if probe:
        def until(lab, base, t):
            g.label(lab); e("s_sleep 4"); e("s_memrealtime s[92:93]"); e("s_waitcnt lgkmcnt(0)"); e(f"s_sub_u32 s92, s92, {base}"); e(f"s_cmp_lt_u32 s92, {t}"); e(f"s_cbranch_scc1 {lab}")
        e("s_waitcnt lgkmcnt(0)")
        e(f"s_cmp_lt_u32 s2, {pw0}"); e("s_cselect_b32 s96, 0, s96"); e(f"s_cmp_ge_u32 s2, {pw1}"); e("s_cselect_b32 s96, 0, s96")
        e(f"s_cmp_lt_u32 s{S_WAVE}, {pv0}"); e("s_cselect_b32 s96, 0, s96"); e(f"s_cmp_ge_u32 s{S_WAVE}, {pv1}"); e("s_cselect_b32 s96, 0, s96")
        e("s_cmp_lg_u32 s96, 0"); e("s_cbranch_scc1 L_q5")
        e(f"s_cmp_lg_u32 s{S_WAVE}, 0"); e("s_cbranch_scc1 L_end")
        g.label("L_q5")
        e("s_load_dwordx2 s[90:91], s[0:1], 80")
        until("L_q0", "s98", 1600)
        e("s_not_b32 s6, s98"); e("s_atomic_umax s6, s[90:91], 128")
        e("s_mov_b32 s6, s96"); e("s_atomic_umax s6, s[90:91], 192")
        e("s_cmp_lg_u32 s2, 100"); e("s_cbranch_scc1 L_end"); e(f"s_cmp_lg_u32 s{S_WAVE}, 0"); e("s_cbranch_scc1 L_end")
        until("L_q3", "s98", 4000 if pidx < 0 else 7000)
        e("s_load_dword s8, s[90:91], 128 glc"); e("s_load_dword s9, s[90:91], 192 glc"); e("s_waitcnt lgkmcnt(0)")
        e("s_not_b32 s8, s8"); e("s_sub_u32 s9, s9, s8"); e("s_min_u32 s9, s9, 3000"); e("s_mul_i32 s9, s9, 10"); e(f"s_add_u32 s9, s9, {0 if pidx < 0 else 8000}")
        g.label("L_q4"); e("s_memrealtime s[92:93]"); e("s_waitcnt lgkmcnt(0)"); e("s_sub_u32 s92, s92, s8"); e("s_cmp_lt_u32 s92, s9"); e("s_cbranch_scc1 L_q4")
    if diag:
        e("s_waitcnt vmcnt(0)")
        g.stamp(10)
        e("s_lshl_b32 s6, s2, 3"); e(f"s_add_u32 s6, s6, s{S_WAVE}"); e("s_lshl_b32 s6, s6, 8"); e(f"s_add_u32 s6, s6, {WS_DIAG}")
        e("v_lshlrev_b32 v1, 2, v0")
        e(f"buffer_store_dword v128, v1, {WS}, s6 offen")
    g.label("L_end")
    e("s_endpgm")
    g.L += g.tail
    g.label("L_fail")
    e("s_endpgm")
    nv = 136 if diag else 128
    g.L += ['.section .rodata,"a"', ".p2align 6", f".amdhsa_kernel {NAME}_kernel",
            f"  .amdhsa_next_free_vgpr {nv}", f"  .amdhsa_next_free_sgpr {68 if final else 102}", f"  .amdhsa_accum_offset {nv}",
            "  .amdhsa_group_segment_fixed_size 0", "  .amdhsa_kernarg_size 96", "  .amdhsa_user_sgpr_count 2",
            "  .amdhsa_user_sgpr_kernarg_segment_ptr 1", "  .amdhsa_system_sgpr_workgroup_id_x 1",
            ".end_amdhsa_kernel"]
    if lay & 1:
        L = g.L
        i = L.index("L_YA2:"); j = L.index("; ---- last GEMV and publish"); blk = L[i:j] + ["  s_branch L_YL3"]; del L[i - 1:j]
        i = L.index("@YA2"); L[i:i + 1] = blk
    if heads:
        L = g.L
        def cut(a, b):
            i = L.index(a); j = L.index(b); blk = L[i:j]; del L[i:j]; return blk
        bh = cut("L_BX:", "L_BX2:") + ["  s_branch L_BX2"]
        i = L.index("L_AX2:"); L[i:i] = ["  s_branch L_AX2"] + bh
        ch = cut("L_C:", "L_C0:") + ["  s_branch L_C0"]
        i = L.index("L_X:")
        if grid > 240: L[i:i] = ch
    out = "\n".join(x for x in g.L if x is not None) + "\n"
    if not diag and not probe: out = out.replace("  s_branch L_fin\n", "  s_endpgm\n")
    return out

F = [("AX:st",0,128,0,4,0),("wq",0,128,0,4,3),("ba",0,128,0,4,1),("gotq",0,128,0,8,2),("bq",0,128,0,4,5),("sm",64,128,0,8,13),("bp",64,128,0,8,14),("pubo",0,128,0,8,7),("gath",0,128,0,4,6),("goto",0,128,0,4,8),
     ("AY:ln",0,128,4,8,6),("iss",0,128,4,8,3),("bo",0,128,4,8,4),("pub",0,128,4,8,9),
     ("BX:gu",128,240,0,4,3),("gath",128,240,0,4,6),("goth",128,240,0,4,5),
     ("BY:go",128,240,4,8,2),("iss",128,240,4,8,3),("bo",128,240,4,8,4),("pub",128,240,4,8,9),
     ("R:go",128,192,0,8,13),("got",128,192,0,8,14),("end",0,240,0,8,10)]
POLLS = [("q", 0, 128, 0, 8, 11), ("o", 0, 128, 0, 4, 12), ("h", 128, 240, 0, 4, 11), ("fin", 128, 192, 0, 8, 15)]

def valid(c):
    return c.get("npe", 4) + c.get("nv", 0) + c.get("nm", 0) + c.get("np_", 0) <= c.get("NPRE", 4) <= 12 and c.get("WA", 8) <= 14

def parse(cfg):
    kw = {}
    for t in cfg.split(","):
        if not t: continue
        k, v = t.split("=")
        kw[k] = v if k in ("NT",) else int(v)
    return kw

if __name__ == "__main__":
    open(sys.argv[1], "w").write(gen(**parse(sys.argv[2] if len(sys.argv) > 2 else "")))
```
